```python
import torch

def _softmax(x, axis=-1):
    return torch.softmax(x, dim=axis)
def _gelu(x):
    return torch.nn.functional.gelu(x, approximate="tanh")
def _silu(x):
    return torch.nn.functional.silu(x)
def _sigmoid(x):
    return torch.sigmoid(x)
def _layernorm(x, axis=-1, eps=1e-5):
    m = x.mean(dim=axis, keepdim=True)
    v = x.var(dim=axis, keepdim=True, unbiased=False)
    return (x - m) / torch.sqrt(v + eps)
def _scatter_add(tgt, idx, src, axis=0):
    return tgt.clone().index_add_(axis, idx, src)
def _segment_sum(src, seg, n):
    out = torch.zeros((n,) + src.shape[1:], dtype=src.dtype)
    return out.index_add_(0, seg, src)
def _pad(x, pw):
    flat = tuple(v for pair in reversed(pw) for v in pair)
    return torch.nn.functional.pad(x, flat)

kernel_name = 'sequential_preLN__mha_block_cached__dense_activation_gelu__decode'

def setup_inputs():

    _w = (lambda a: (lambda t: t.to(torch.bfloat16) if t.is_floating_point() else t)(torch.as_tensor(a)))
    def _A_setup():
        B, Sq, D = 2, 1, 512
        H, Sk, Dh = 32, 4096, 128
        return {
            "x": _w((lambda *s: torch.randn(*s, dtype=torch.bfloat16) * 0.1)(B, Sq, D)),
            "k_cache": _w((lambda *s: torch.randn(*s, dtype=torch.bfloat16) * 1.6)(B, H, Sk, Dh)),
            "v_cache": _w((lambda *s: torch.randn(*s, dtype=torch.bfloat16) * 1.6)(B, H, Sk, Dh)),
            "wq": _w((lambda *s: torch.randn(*s, dtype=torch.bfloat16) * 1.6)(D, H * Dh) * (D ** -0.5)),
            "wo": _w((lambda *s: torch.randn(*s, dtype=torch.bfloat16) * 1.6)(H * Dh, D) * ((H * Dh) ** -0.5)),
        }
    _A_in = _A_setup()

    def _B_setup():
        B, S, D, F = 2, 1, 512, 1376
        return {
            "x": _w((lambda *s: torch.randn(*s, dtype=torch.bfloat16) * 0.1)(B, S, D)),
            "w1": _w((lambda *s: torch.randn(*s, dtype=torch.bfloat16) * 3.2)(D, F) * (D ** -0.5)),
            "b1": _w((lambda *s: torch.randn(*s, dtype=torch.bfloat16) * 3.2)(F) * 0.01),
            "w2": _w((lambda *s: torch.randn(*s, dtype=torch.bfloat16) * 3.2)(F, D) * (F ** -0.5)),
            "b2": _w((lambda *s: torch.randn(*s, dtype=torch.bfloat16) * 3.2)(D) * 0.01),
        }
    _B_in = _B_setup()

    return {
        "A_x": _A_in["x"],
        "A_k_cache": _A_in["k_cache"],
        "A_v_cache": _A_in["v_cache"],
        "A_wq": _A_in["wq"],
        "A_wo": _A_in["wo"],
        "B_x": _B_in["x"],
        "B_w1": _B_in["w1"],
        "B_b1": _B_in["b1"],
        "B_w2": _B_in["w2"],
        "B_b2": _B_in["b2"],
    }

def reference(A_x, A_k_cache, A_v_cache, A_wq, A_wo, B_x, B_w1, B_b1, B_w2, B_b2):
    def _A_ref(x, k_cache, v_cache, wq, wo):
        B, Sq, D = x.shape
        H, Dh = 32, 128
        q = (lambda x, *d: x.permute(*d))((x @ wq).reshape(B, Sq, H, Dh), 0, 2, 1, 3)
        scores = torch.einsum("bhqd,bhkd->bhqk", q, k_cache) * (Dh ** -0.5)
        p = _softmax(scores, axis=-1)
        o = torch.einsum("bhqk,bhkd->bhqd", p, v_cache)
        return (lambda x, *d: x.permute(*d))(o, 0, 2, 1, 3).reshape(B, Sq, H * Dh) @ wo

    def _B_ref(x, w1, b1, w2, b2):
        h = torch.einsum("bsd,df->bsf", x, w1) + b1
        h = _gelu(h)
        return torch.einsum("bsf,fd->bsd", h, w2) + b2

    x = A_x
    h = x + _A_ref(_layernorm(x, axis=-1), A_k_cache, A_v_cache, A_wq, A_wo)
    h2 = h + _B_ref(_layernorm(h, axis=-1), B_w1, B_b1, B_w2, B_b2)
    return h2
```

```python
import copy
import re

TRANS = ("v_exp_f32", "v_log_f32", "v_rcp_f32", "v_rsq_f32", "v_sqrt_f32", "v_sin_f32", "v_cos_f32")
NO_DST_SALU = ("s_cmp", "s_cbranch", "s_branch", "s_barrier", "s_waitcnt", "s_nop", "s_sleep",
               "s_setprio", "s_endpgm", "s_bitcmp")


def parse_regs(op):
    op = op.strip()
    if op.startswith("-"):
        op = op[1:]
    m = re.fullmatch(r"abs\((.*)\)", op)
    if m:
        op = m.group(1)
    m = re.fullmatch(r"\|(.*)\|", op)
    if m:
        op = m.group(1)
    m = re.fullmatch(r"([vsa])(\d+)", op)
    if m:
        return {(m.group(1), int(m.group(2)))}
    m = re.fullmatch(r"([vsa])\[(\d+):(\d+)\]", op)
    if m:
        return {(m.group(1), i) for i in range(int(m.group(2)), int(m.group(3)) + 1)}
    if op in ("vcc", "vcc_lo", "vcc_hi"):
        return {("s", "vcc")}
    if op in ("exec", "exec_lo", "exec_hi"):
        return {("x", "exec")}
    if op == "m0":
        return {("x", "m0")}
    return set()


class Ins:
    __slots__ = ("op", "reads", "writes", "valu", "trans", "dot", "mfma", "salu", "vmem", "ds",
                 "dpp", "dma", "srcAB", "srcC", "store_data", "wide", "states", "lanesel", "perm",
                 "rdlane")

    def __init__(self):
        self.op = ""
        self.reads = set()
        self.writes = set()
        self.valu = self.trans = self.dot = self.mfma = self.salu = self.vmem = self.ds = False
        self.dpp = self.dma = self.wide = self.perm = self.rdlane = False
        self.srcAB = set()
        self.srcC = set()
        self.store_data = set()
        self.states = 1
        self.lanesel = set()


def classify(op, ops, mods):
    i = Ins()
    i.op = op
    R = [parse_regs(o) for o in ops]
    allr = lambda idx: set().union(*[R[k] for k in idx]) if idx else set()
    n = len(ops)
    if op.startswith("v_mfma"):
        i.mfma = True
        i.writes = R[0]
        i.srcAB = R[1] | R[2]
        i.srcC = R[3]
        i.reads = i.srcAB | i.srcC
    elif op.startswith("v_"):
        i.valu = True
        base = op.replace("_dpp", "").replace("_e32", "").replace("_e64", "")
        i.trans = base in TRANS
        i.dot = base.startswith("v_dot")
        i.dpp = op.endswith("_dpp") or any(k in mods for k in ("row_", "quad_perm", "wave_"))
        if base.startswith("v_permlane"):
            i.perm = True
            i.writes = R[0] | R[1]
            i.reads = R[0] | R[1]
        elif "_co_" in base:
            i.writes = R[0] | R[1]
            i.reads = allr(range(2, n))
        else:
            i.writes = R[0]
            i.reads = allr(range(1, n))
            if base in ("v_fmac_f32", "v_dot2c_f32_bf16", "v_writelane_b32") or i.dpp:
                i.reads |= R[0]
        if base in ("v_readlane_b32", "v_readfirstlane_b32"):
            i.rdlane = True
            if base == "v_readlane_b32":
                i.lanesel = R[2]
        if base == "v_writelane_b32":
            i.lanesel = R[2]
        if i.dot:
            i.srcAB = R[1] | R[2]
            i.srcC = R[3] if n > 3 else R[0]
    elif op.startswith("buffer_") or op.startswith("global_"):
        i.vmem = True
        if "_load" in op:
            if re.search(r"\blds\b", mods) or "_lds_" in op:
                i.dma = True
                i.reads = allr(range(0, n)) | {("x", "m0")}
            else:
                i.writes = R[0]
                i.reads = allr(range(1, n))
                if "d16" in op:
                    i.reads |= R[0]
        elif "_store" in op or "_atomic" in op:
            i.reads = allr(range(0, n))
            if op.startswith("buffer_"):
                i.store_data = R[0]
            else:
                i.store_data = R[1]
            i.wide = len(i.store_data) > 2
        else:
            pass
    elif op.startswith("ds_"):
        i.ds = True
        if op.startswith("ds_read") or "_rtn" in op or "permute" in op or "swizzle" in op:
            i.writes = R[0]
            i.reads = allr(range(1, n))
        else:
            i.reads = allr(range(0, n))
    elif op.startswith("s_"):
        i.salu = True
        if op.startswith(NO_DST_SALU):
            i.reads = allr(range(0, n))
        else:
            i.writes = R[0] if n else set()
            i.reads = allr(range(1, n))
            if "saveexec" in op:
                i.writes |= {("x", "exec")}
                i.reads |= {("x", "exec")}
        if op == "s_nop":
            i.states = int(ops[0]) + 1
    else:
        raise ValueError("unknown op " + op)
    return i


def need(p, c):
    n = 0
    if p.valu:
        vw = {r for r in p.writes if r[0] == "v"}
        sw = {r for r in p.writes if r[0] == "s"}
        if vw:
            if c.dpp and (vw & c.reads):
                n = max(n, 2)
            if c.rdlane and (vw & c.reads):
                n = max(n, 1)
            if c.mfma and (vw & c.reads):
                n = max(n, 2)
            if c.perm and (vw & c.reads):
                n = max(n, 2)
            if p.trans and (c.valu or c.mfma) and (vw & (c.reads | c.writes)):
                n = max(n, 1)
            if p.dot:
                if c.dot and c.op == p.op and not (vw & c.srcAB):
                    pass
                elif vw & (c.reads | c.writes):
                    n = max(n, 3)
        if sw:
            if (c.valu or c.mfma) and (sw & c.reads):
                n = max(n, 2)
            if c.lanesel & sw:
                n = max(n, 4)
            if c.vmem and (sw & c.reads):
                n = max(n, 5)
    if p.mfma:
        D = p.writes
        if c.mfma:
            if D & c.srcAB:
                n = max(n, 8)
            if D & c.srcC:
                n = max(n, 0 if (c.srcC == D) else 6)
            elif D & c.writes:
                n = max(n, 8)
        else:
            if D & (c.reads | c.writes):
                n = max(n, 8)
        if c.valu and (p.srcC & c.writes):
            n = max(n, 3)
    if p.vmem and p.wide and (p.store_data & c.writes):
        n = max(n, 2)
    if p.salu and ("x", "m0") in p.writes and c.dma:
        n = max(n, 1)
    return n


WINDOW = 12


class Gen:
    def __init__(self):
        self.out = []
        self.hists = [[]]
        self.vm = {}
        self.lg = {}
        self.smem = set()
        self.uid = 0
        self.lab = 0
        self.ninstr = 0

    def save(self):
        return (copy.deepcopy(self.hists), copy.deepcopy(self.vm), copy.deepcopy(self.lg), set(self.smem))

    def restore(self, st):
        self.hists, self.vm, self.lg, self.smem = (copy.deepcopy(st[0]), copy.deepcopy(st[1]),
                                                   copy.deepcopy(st[2]), set(st[3]))

    def merge(self, st):
        self.hists = self.hists + copy.deepcopy(st[0])
        for mine, other in ((self.vm, st[1]), (self.lg, st[2])):
            for k, v in other.items():
                if k in mine:
                    mine[k][0] = min(mine[k][0], v[0])
                else:
                    mine[k] = copy.deepcopy(v)
        self.smem |= st[3]

    def newlabel(self, base="L"):
        self.lab += 1
        return f"{base}_{self.lab}"

    def label(self, name):
        self.out.append(f"{name}:")

    def comment(self, s):
        self.out.append(f"    ; {s}")

    def raw(self, s):
        self.out.append(s)

    def _push(self, ins, text):
        self.out.append("    " + text)
        self.ninstr += 1
        for h in self.hists:
            h.append(ins)
            if len(h) > WINDOW:
                del h[0]
        if len(self.hists) > 1:
            uniq = []
            for h in self.hists:
                if not any(len(u) == len(h) and all(a is b for a, b in zip(u, h)) for u in uniq):
                    uniq.append(h)
            self.hists = uniq

    def _pad_for(self, c):
        worst = 0
        for h in self.hists:
            dist = 0
            for p in reversed(h):
                nd = need(p, c)
                if nd > dist:
                    worst = max(worst, nd - dist)
                dist += p.states
        return worst

    def nop(self, states):
        while states > 0:
            k = min(states, 16)
            ins = classify("s_nop", [str(k - 1)], "")
            self._push(ins, f"s_nop {k - 1}")
            states -= k

    def wait(self, vm=None, lgkm=None):
        parts = []
        if vm is not None:
            vm = min(vm, 63)
            parts.append(f"vmcnt({vm})")
            self.vm = {k: v for k, v in self.vm.items() if v[0] < vm}
        if lgkm is not None:
            lgkm = min(lgkm, 15)
            parts.append(f"lgkmcnt({lgkm})")
            self.lg = {k: v for k, v in self.lg.items() if v[0] < lgkm}
            if lgkm == 0:
                self.smem = set()
        ins = classify("s_waitcnt", [], "")
        self._push(ins, "s_waitcnt " + " ".join(parts))

    def flush_hazards(self):
        worst = 0
        for h in self.hists:
            dist = 0
            for p in reversed(h):
                nd = 0
                if p.mfma:
                    nd = 8
                elif p.valu:
                    nd = 2
                    if p.dot:
                        nd = 3
                    if any(r[0] == "s" for r in p.writes):
                        nd = 5
                elif p.vmem and p.wide:
                    nd = 2
                elif p.salu and ("x", "m0") in p.writes:
                    nd = 1
                if nd > dist:
                    worst = max(worst, nd - dist)
                dist += p.states
        self.nop(worst)

    def __call__(self, op, *ops, mods=""):
        ops = [str(o) for o in ops]
        c = classify(op, ops, mods)
        touched = c.reads | c.writes
        wv = None
        for k, v in self.vm.items():
            if v[1] & touched:
                wv = v[0] if wv is None else min(wv, v[0])
        wl = None
        for k, v in self.lg.items():
            if v[1] & touched:
                wl = v[0] if wl is None else min(wl, v[0])
        if self.smem & touched:
            wl = 0
        if wl is not None:
            if self.smem:
                wl = 0
            wl = min(wl, 14)
        if wv is not None or wl is not None:
            self.wait(vm=wv, lgkm=wl)
        pad = self._pad_for(c)
        if pad:
            self.nop(pad)
        text = op
        if ops:
            text += " " + ", ".join(ops)
        if mods:
            text += " " + mods
        self._push(c, text)
        if c.vmem:
            for v in self.vm.values():
                v[0] += 1
            self.uid += 1
            self.vm[self.uid] = [0, set(c.writes)]
            assert len(self.vm) <= 63, "too many outstanding vmem"
        elif c.ds:
            for v in self.lg.values():
                v[0] += 1
            self.uid += 1
            self.lg[self.uid] = [0, set(c.writes)]
        elif op.startswith("s_load") or op.startswith("s_memtime") or op.startswith("s_memrealtime"):
            self.smem |= c.writes
        return self.uid

    def vm_younger(self, uid):
        return self.vm[uid][0] if uid in self.vm else None

    def text(self):
        return "\n".join(self.out) + "\n"
```

```python
import sys
from asmgen import Gen

NAME = "sequential_preLN__mha_block_cached__dense_activation_gelu__decode"

CFG = dict(
    kv_mods="nt",
    w_mods="",
    diag=False,
    spin_limit=200000,
)
for a in sys.argv[2:]:
    k, v = a.split("=", 1)
    if k in ("diag",):
        v = v not in ("0", "False", "false")
    elif k in ("spin_limit",):
        v = int(v)
    CFG[k] = v

NFFN = 86
WS_ST = 0x0
WS_H = 0x8000
WS_Y = 0x10000
WS_F = 0x100000
WS_DIAG = 0x200000
WS_SIZE = 0x400000
L_PART = 0
PSTR = 80
L_QB = 10240
L_YP = 10496
L_HN = 18688
L_H1 = 20736
L_W1 = 21504
LDS_BYTES = 37888

S_WAVE, S_H, S_B, S_SPL = "s3", "s4", "s5", "s6"
SRD_K, SRD_V, SRD_WQ, SRD_WO = "s[44:47]", "s[48:51]", "s[52:55]", "s[56:59]"
SRD_X, SRD_WS, SRD_DBG, SRD_W1 = "s[60:63]", "s[64:67]", "s[68:71]", "s[72:75]"
SRD_W2, SRD_B1, SRD_B2, SRD_OUT = "s[76:79]", "s[80:83]", "s[84:87]", "s[88:91]"
S_KV = "s92"
S_T = "s93"
S_WO = "s94"
S_M = "s95"
S_LOG2E = "s42"
S_SCALE = "s43"
S_BH = "s96"
S_PI = "s97"
S_IT = "s98"

DPPF = "row_mask:0xf bank_mask:0xf"


def vr(a, n=4):
    return f"v[{a}:{a + n - 1}]"


g = Gen()
stamp_idx = [0]


def stamp(slot):
    if not CFG["diag"]:
        return
    g("s_memrealtime", "s[100:101]")
    g.wait(lgkm=0)
    g("s_mov_b32", f"s{16 + slot}", "s100")


def srd(dst_base, ptr_lo, nbytes):
    g("s_mov_b32", f"s{dst_base}", f"s{ptr_lo}")
    g("s_and_b32", f"s{dst_base + 1}", f"s{ptr_lo + 1}", "0xffff")
    g("s_mov_b32", f"s{dst_base + 2}", hex(nbytes))
    g("s_mov_b32", f"s{dst_base + 3}", "0x00020000")


def wave_reduce(op, regs):
    for sh in (8, 4, 2, 1):
        for r in regs:
            g(op + "_dpp", r, r, r, mods=f"row_ror:{sh} {DPPF}")
    for r in regs:
        g(op + "_dpp", r, r, r, mods="row_bcast:15 row_mask:0xa bank_mask:0xf")
    for r in regs:
        g(op + "_dpp", r, r, r, mods="row_bcast:31 row_mask:0xc bank_mask:0xf")


def bf16r(dst, src, tmp=None):
    t = tmp or dst
    g("v_cvt_pk_bf16_f32", t, src, src)
    g("v_and_b32", dst, "0xffff0000", t)


def bf16r2(a, b, tmp):
    g("v_cvt_pk_bf16_f32", tmp, a, b)
    g("v_lshlrev_b32", a, 16, tmp)
    g("v_and_b32", b, "0xffff0000", tmp)


def unpack(dlo, dhi, src):
    g("v_lshlrev_b32", dlo, 16, src)
    g("v_and_b32", dhi, "0xffff0000", src)


def tree_sum(regs, op="v_add_f32"):
    regs = list(regs)
    while len(regs) > 1:
        nxt = []
        for i in range(0, len(regs) - 1, 2):
            g(op, regs[i], regs[i], regs[i + 1])
            nxt.append(regs[i])
        if len(regs) % 2:
            nxt.append(regs[-1])
        regs = nxt
    return regs[0]


def bmask_mfma(D, A, val, first, bcast=None):
    for r in range(4):
        if bcast is None:
            g("v_and_b32", f"v{8 + r}", val, f"v{4 + r}")
        else:
            g("v_and_b32_dpp", f"v{8 + r}", val, f"v{4 + r}", mods=f"row_newbcast:{bcast} {DPPF}")
    g("v_mfma_f32_16x16x32_bf16", D, A, "v[8:11]", "0" if first else D)


def poll_gather(dsts, voffs, soff, masks, imm=None):
    pend = ["s[8:9]", "s[10:11]", "s[12:13]", "s[14:15]"][:len(dsts)]
    for k, m in enumerate(masks):
        lo = pend[k][2:pend[k].index(":")]
        g("s_mov_b32", f"s{lo}", hex(m & 0xffffffff))
        g("s_mov_b32", f"s{int(lo) + 1}", hex(m >> 32))
    g("s_mov_b32", S_IT, 0)
    g.flush_hazards()
    L = g.newlabel("Lpoll")
    Ld = g.newlabel("Lpolldone")
    g.label(L)
    for k, d in enumerate(dsts):
        g("s_mov_b64", "exec", pend[k])
        mods = "offen sc1"
        if imm and imm[k]:
            mods = f"offen offset:{imm[k]} sc1"
        g("buffer_load_dwordx4", vr(d), voffs[k], SRD_WS, soff, mods=mods)
    g.wait(vm=0)
    for k, d in enumerate(dsts):
        g("s_mov_b64", "exec", pend[k])
        g("v_max3_u32", "v31", f"v{d}", f"v{d + 1}", f"v{d + 2}")
        g("v_max_u32", "v31", "v31", f"v{d + 3}")
        g("v_cmp_eq_u32", pend[k], -1, "v31")
    if len(dsts) == 1:
        g("s_or_b64", "s[100:101]", pend[0], pend[0])
    else:
        g("s_or_b64", "s[100:101]", pend[0], pend[1])
        for k in range(2, len(dsts)):
            g("s_or_b64", "s[100:101]", "s[100:101]", pend[k])
    g("s_cbranch_scc0", Ld)
    g("s_add_u32", S_IT, S_IT, 1)
    g("s_cmp_lt_u32", S_IT, CFG["spin_limit"])
    g("s_cbranch_scc0", Ld)
    g("s_sleep", 1)
    g.flush_hazards()
    g("s_branch", L)
    g.label(Ld)
    g("s_mov_b64", "exec", -1)
    g.flush_hazards()


def diag_store():
    if not CFG["diag"]:
        return
    g("v_mov_b32", "v30", 0)
    for i in range(16):
        g("v_writelane_b32", "v30", f"s{16 + i}", i)
    g("s_lshl_b32", "s7", "s2", 4)
    g("s_add_u32", "s7", "s7", S_WAVE)
    g("s_lshl_b32", "s7", "s7", 6)
    g("s_add_u32", "s7", "s7", hex(WS_DIAG))
    g("v_lshlrev_b32", "v29", 2, "v0")
    g("s_mov_b64", "exec", "0xffff")
    g("buffer_store_dword", "v30", "v29", SRD_WS, "s7", mods="offen")


g("s_cmp_ge_u32", "s2", 256)
g("s_cbranch_scc1", "L_end")
g("s_load_dwordx16", "s[16:31]", "s[0:1]", 0)
g("s_load_dwordx8", "s[32:39]", "s[0:1]", 64)
g("s_load_dwordx2", "s[40:41]", "s[0:1]", 96)
g("v_readfirstlane_b32", S_WAVE, "v0")
g("v_and_b32", "v0", 63, "v0")
g("s_and_b32", "s7", "s2", 7)
g("s_lshr_b32", "s8", "s2", 3)
g("s_and_b32", "s9", "s8", 3)
g("s_lshl_b32", S_H, "s7", 2)
g("s_add_u32", S_H, S_H, "s9")
g("s_lshl_b32", S_PI, "s7", 5)
g("s_add_u32", S_PI, S_PI, "s8")
g("s_lshr_b32", "s8", "s8", 2)
g("s_lshr_b32", S_B, "s8", 2)
g("s_and_b32", S_SPL, "s8", 3)
g("s_lshr_b32", S_WAVE, S_WAVE, 6)
g("v_lshlrev_b32", "v1", 4, "v0")
g("v_lshrrev_b32", "v3", 4, "v0")
g("v_and_b32", "v2", 15, "v0")
g("v_lshlrev_b32", "v2", 4, "v2")
g("v_lshl_add_u32", "v2", "v3", 16, "v2")
g("v_lshlrev_b32", "v3", 4, "v3")
g("s_lshl_b32", S_BH, S_B, 5)
g("s_add_u32", S_BH, S_BH, S_H)
g("s_lshl_b32", S_KV, S_BH, 20)
g("s_lshl_b32", "s7", S_SPL, 18)
g("s_add_u32", S_KV, S_KV, "s7")
g("s_lshl_b32", "s7", S_WAVE, 14)
g("s_add_u32", S_KV, S_KV, "s7")
g("s_lshl_b32", S_T, S_H, 8)
g("s_lshl_b32", "s7", S_WAVE, 18)
g("s_add_u32", S_T, S_T, "s7")
g("s_lshl_b32", "s10", S_B, 10)
g("s_lshl_b32", "s11", S_WAVE, 6)
g("s_add_u32", "s11", "s11", "s10")
g.wait(lgkm=0)
srd(60, 16, 2048)
srd(52, 22, 512 * 4096 * 2)
srd(44, 18, 2 * 32 * 4096 * 128 * 2)
srd(64, 40, WS_SIZE)
srd(68, 38, 256)

g("s_cmp_lg_u32", S_WAVE, 15)
g("s_cbranch_scc1", "L_noclear")
st_skip = g.save()
for r in range(4):
    g("v_mov_b32", f"v{8 + r}", -1)
g("s_lshl_b32", "s7", S_B, 7)
g("s_lshl_b32", "s8", S_H, 2)
g("s_add_u32", "s7", "s7", "s8")
g("s_add_u32", "s7", "s7", S_SPL)
g("s_lshl_b32", "s7", "s7", 11)
g("s_add_u32", "s7", "s7", hex(WS_Y))
g("buffer_store_dwordx4", "v[8:11]", "v1", SRD_WS, "s7", mods="offen sc1")
g("buffer_store_dwordx4", "v[8:11]", "v1", SRD_WS, "s7", mods="offen offset:1024 sc1")
g("s_lshl_b32", "s7", S_BH, 9)
g("s_lshl_b32", "s8", S_SPL, 7)
g("s_add_u32", "s7", "s7", "s8")
g("s_mov_b64", "exec", "0xff")
g("buffer_store_dwordx4", "v[8:11]", "v1", SRD_WS, "s7", mods="offen sc1")
g("s_lshl_b32", "s7", S_PI, 4)
g("s_add_u32", "s7", "s7", hex(WS_H))
g("s_mov_b64", "exec", 1)
last_clear = g("buffer_store_dwordx4", "v[8:11]", "v1", SRD_WS, "s7", mods="offen sc1")
g("s_mov_b64", "exec", -1)
g("s_cmp_ge_u32", "s2", NFFN)
g("s_cbranch_scc1", "L_noclear")
st_skip2 = g.save()
g("s_lshl_b32", "s7", "s2", 12)
g("s_add_u32", "s7", "s7", hex(WS_F))
for k in range(4):
    last_clear2 = g("buffer_store_dwordx4", "v[8:11]", "v1", SRD_WS, "s7",
                    mods=f"offen offset:{k * 1024} sc1" if k else "offen sc1")
g.label("L_noclear")
g.merge(st_skip)
g.merge(st_skip2)

if CFG["diag"]:
    g("s_memrealtime", "s[100:101]")
    g.wait(lgkm=0)
    g("s_mov_b32", "s99", "s100")

g("buffer_load_dwordx4", "v[24:27]", "v1", SRD_X, "s10", mods="offen")
g("buffer_load_dwordx4", "v[28:31]", "v3", SRD_X, "s11", mods="offen")
for i in range(8):
    g("buffer_load_dwordx4", vr(32 + 4 * i), "v2", SRD_WQ, S_T, mods=("offen " + CFG["w_mods"]).strip())
    if i < 7:
        g("s_add_u32", S_T, S_T, 8192)

g("s_cmp_lg_u32", S_WAVE, 15)
g("s_cbranch_scc1", "L_noflag")
st_skip = g.save()
g.wait(vm=10)
g("v_mov_b32", "v8", 1)
g("v_mov_b32", "v9", "s2")
g("s_mov_b64", "exec", 1)
g("buffer_store_byte", "v8", "v9", SRD_DBG, 0, mods="offen sc1")
g("s_mov_b64", "exec", -1)
g.label("L_noflag")
g.merge(st_skip)

kvm = CFG["kv_mods"]


def kv_load(dst, srd_, i):
    if i % 4 == 0:
        if i == 0:
            g("s_mov_b32", S_T, S_KV)
        else:
            g("s_add_u32", S_T, S_KV, i // 4 * 4096)
    off = (i % 4) * 1024
    g("buffer_load_dwordx4", vr(dst), "v1", srd_, S_T,
      mods=(f"offen offset:{off} {kvm}" if off else f"offen {kvm}").strip())


for i in range(16):
    kv_load(64 + 4 * i, SRD_K, i)

srd(48, 20, 2 * 32 * 4096 * 128 * 2)
srd(56, 24, 4096 * 512 * 2)
srd(72, 28, 512 * 1376 * 2)
srd(76, 32, 1376 * 512 * 2)
srd(80, 30, 1376 * 2)
srd(84, 34, 512 * 2)
srd(88, 36, 2048)
if CFG["diag"]:
    g("s_mov_b32", "s16", "s99")
    for i in range(1, 16):
        g("s_mov_b32", f"s{16 + i}", 0)
g("s_mov_b32", S_LOG2E, "0x3fb8aa3b")
g("s_mov_b32", S_SCALE, "0x3db504f3")
g("s_lshl_b32", S_WO, S_H, 17)
g("s_lshr_b32", "s7", S_WAVE, 2)
g("s_lshl_b32", "s7", "s7", 15)
g("s_add_u32", S_WO, S_WO, "s7")
g("s_and_b32", "s7", S_WAVE, 3)
g("s_lshl_b32", "s7", "s7", 8)
g("s_add_u32", S_WO, S_WO, "s7")
g("v_and_b32", "v8", 1, "v0")
g("v_lshlrev_b32", "v8", 4, "v8")
g("v_mov_b32", "v9", "0xffff")
g("v_lshlrev_b32", "v9", "v8", "v9")
g("v_bfe_u32", "v8", "v0", 1, 2)
for r in range(4):
    g("v_cmp_eq_u32", "vcc", r, "v8")
    g("v_cndmask_b32", f"v{4 + r}", 0, "v9", "vcc")
g("v_lshrrev_b32", "v8", 16, "v2")
g("v_and_b32", "v2", "0xff", "v2")
g("v_lshl_add_u32", "v2", "v8", 13, "v2")

for k in range(4):
    unpack(f"v{16 + 2 * k}", f"v{17 + 2 * k}", f"v{24 + k}")
g("v_add_f32", "v8", "v16", "v17")
g("v_add_f32", "v9", "v18", "v19")
g("v_add_f32", "v10", "v20", "v21")
g("v_add_f32", "v11", "v22", "v23")
tree_sum(["v8", "v9", "v10", "v11"])
wave_reduce("v_add_f32", ["v8"])
g("v_readlane_b32", "s7", "v8", 63)
g("v_mov_b32", "v12", "0x3b000000")
g("v_mul_f32", "v13", "s7", "v12")
for k in range(8):
    g("v_sub_f32", f"v{16 + k}", f"v{16 + k}", "v13")
g("v_mul_f32", "v8", "v16", "v16")
g("v_mul_f32", "v9", "v17", "v17")
for k in range(2, 8, 2):
    g("v_fmac_f32", "v8", f"v{16 + k}", f"v{16 + k}")
    g("v_fmac_f32", "v9", f"v{17 + k}", f"v{17 + k}")
g("v_add_f32", "v8", "v8", "v9")
wave_reduce("v_add_f32", ["v8"])
g("v_readlane_b32", "s7", "v8", 63)
g("v_mul_f32", "v14", "s7", "v12")
bf16r2("v13", "v14", "v15")
g("v_add_f32", "v14", "0x3727c5ac", "v14")
bf16r("v14", "v14")
g("v_sqrt_f32", "v14", "v14")
bf16r("v14", "v14")
g("v_rcp_f32", "v14", "v14")
for k in range(4):
    unpack(f"v{16 + 2 * k}", f"v{17 + 2 * k}", f"v{28 + k}")
for k in range(8):
    g("v_sub_f32", f"v{16 + k}", f"v{16 + k}", "v13")
for k in range(4):
    bf16r2(f"v{16 + 2 * k}", f"v{17 + 2 * k}", "v15")
for k in range(8):
    g("v_mul_f32", f"v{16 + k}", f"v{16 + k}", "v14")
for k in range(8):
    g("v_cvt_pk_bf16_f32", f"v{16 + k}", f"v{16 + k}", f"v{16 + k}")

for i in range(8):
    bmask_mfma("v[12:15]", vr(32 + 4 * i), f"v{16 + i}", i == 0)
    if i == 0:
        g("v_lshlrev_b32", "v3", 2, "v0")
        g("buffer_load_dword", "v3", "v3", SRD_DBG, 0, mods="offen sc1")
    kv_load(32 + 4 * i, SRD_V, i)

g("v_lshrrev_b32", "v16", 4, "v0")
g("v_and_b32", "v17", 15, "v0")
g("v_lshl_add_u32", "v16", "v16", 5, "v17")
g("v_mul_u32_u24", "v16", PSTR, "v16")
g("s_lshl_b32", "s7", S_WAVE, 2)
g("v_add_u32", "v16", "s7", "v16")
g("s_mov_b32", "s8", "0x00ff00ff")
g("s_mov_b32", "s9", "0x00ff00ff")
g("s_mov_b64", "exec", "s[8:9]")
for r in range(4):
    g("ds_write_b32", "v16", f"v{12 + r}", mods=f"offset:{L_PART + r * 8 * PSTR}")
g("s_mov_b64", "exec", -1)
g.wait(lgkm=0)
g("s_barrier")
g("s_cmp_ge_u32", S_WAVE, 2)
g("s_cbranch_scc1", "L_noqsum")
st_skip = g.save()
g("s_lshl_b32", "s7", S_WAVE, 6)
g("v_add_u32", "v12", "s7", "v0")
g("v_mul_u32_u24", "v13", PSTR, "v12")
for k in range(4):
    g("ds_read_b128", vr(16 + 4 * k), "v13", mods=f"offset:{L_PART + 16 * k}")
tree_sum([f"v{16 + k}" for k in range(16)])
g("v_cvt_pk_bf16_f32", "v16", "v16", "v16")
g("v_lshlrev_b32", "v12", 1, "v12")
g("ds_write_b16", "v12", "v16", mods=f"offset:{L_QB}")
g.wait(lgkm=0)
g.label("L_noqsum")
g.merge(st_skip)
g("s_barrier")
g("v_and_b32", "v12", 15, "v0")
g("v_lshlrev_b32", "v12", 4, "v12")
g("ds_read_b128", "v[8:11]", "v12", mods=f"offset:{L_QB}")
stamp(1)

for G in range(4):
    for step in range(4):
        for u in range(4):
            i = 4 * G + u
            g("v_dot2_f32_bf16", f"v{16 + i}", f"v{64 + 4 * i + step}", f"v{8 + step}",
              "0" if step == 0 else f"v{16 + i}")
    for u in range(4):
        i = 4 * G + u
        if G < 2:
            kv_load(64 + 4 * i, SRD_V, 8 + i)
        elif G == 2:
            off = u * 1024
            g("buffer_load_dwordx4", vr(64 + 4 * i), "v2", SRD_WO, S_WO,
              mods=(f"offen offset:{off} " + CFG["w_mods"]).strip() if off else ("offen " + CFG["w_mods"]).strip())
    for sh in (8, 4, 2, 1):
        for u in range(4):
            i = 4 * G + u
            g("v_add_f32_dpp", f"v{16 + i}", f"v{16 + i}", f"v{16 + i}", mods=f"row_ror:{sh} {DPPF}")
    for u in (0, 2):
        i = 4 * G + u
        bf16r2(f"v{16 + i}", f"v{17 + i}", f"v{12 + u}")
    for u in range(4):
        i = 4 * G + u
        g("v_mul_f32", f"v{16 + i}", S_SCALE, f"v{16 + i}")
    for u in (0, 2):
        i = 4 * G + u
        bf16r2(f"v{16 + i}", f"v{17 + i}", f"v{12 + u}")

g("v_max3_f32", "v12", "v16", "v17", "v18")
g("v_max3_f32", "v13", "v19", "v20", "v21")
g("v_max3_f32", "v14", "v22", "v23", "v24")
g("v_max3_f32", "v15", "v25", "v26", "v27")
g("v_max3_f32", "v12", "v12", "v28", "v29")
g("v_max3_f32", "v13", "v13", "v30", "v31")
g("v_max3_f32", "v12", "v12", "v13", "v14")
g("v_max_f32", "v12", "v12", "v15")
for k in range(4):
    g("v_readlane_b32", f"s{8 + k}", "v12", 16 * k)
g("v_mov_b32", "v12", "s8")
g("v_max_f32", "v12", "s9", "v12")
g("v_max_f32", "v12", "s10", "v12")
g("v_max_f32", "v12", "s11", "v12")
g("v_mul_f32", "v12", S_LOG2E, "v12")
for i in range(16):
    g("v_fma_f32", f"v{16 + i}", f"v{16 + i}", S_LOG2E, "-v12")
for i in range(16):
    g("v_exp_f32", f"v{16 + i}", f"v{16 + i}")
g("v_readfirstlane_b32", S_M, "v12")
g("v_add_f32", "v8", "v16", "v17")
g("v_add_f32", "v9", "v18", "v19")
g("v_add_f32", "v10", "v20", "v21")
g("v_add_f32", "v11", "v22", "v23")
g("v_add_f32", "v13", "v24", "v25")
g("v_add_f32", "v14", "v26", "v27")
g("v_add_f32", "v8", "v8", "v28")
g("v_add_f32", "v9", "v9", "v29")
g("v_add_f32", "v10", "v10", "v30")
g("v_add_f32", "v11", "v11", "v31")
tree_sum(["v8", "v9", "v10", "v11", "v13", "v14"])
for k in range(4):
    g("v_readlane_b32", f"s{8 + k}", "v8", 16 * k)
g("v_mov_b32", "v13", "s8")
g("v_add_f32", "v13", "s9", "v13")
g("v_add_f32", "v13", "s10", "v13")
g("v_add_f32", "v13", "s11", "v13")
for i in range(16):
    g("v_cvt_pk_bf16_f32", f"v{16 + i}", f"v{16 + i}", f"v{16 + i}")
g("s_lshl_b32", "s7", S_BH, 9)
g("s_lshl_b32", "s8", S_SPL, 7)
g("s_add_u32", "s7", "s7", "s8")
g("s_lshl_b32", "s8", S_WAVE, 3)
g("s_add_u32", "s7", "s7", "s8")
g("v_mov_b32", "v8", 0)
g("s_mov_b64", "exec", 1)
g("buffer_store_dwordx2", "v[12:13]", "v8", SRD_WS, "s7", mods="offen sc1")
g("s_mov_b64", "exec", -1)

g("v_cmp_ne_u32", "vcc", "0x01010101", "v3")
g("s_cmp_eq_u64", "vcc", 0)
g("s_cbranch_scc1", "L_flagok")
st_skip = g.save()
g("s_mov_b32", S_IT, 0)
g.label("L_flagspin")
g("v_lshlrev_b32", "v3", 2, "v0")
g("buffer_load_dword", "v3", "v3", SRD_DBG, 0, mods="offen sc1")
g.wait(vm=0)
g("v_cmp_ne_u32", "vcc", "0x01010101", "v3")
g("s_cmp_eq_u64", "vcc", 0)
g("s_cbranch_scc1", "L_flagok")
g("s_add_u32", S_IT, S_IT, 1)
g("s_cmp_lt_u32", S_IT, CFG["spin_limit"])
g("s_sleep", 2)
g("s_cbranch_scc1", "L_flagspin")
g.label("L_flagok")
g.merge(st_skip)
stamp(2)

def vreg(i):
    return 32 + 4 * i if i < 8 else 64 + 4 * (i - 8)


for i in range(16):
    bmask_mfma("v[12:15]", vr(vreg(i)), f"v{16 + i}", i == 0)
    if i == 0:
        g("v_lshlrev_b32", "v3", 3, "v0")
        g("s_lshl_b32", "s7", S_BH, 9)
        g("buffer_load_dwordx2", "v[32:33]", "v3", SRD_WS, "s7", mods="offen sc1")
        g("s_add_u32", S_T, S_WO, 4096)
        for u in range(4):
            off = u * 1024
            g("buffer_load_dwordx4", vr(112 + 4 * u), "v2", SRD_WO, S_T,
              mods=(f"offen offset:{off} " + CFG["w_mods"]).strip() if off else ("offen " + CFG["w_mods"]).strip())
stamp(3)

g("v_max_u32", "v34", "v32", "v33")
g("v_cmp_eq_u32", "vcc", -1, "v34")
g("s_cmp_eq_u64", "vcc", 0)
g("s_cbranch_scc1", "L_stok")
st_skip = g.save()
g("s_mov_b32", S_IT, 0)
g.label("L_stspin")
g("s_lshl_b32", "s7", S_BH, 9)
g("buffer_load_dwordx2", "v[32:33]", "v3", SRD_WS, "s7", mods="offen sc1")
g.wait(vm=0)
g("v_max_u32", "v34", "v32", "v33")
g("v_cmp_eq_u32", "vcc", -1, "v34")
g("s_cmp_eq_u64", "vcc", 0)
g("s_cbranch_scc1", "L_stok")
g("s_add_u32", S_IT, S_IT, 1)
g("s_cmp_lt_u32", S_IT, CFG["spin_limit"])
g("s_sleep", 1)
g("s_cbranch_scc1", "L_stspin")
g.label("L_stok")
g.merge(st_skip)
g("v_mov_b32", "v34", "v32")
wave_reduce("v_max_f32", ["v34"])
g("v_readlane_b32", "s7", "v34", 63)
g("v_subrev_f32", "v34", "s7", "v32")
g("v_exp_f32", "v34", "v34")
g("v_mul_f32", "v34", "v34", "v33")
wave_reduce("v_add_f32", ["v34"])
g("v_readlane_b32", "s8", "v34", 63)
g("v_mov_b32", "v35", "s7")
g("v_sub_f32", "v35", S_M, "v35")
g("v_exp_f32", "v35", "v35")
g("v_rcp_f32", "v34", "s8")
g("v_mul_f32", "v35", "v35", "v34")
for r in range(4):
    g("v_mul_f32", f"v{12 + r}", f"v{12 + r}", "v35")
g("v_lshrrev_b32", "v16", 4, "v0")
g("v_and_b32", "v17", 15, "v0")
g("v_lshl_add_u32", "v18", "v16", 5, "v17")
g("v_mul_u32_u24", "v18", PSTR, "v18")
g("s_lshl_b32", "s7", S_WAVE, 2)
g("v_add_u32", "v18", "s7", "v18")
g("s_mov_b32", "s8", "0x00ff00ff")
g("s_mov_b32", "s9", "0x00ff00ff")
g("s_mov_b64", "exec", "s[8:9]")
for r in range(4):
    g("ds_write_b32", "v18", f"v{12 + r}", mods=f"offset:{L_PART + r * 8 * PSTR}")
g("s_mov_b64", "exec", -1)
g("v_and_b32", "v17", 7, "v0")
g("v_lshl_add_u32", "v17", "v16", 3, "v17")
g("s_lshr_b32", "s7", S_WAVE, 2)
g("s_lshl_b32", "s7", "s7", 5)
g("v_add_u32", "v17", "s7", "v17")
g("v_mul_u32_u24", "v17", PSTR, "v17")
g("v_and_b32", "v19", 15, "v0")
g("v_lshlrev_b32", "v19", 4, "v19")
g("v_lshl_add_u32", "v19", "v16", 7, "v19")
g("s_lshr_b32", "s7", S_WAVE, 2)
g("s_lshl_b32", "s7", "s7", 11)
g("s_and_b32", "s10", S_WAVE, 3)
g("s_lshl_b32", "s10", "s10", 9)
g("s_add_u32", "s7", "s7", "s10")
g("v_add_u32", "v19", "s7", "v19")
g.wait(lgkm=0)
g("s_barrier")
stamp(4)
for k in range(4):
    g("ds_read_b128", vr(32 + 4 * k), "v17", mods=f"offset:{L_PART + 16 * k}")
tree_sum([f"v{32 + k}" for k in range(16)])
g("v_cvt_pk_bf16_f32", "v32", "v32", "v32")
for i in range(8):
    bmask_mfma("v[12:15]", vr(96 + 4 * i), "v32", i == 0, bcast=i)
g("s_mov_b64", "exec", "s[8:9]")
g("ds_write_b128", "v19", "v[12:15]", mods=f"offset:{L_YP}")
g("s_mov_b64", "exec", -1)
g.wait(lgkm=0)
g("s_barrier")

g("s_cmp_lt_u32", S_WAVE, 2)
g("s_cbranch_scc1", "L_ystore")
st_y = g.save()
g("s_cmp_ge_u32", "s2", NFFN)
g("s_cbranch_scc1", "L_fin")
g("s_cmp_lt_u32", S_WAVE, 4)
g("s_cbranch_scc1", "L_fin")
g("s_cmp_ge_u32", S_WAVE, 8)
g("s_cbranch_scc1", "L_fin")
st_fin = g.save()

g("v_lshrrev_b32", "v16", 4, "v0")
g("v_and_b32", "v17", 15, "v0")
g("v_lshlrev_b32", "v17", 4, "v17")
g("v_lshl_add_u32", "v17", "v16", 10, "v17")
g("s_lshl_b32", "s7", "s2", 14)
g("s_sub_u32", "s8", S_WAVE, 4)
g("s_lshl_b32", "s8", "s8", 8)
g("s_add_u32", "s7", "s7", "s8")
for i in range(4):
    g("buffer_load_dwordx4", vr(48 + 4 * i), "v17", SRD_W2, "s7", mods="offen")
    if i < 3:
        g("s_add_u32", "s7", "s7", 4096)
g("s_cmp_lg_u32", S_WAVE, 4)
g("s_cbranch_scc1", "L_ffn2")
st_ffn2 = g.save()
g("v_lshrrev_b32", "v16", 1, "v0")
g("s_movk_i32", "s7", 2752)
g("v_mul_lo_u32", "v16", "v16", "s7")
g("v_and_b32", "v17", 1, "v0")
g("v_lshl_add_u32", "v16", "v17", 4, "v16")
g("s_lshl_b32", "s7", "s2", 5)
g("s_mov_b32", "s8", L_W1)
for k in range(16):
    g("s_mov_b32", "m0", "s8")
    g("buffer_load_dwordx4", "v16", SRD_W1, "s7", mods="offen lds")
    if k < 15:
        g("s_add_u32", "s7", "s7", 32 * 2752)
        g("s_add_u32", "s8", "s8", 1024)
g.wait(vm=0)
g("v_bfe_u32", "v16", "v0", 2, 2)
g("v_lshlrev_b32", "v16", 8, "v16")
g("v_lshrrev_b32", "v17", 4, "v0")
g("v_lshl_add_u32", "v16", "v17", 6, "v16")
g("v_and_b32", "v17", 3, "v0")
g("v_lshl_add_u32", "v16", "v17", 3, "v16")
for t in range(16):
    for hh in range(2):
        g("ds_read_b64_tr_b16", vr(64 + 4 * t + 2 * hh, 2), "v16",
          mods=f"offset:{L_W1 + t * 1024 + hh * 32}")
g.wait(lgkm=0)
g("s_mov_b32", "s7", hex(WS_H))
full = (1 << 64) - 1
poll_gather([32, 36, 40, 44], ["v1"] * 4, "s7", [full] * 4, imm=[0, 1024, 2048, 3072])
stamp(7)
for b in range(2):
    g("v_readlane_b32", f"s{8 + b}", f"v{32 + 8 * b}", 0)
for b in range(2):
    for k in range(8):
        g("v_subrev_f32", f"v{16 + k}" if b == 0 else f"v{24 + k}", f"s{8 + b}", f"v{32 + 8 * b + k}")
for b in range(2):
    base = 16 + 8 * b
    s1, s2 = f"v{8 + 2 * b}", f"v{9 + 2 * b}"
    g("v_add_f32", s1, f"v{base}", f"v{base + 1}")
    g("v_mul_f32", s2, f"v{base}", f"v{base}")
    g("v_fmac_f32", s2, f"v{base + 1}", f"v{base + 1}")
    for k in range(2, 8):
        g("v_add_f32", s1, s1, f"v{base + k}")
        g("v_fmac_f32", s2, f"v{base + k}", f"v{base + k}")
wave_reduce("v_add_f32", ["v8", "v9", "v10", "v11"])
for k in range(4):
    g("v_readlane_b32", f"s{10 + k}", f"v{8 + k}", 63)
g("v_mov_b32", "v12", "0x3b000000")
for b in range(2):
    mu, va = f"v{8 + 2 * b}", f"v{9 + 2 * b}"
    g("v_mul_f32", mu, f"s{10 + 2 * b}", "v12")
    g("v_mul_f32", va, f"s{11 + 2 * b}", "v12")
    g("v_fma_f32", va, f"-{mu}", mu, va)
    g("v_add_f32", mu, f"s{8 + b}", mu)
    g("v_max_f32", va, 0, va)
    bf16r2(mu, va, "v13")
    g("v_add_f32", va, "0x3727c5ac", va)
    bf16r(va, va)
    g("v_sqrt_f32", va, va)
    bf16r(va, va)
    g("v_rcp_f32", va, va)
for b in range(2):
    mu, va = f"v{8 + 2 * b}", f"v{9 + 2 * b}"
    base = 32 + 8 * b
    for k in range(8):
        g("v_sub_f32", f"v{base + k}", f"v{base + k}", mu)
    for k in range(0, 8, 2):
        bf16r2(f"v{base + k}", f"v{base + k + 1}", "v13")
    for k in range(8):
        g("v_mul_f32", f"v{base + k}", f"v{base + k}", va)
    for k in range(0, 8, 2):
        g("v_cvt_pk_bf16_f32", f"v{16 + 4 * b + k // 2}", f"v{base + k}", f"v{base + k + 1}")
g("v_lshlrev_b32", "v12", 3, "v0")
for b in range(2):
    g("ds_write_b64", "v12", vr(16 + 4 * b, 2), mods=f"offset:{L_HN + b * 1024}")
    g("ds_write_b64", "v12", vr(18 + 4 * b, 2), mods=f"offset:{L_HN + b * 1024 + 512}")
g("v_and_b32", "v12", 1, "v0")
g("v_lshlrev_b32", "v12", 10, "v12")
g("v_lshrrev_b32", "v13", 4, "v0")
g("v_lshl_add_u32", "v12", "v13", 4, "v12")
g("v_and_b32", "v13", 15, "v0")
g("v_lshlrev_b32", "v13", 1, "v13")
g("s_lshl_b32", "s7", "s2", 5)
g("buffer_load_ushort", "v3", "v13", SRD_B1, "s7", mods="offen")
g.wait(lgkm=0)
for half in range(2):
    for tt in range(8):
        t = half * 8 + tt
        g("ds_read_b128", vr(16 + 4 * tt), "v12", mods=f"offset:{L_HN + t * 64}")
    for tt in range(8):
        t = half * 8 + tt
        g("v_mfma_f32_16x16x32_bf16", "v[8:11]", vr(16 + 4 * tt), vr(64 + 4 * t), "0" if t == 0 else "v[8:11]")
g("v_lshlrev_b32", "v3", 16, "v3")
bf16r2("v8", "v9", "v12")
g("v_add_f32", "v8", "v8", "v3")
g("v_add_f32", "v9", "v9", "v3")
bf16r2("v8", "v9", "v12")
import struct
def f32hex(x):
    return "0x%08x" % struct.unpack("<I", struct.pack("<f", x))[0]
K1 = -2.0 * 0.7978845608028654 * 1.4426950408889634
K3 = K1 * 0.044715
g("s_mov_b32", "s7", f32hex(K3))
g("v_mov_b32", "v14", f32hex(K1))
for z, t in (("v8", "v12"), ("v9", "v13")):
    g("v_mul_f32", t, z, z)
for z, t in (("v8", "v12"), ("v9", "v13")):
    g("v_fma_f32", t, t, "s7", "v14")
for z, t in (("v8", "v12"), ("v9", "v13")):
    g("v_mul_f32", t, t, z)
for z, t in (("v8", "v12"), ("v9", "v13")):
    g("v_exp_f32", t, t)
for z, t in (("v8", "v12"), ("v9", "v13")):
    g("v_add_f32", t, 1.0, t)
for z, t in (("v8", "v12"), ("v9", "v13")):
    g("v_rcp_f32", t, t)
for z, t in (("v8", "v12"), ("v9", "v13")):
    g("v_mul_f32", z, z, t)
for z in ("v8", "v9"):
    g("v_cvt_pk_bf16_f32", z, z, z)
g("v_and_b32", "v12", 3, "v0")
g("v_lshlrev_b32", "v12", 4, "v12")
g("v_bfe_u32", "v13", "v0", 2, 2)
g("v_lshl_add_u32", "v12", "v13", 2, "v12")
g("s_mov_b64", "exec", "0xffff")
g("ds_write_b32", "v12", "v8", mods=f"offset:{L_H1}")
g("ds_write_b32", "v12", "v9", mods=f"offset:{L_H1 + 64}")
g("s_mov_b64", "exec", -1)
g.wait(lgkm=0)
g.label("L_ffn2")
g.merge(st_ffn2)
g("v_bfe_u32", "v12", "v0", 3, 1)
g("v_lshlrev_b32", "v12", 6, "v12")
g("v_lshrrev_b32", "v13", 4, "v0")
g("v_lshl_add_u32", "v12", "v13", 4, "v12")
g("v_bfe_u32", "v20", "v0", 3, 1)
g("v_lshlrev_b32", "v20", 11, "v20")
g("v_lshl_add_u32", "v20", "v13", 7, "v20")
g("v_and_b32", "v21", 7, "v0")
g("v_lshl_add_u32", "v20", "v21", 4, "v20")
g("s_lshl_b32", "s7", "s2", 12)
g("s_sub_u32", "s8", S_WAVE, 4)
g("s_lshl_b32", "s8", "s8", 9)
g("s_add_u32", "s7", "s7", "s8")
g("s_add_u32", "s7", "s7", hex(WS_F))
g("s_barrier")
g("ds_read_b128", "v[16:19]", "v12", mods=f"offset:{L_H1}")
for i in range(4):
    bmask_mfma("v[12:15]", vr(48 + 4 * i), f"v{16 + i}", i == 0)
g("buffer_store_dwordx4", "v[12:15]", "v20", SRD_WS, "s7", mods="offen sc1")
stamp(8)
g("s_branch", "L_fin")

g.label("L_ystore")
g.restore(st_y)
g("s_lshl_b32", "s7", S_WAVE, 10)
g("v_add_u32", "v16", "s7", "v1")
for k in range(4):
    g("ds_read_b128", vr(32 + 4 * k), "v16", mods=f"offset:{L_YP + 2048 * k}")
for r in range(4):
    g("v_add_f32", f"v{32 + r}", f"v{32 + r}", f"v{36 + r}")
    g("v_add_f32", f"v{40 + r}", f"v{40 + r}", f"v{44 + r}")
for r in range(4):
    g("v_add_f32", f"v{32 + r}", f"v{32 + r}", f"v{40 + r}")
g("s_lshl_b32", "s7", S_B, 7)
g("s_lshl_b32", "s8", S_H, 2)
g("s_add_u32", "s7", "s7", "s8")
g("s_add_u32", "s7", "s7", S_SPL)
g("s_lshl_b32", "s7", "s7", 11)
g("s_add_u32", "s7", "s7", hex(WS_Y))
g("buffer_store_dwordx4", "v[32:35]", "v16", SRD_WS, "s7", mods="offen sc1")
stamp(5)
g("s_cmp_lg_u32", S_WAVE, 0)
g("s_cbranch_scc1", "L_fin")
g("s_lshr_b32", "s93", S_PI, 7)
g("s_and_b32", "s94", S_PI, 127)
g("s_lshr_b32", "s7", "s94", 3)
g("s_lshl_b32", "s7", "s7", 5)
g("s_and_b32", "s8", "s94", 7)
g("s_add_u32", "s7", "s7", "s8")
g("s_lshl_b32", "s95", "s7", 1)
g("v_and_b32", "v20", 3, "v0")
g("v_lshlrev_b32", "v20", 4, "v20")
g("buffer_load_ushort", "v22", "v20", SRD_B2, "s95", mods="offen")
g("s_lshl_b32", "s7", "s93", 10)
g("s_add_u32", "s95", "s95", "s7")
g("buffer_load_ushort", "v21", "v20", SRD_X, "s95", mods="offen")
g("v_lshlrev_b32", "v16", 11, "v0")
g("v_add_u32", "v17", 0x20000, "v16")
g("s_lshl_b32", "s7", "s93", 18)
g("s_lshl_b32", "s8", "s94", 4)
g("s_add_u32", "s7", "s7", "s8")
g("s_add_u32", "s7", "s7", hex(WS_Y))
poll_gather([32, 36], ["v16", "v17"], "s7", [full, full])
stamp(6)
for r in range(4):
    g("v_add_f32", f"v{32 + r}", f"v{32 + r}", f"v{36 + r}")
wave_reduce("v_add_f32", ["v32", "v33", "v34", "v35"])
for r in range(4):
    g("v_readlane_b32", f"s{8 + r}", f"v{32 + r}", 63)
for r in range(4):
    g("v_writelane_b32", "v24", f"s{8 + r}", r)
bf16r("v24", "v24")
g("v_lshlrev_b32", "v21", 16, "v21")
g("v_add_f32", "v24", "v24", "v21")
bf16r("v24", "v24")
g("v_lshlrev_b32", "v25", 2, "v0")
g("s_lshl_b32", "s7", S_PI, 4)
g("s_add_u32", "s7", "s7", hex(WS_H))
g("s_mov_b64", "exec", 15)
g("buffer_store_dword", "v24", "v25", SRD_WS, "s7", mods="offen sc1")
g("s_mov_b64", "exec", -1)
g("s_cmp_ge_u32", "s2", NFFN)
g("s_cbranch_scc1", "L_nobar3")
st_skip = g.save()
g("s_barrier")
g.label("L_nobar3")
g.merge(st_skip)
g("v_lshlrev_b32", "v16", 12, "v0")
g("v_add_u32", "v17", 0x40000, "v16")
for r in range(4):
    g("v_mov_b32", f"v{36 + r}", 0)
g("s_lshl_b32", "s7", S_PI, 4)
g("s_add_u32", "s7", "s7", hex(WS_F))
poll_gather([32, 36], ["v16", "v17"], "s7", [full, (1 << (NFFN - 64)) - 1])
for r in range(4):
    g("v_add_f32", f"v{32 + r}", f"v{32 + r}", f"v{36 + r}")
wave_reduce("v_add_f32", ["v32", "v33", "v34", "v35"])
for r in range(4):
    g("v_readlane_b32", f"s{8 + r}", f"v{32 + r}", 63)
for r in range(4):
    g("v_writelane_b32", "v26", f"s{8 + r}", r)
bf16r("v26", "v26")
g("v_lshlrev_b32", "v22", 16, "v22")
g("v_add_f32", "v26", "v26", "v22")
bf16r("v26", "v26")
g("v_add_f32", "v26", "v26", "v24")
g("v_cvt_pk_bf16_f32", "v26", "v26", "v26")
g("s_mov_b64", "exec", 15)
g("buffer_store_short", "v26", "v20", SRD_OUT, "s95", mods="offen")
g("s_mov_b64", "exec", -1)
stamp(9)

g.label("L_fin")
if CFG["diag"]:
    g.nop(8)
    g.wait(vm=0, lgkm=0)
    diag_store()
g.label("L_end")
g("s_endpgm")

hdr = open("cdna_kernels/" + NAME + ".s.ref").read().split("\n")
head = []
for line in hdr:
    if line.startswith("; @launch"):
        head.append(f"; @launch grid=(256,1,1) block=(1024,1,1) lds={LDS_BYTES}")
    elif line.startswith(";"):
        head.append(line)
    else:
        break
src = "\n".join(head) + "\n"
src += f""".amdgcn_target "amdgcn-amd-amdhsa--gfx950"
.text
.globl {NAME}_kernel
.p2align 8
.type {NAME}_kernel,@function
{NAME}_kernel:
"""
src += g.text()
src += f""".section .rodata,"a"
.p2align 6
.amdhsa_kernel {NAME}_kernel
  .amdhsa_next_free_vgpr 128
  .amdhsa_next_free_sgpr 102
  .amdhsa_accum_offset 128
  .amdhsa_group_segment_fixed_size 0
  .amdhsa_kernarg_size 104
  .amdhsa_user_sgpr_count 2
  .amdhsa_user_sgpr_kernarg_segment_ptr 1
  .amdhsa_system_sgpr_workgroup_id_x 1
.end_amdhsa_kernel
"""
open(sys.argv[1], "w").write(src)
print("instructions:", g.ninstr)
```

```python
import copy
import re

TRANS = ("v_exp_f32", "v_log_f32", "v_rcp_f32", "v_rsq_f32", "v_sqrt_f32", "v_sin_f32", "v_cos_f32")
NO_DST_SALU = ("s_cmp", "s_cbranch", "s_branch", "s_barrier", "s_waitcnt", "s_nop", "s_sleep",
               "s_setprio", "s_endpgm", "s_bitcmp")


def parse_regs(op):
    op = op.strip()
    if op.startswith("-"):
        op = op[1:]
    m = re.fullmatch(r"abs\((.*)\)", op)
    if m:
        op = m.group(1)
    m = re.fullmatch(r"\|(.*)\|", op)
    if m:
        op = m.group(1)
    m = re.fullmatch(r"([vsa])(\d+)", op)
    if m:
        return {(m.group(1), int(m.group(2)))}
    m = re.fullmatch(r"([vsa])\[(\d+):(\d+)\]", op)
    if m:
        return {(m.group(1), i) for i in range(int(m.group(2)), int(m.group(3)) + 1)}
    if op in ("vcc", "vcc_lo", "vcc_hi"):
        return {("s", "vcc")}
    if op in ("exec", "exec_lo", "exec_hi"):
        return {("x", "exec")}
    if op == "m0":
        return {("x", "m0")}
    return set()


class Ins:
    __slots__ = ("op", "reads", "writes", "valu", "trans", "dot", "mfma", "salu", "vmem", "ds",
                 "dpp", "dma", "srcAB", "srcC", "store_data", "wide", "states", "lanesel", "perm",
                 "rdlane")

    def __init__(self):
        self.op = ""
        self.reads = set()
        self.writes = set()
        self.valu = self.trans = self.dot = self.mfma = self.salu = self.vmem = self.ds = False
        self.dpp = self.dma = self.wide = self.perm = self.rdlane = False
        self.srcAB = set()
        self.srcC = set()
        self.store_data = set()
        self.states = 1
        self.lanesel = set()


def classify(op, ops, mods):
    i = Ins()
    i.op = op
    R = [parse_regs(o) for o in ops]
    allr = lambda idx: set().union(*[R[k] for k in idx]) if idx else set()
    n = len(ops)
    if op.startswith("v_mfma"):
        i.mfma = True
        i.writes = R[0]
        i.srcAB = R[1] | R[2]
        i.srcC = R[3]
        i.reads = i.srcAB | i.srcC
    elif op.startswith("v_"):
        i.valu = True
        base = op.replace("_dpp", "").replace("_e32", "").replace("_e64", "")
        i.trans = base in TRANS
        i.dot = base.startswith("v_dot")
        i.dpp = op.endswith("_dpp") or any(k in mods for k in ("row_", "quad_perm", "wave_"))
        if base.startswith("v_permlane"):
            i.perm = True
            i.writes = R[0] | R[1]
            i.reads = R[0] | R[1]
        elif "_co_" in base:
            i.writes = R[0] | R[1]
            i.reads = allr(range(2, n))
        else:
            i.writes = R[0]
            i.reads = allr(range(1, n))
            if base in ("v_fmac_f32", "v_dot2c_f32_bf16", "v_writelane_b32") or i.dpp:
                i.reads |= R[0]
        if base in ("v_readlane_b32", "v_readfirstlane_b32"):
            i.rdlane = True
            if base == "v_readlane_b32":
                i.lanesel = R[2]
        if base == "v_writelane_b32":
            i.lanesel = R[2]
        if i.dot:
            i.srcAB = R[1] | R[2]
            i.srcC = R[3] if n > 3 else R[0]
    elif op.startswith("buffer_") or op.startswith("global_"):
        i.vmem = True
        if "_load" in op:
            if re.search(r"\blds\b", mods) or "_lds_" in op:
                i.dma = True
                i.reads = allr(range(0, n)) | {("x", "m0")}
            else:
                i.writes = R[0]
                i.reads = allr(range(1, n))
                if "d16" in op:
                    i.reads |= R[0]
        elif "_store" in op or "_atomic" in op:
            i.reads = allr(range(0, n))
            if op.startswith("buffer_"):
                i.store_data = R[0]
            else:
                i.store_data = R[1]
            i.wide = len(i.store_data) > 2
        else:
            pass
    elif op.startswith("ds_"):
        i.ds = True
        if op.startswith("ds_read") or "_rtn" in op or "permute" in op or "swizzle" in op:
            i.writes = R[0]
            i.reads = allr(range(1, n))
        else:
            i.reads = allr(range(0, n))
    elif op.startswith("s_"):
        i.salu = True
        if op.startswith(NO_DST_SALU):
            i.reads = allr(range(0, n))
        else:
            i.writes = R[0] if n else set()
            i.reads = allr(range(1, n))
            if "saveexec" in op:
                i.writes |= {("x", "exec")}
                i.reads |= {("x", "exec")}
        if op == "s_nop":
            i.states = int(ops[0]) + 1
    else:
        raise ValueError("unknown op " + op)
    return i


def need(p, c):
    n = 0
    if p.valu:
        vw = {r for r in p.writes if r[0] == "v"}
        sw = {r for r in p.writes if r[0] == "s"}
        if vw:
            if c.dpp and (vw & c.reads):
                n = max(n, 2)
            if c.rdlane and (vw & c.reads):
                n = max(n, 1)
            if c.mfma and (vw & c.reads):
                n = max(n, 2)
            if c.perm and (vw & c.reads):
                n = max(n, 2)
            if p.trans and (c.valu or c.mfma) and (vw & (c.reads | c.writes)):
                n = max(n, 1)
            if p.dot:
                if c.dot and c.op == p.op and not (vw & c.srcAB):
                    pass
                elif vw & (c.reads | c.writes):
                    n = max(n, 3)
        if sw:
            if (c.valu or c.mfma) and (sw & c.reads):
                n = max(n, 2)
            if c.lanesel & sw:
                n = max(n, 4)
            if c.vmem and (sw & c.reads):
                n = max(n, 5)
    if p.mfma:
        D = p.writes
        if c.mfma:
            if D & c.srcAB:
                n = max(n, 8)
            if D & c.srcC:
                n = max(n, 0 if (c.srcC == D) else 6)
            elif D & c.writes:
                n = max(n, 8)
        else:
            if D & (c.reads | c.writes):
                n = max(n, 8)
        if c.valu and (p.srcC & c.writes):
            n = max(n, 3)
    if p.vmem and p.wide and (p.store_data & c.writes):
        n = max(n, 2)
    if p.salu and ("x", "m0") in p.writes and c.dma:
        n = max(n, 1)
    return n


WINDOW = 12


class Gen:
    def __init__(self):
        self.out = []
        self.hists = [[]]
        self.vm = {}
        self.lg = {}
        self.smem = set()
        self.uid = 0
        self.lab = 0
        self.ninstr = 0
        self.dry_guard = False

    def save(self):
        return (copy.deepcopy(self.hists), copy.deepcopy(self.vm), copy.deepcopy(self.lg), set(self.smem))

    def restore(self, st):
        self.hists, self.vm, self.lg, self.smem = (copy.deepcopy(st[0]), copy.deepcopy(st[1]),
                                                   copy.deepcopy(st[2]), set(st[3]))

    def merge(self, st):
        self.hists = self.hists + copy.deepcopy(st[0])
        for mine, other in ((self.vm, st[1]), (self.lg, st[2])):
            for k, v in other.items():
                if k in mine:
                    mine[k][0] = min(mine[k][0], v[0])
                else:
                    mine[k] = copy.deepcopy(v)
        self.smem |= st[3]

    def newlabel(self, base="L"):
        self.lab += 1
        return f"{base}_{self.lab}"

    def label(self, name):
        self.out.append(f"{name}:")

    def comment(self, s):
        self.out.append(f"    ; {s}")

    def raw(self, s):
        self.out.append(s)

    def _push(self, ins, text):
        self.out.append("    " + text)
        self.ninstr += 1
        for h in self.hists:
            h.append(ins)
            if len(h) > WINDOW:
                del h[0]
        if len(self.hists) > 1:
            uniq = []
            for h in self.hists:
                if not any(len(u) == len(h) and all(a is b for a, b in zip(u, h)) for u in uniq):
                    uniq.append(h)
            self.hists = uniq

    def _pad_for(self, c):
        worst = 0
        for h in self.hists:
            dist = 0
            for p in reversed(h):
                nd = need(p, c)
                if nd > dist:
                    worst = max(worst, nd - dist)
                dist += p.states
        return worst

    def nop(self, states):
        while states > 0:
            k = min(states, 16)
            ins = classify("s_nop", [str(k - 1)], "")
            self._push(ins, f"s_nop {k - 1}")
            states -= k

    def wait(self, vm=None, lgkm=None):
        parts = []
        if vm is not None:
            vm = min(vm, 63)
            parts.append(f"vmcnt({vm})")
            self.vm = {k: v for k, v in self.vm.items() if v[0] < vm}
        if lgkm is not None:
            lgkm = min(lgkm, 15)
            parts.append(f"lgkmcnt({lgkm})")
            self.lg = {k: v for k, v in self.lg.items() if v[0] < lgkm}
            if lgkm == 0:
                self.smem = set()
        ins = classify("s_waitcnt", [], "")
        if self.dry_guard and vm is not None:
            lab = self.newlabel("Lw")
            self._push(classify("s_cbranch_execz", [lab], ""), f"s_cbranch_execz {lab}")
            self._push(ins, "s_waitcnt " + " ".join(parts))
            self.label(lab)
        else:
            self._push(ins, "s_waitcnt " + " ".join(parts))

    def flush_hazards(self):
        worst = 0
        for h in self.hists:
            dist = 0
            for p in reversed(h):
                nd = 0
                if p.mfma:
                    nd = 8
                elif p.valu:
                    nd = 2
                    if p.dot:
                        nd = 3
                    if any(r[0] == "s" for r in p.writes):
                        nd = 5
                elif p.vmem and p.wide:
                    nd = 2
                elif p.salu and ("x", "m0") in p.writes:
                    nd = 1
                if nd > dist:
                    worst = max(worst, nd - dist)
                dist += p.states
        self.nop(worst)

    def __call__(self, op, *ops, mods=""):
        ops = [str(o) for o in ops]
        c = classify(op, ops, mods)
        touched = c.reads | c.writes
        wv = None
        for k, v in self.vm.items():
            if v[1] & touched:
                wv = v[0] if wv is None else min(wv, v[0])
        wl = None
        for k, v in self.lg.items():
            if v[1] & touched:
                wl = v[0] if wl is None else min(wl, v[0])
        if self.smem & touched:
            wl = 0
        if wl is not None:
            if self.smem:
                wl = 0
            wl = min(wl, 14)
        if wv is not None or wl is not None:
            self.wait(vm=wv, lgkm=wl)
        pad = self._pad_for(c)
        if pad:
            self.nop(pad)
        text = op
        if ops:
            text += " " + ", ".join(ops)
        if mods:
            text += " " + mods
        self._push(c, text)
        if c.vmem:
            for v in self.vm.values():
                v[0] += 1
            self.uid += 1
            self.vm[self.uid] = [0, set(c.writes)]
            assert len(self.vm) <= 63, "too many outstanding vmem"
        elif c.ds:
            for v in self.lg.values():
                v[0] += 1
            self.uid += 1
            self.lg[self.uid] = [0, set(c.writes)]
        elif op.startswith("s_load") or op.startswith("s_memtime") or op.startswith("s_memrealtime"):
            self.smem |= c.writes
        return self.uid

    def vm_younger(self, uid):
        return self.vm[uid][0] if uid in self.vm else None

    def text(self):
        return "\n".join(self.out) + "\n"
```

```python
import sys
import struct
from asmgen import Gen

NAME = "sequential_preLN__mha_block_cached__dense_activation_gelu__decode"

CFG = dict(
    kv_mods="nt", w_mods="nt", diag=0, spin_limit=200000,
    D=2,
    DW=0,
    wo0=5,
    stpos=9,
    stuse=13,
    b1pos="K4",
    drypos="K7",
    gpos="K11",
    qbar="K13",
    qx=1,
    dry=0,
    hsh=4,
    sleep=0,
    sleep1=0,
    athr=6,
    asleep=12,
    rep=1,
)
for a in sys.argv[2:]:
    k, v = a.split("=", 1)
    if isinstance(CFG[k], int):
        v = int(v)
    CFG[k] = v

NFFN = 86
WS_ST = 0x0
WS_H = 0x1c0000
WS_Y = 0x10000
WS_F = 0x100000
WS_QP = 0x180000
WS_DIAG = 0x200000
WS_SIZE = 0x400000
PSTR = 80
L_PART = 0
L_QB = 20480
L_YP = 20736
L_HN = 28928
L_H1 = 30976
L_W1 = 31744
LDS_BYTES = 48128

S_WAVE, S_H, S_B, S_SPL = "s3", "s4", "s5", "s6"
SRD_K, SRD_V, SRD_WQ, SRD_WO = "s[44:47]", "s[48:51]", "s[52:55]", "s[56:59]"
SRD_X, SRD_WS, SRD_DBG, SRD_W1 = "s[60:63]", "s[64:67]", "s[68:71]", "s[72:75]"
SRD_W2, SRD_B1, SRD_B2, SRD_OUT = "s[76:79]", "s[80:83]", "s[84:87]", "s[88:91]"
S_KV, S_T, S_WO, S_M, S_BH, S_PI = "s92", "s93", "s94", "s95", "s96", "s97"
LIVE = "s[98:99]"
S_LOG2E, S_SCALE = "s42", "s43"
T = [f"s{16 + i}" for i in range(14)]
S_IT = "s29"
STAMP0 = 30
DPPF = "row_mask:0xf bank_mask:0xf"
full = (1 << 64) - 1


def vr(a, n=4):
    return f"v[{a}:{a + n - 1}]"


def f32hex(x):
    return "0x%08x" % struct.unpack("<I", struct.pack("<f", x))[0]


g = Gen()


def stamp(slot):
    if not CFG["diag"]:
        return
    lab = None
    if g.dry_guard:
        lab = g.newlabel("Lst")
        g("s_cbranch_execz", lab)
    g("s_memrealtime", "s[100:101]")
    g.wait(lgkm=0)
    g("s_mov_b32", f"s{STAMP0 + slot}", "s100")
    if lab:
        g.label(lab)


def srd(dst_base, ptr_lo, nbytes):
    g("s_mov_b32", f"s{dst_base}", f"s{ptr_lo}")
    g("s_and_b32", f"s{dst_base + 1}", f"s{ptr_lo + 1}", "0xffff")
    g("s_mov_b32", f"s{dst_base + 2}", hex(nbytes))
    g("s_mov_b32", f"s{dst_base + 3}", "0x00020000")


def setexec(m):
    if g.dry_guard:
        if m == -1:
            g("s_mov_b64", "exec", LIVE)
        else:
            g("s_and_b64", "exec", LIVE, m)
    else:
        g("s_mov_b64", "exec", m)


def barrier():
    if g.dry_guard:
        lab = g.newlabel("Lb")
        g("s_cbranch_execz", lab)
        g("s_barrier")
        g.label(lab)
    else:
        g("s_barrier")


def seg_end():
    g("s_cbranch_execz", "L_dryret")


def wave_reduce(op, regs):
    for sh in (8, 4, 2, 1):
        for r in regs:
            g(op + "_dpp", r, r, r, mods=f"row_ror:{sh} {DPPF}")
    for r in regs:
        g(op + "_dpp", r, r, r, mods="row_bcast:15 row_mask:0xa bank_mask:0xf")
    for r in regs:
        g(op + "_dpp", r, r, r, mods="row_bcast:31 row_mask:0xc bank_mask:0xf")


def bf16r(dst, src, tmp=None):
    t = tmp or dst
    g("v_cvt_pk_bf16_f32", t, src, src)
    g("v_and_b32", dst, "0xffff0000", t)


def bf16r2(a, b, tmp):
    g("v_cvt_pk_bf16_f32", tmp, a, b)
    g("v_lshlrev_b32", a, 16, tmp)
    g("v_and_b32", b, "0xffff0000", tmp)


def unpack(dlo, dhi, src):
    g("v_lshlrev_b32", dlo, 16, src)
    g("v_and_b32", dhi, "0xffff0000", src)


def tree_sum(regs, op="v_add_f32"):
    regs = list(regs)
    while len(regs) > 1:
        nxt = []
        for i in range(0, len(regs) - 1, 2):
            g(op, regs[i], regs[i], regs[i + 1])
            nxt.append(regs[i])
        if len(regs) % 2:
            nxt.append(regs[-1])
        regs = nxt
    return regs[0]


def bmask_mfma(D, A, val, first, bcast=None):
    for r in range(4):
        if bcast is None:
            g("v_and_b32", f"v{8 + r}", val, f"v{4 + r}")
        else:
            g("v_and_b32_dpp", f"v{8 + r}", val, f"v{4 + r}", mods=f"row_newbcast:{bcast} {DPPF}")
    g("v_mfma_f32_16x16x32_bf16", D, A, "v[8:11]", "0" if first else D)


def poll_one(voff, soff, lane_mask, imm=0):
    g("s_and_b64", "exec", LIVE, hex(lane_mask))
    g("s_mov_b32", S_IT, 0)
    g.flush_hazards()
    L = g.newlabel("Lp1")
    Ld = g.newlabel("Lp1done")
    g("s_cbranch_execz", Ld)
    g.label(L)
    g("buffer_load_dword", "v31", voff, SRD_WS, soff, mods=(f"offen offset:{imm + 12} sc1"))
    sv = g.dry_guard
    g.dry_guard = False
    g.wait(vm=0)
    g.dry_guard = sv
    g("v_cmp_eq_u32", "vcc", -1, "v31")
    g("s_add_u32", S_IT, S_IT, 1)
    g("s_cmp_eq_u64", "vcc", 0)
    g("s_cbranch_scc1", Ld)
    g("s_cmp_lt_u32", S_IT, CFG["spin_limit"])
    if CFG["sleep1"]:
        g("s_sleep", CFG["sleep1"])
    g("s_cbranch_scc1", L)
    g.label(Ld)
    g("s_mov_b64", "exec", LIVE)


def poll_gather(dsts, voffs, soff, masks, imm=None, adaptive=False):
    pend = [f"s[{16 + 2 * k}:{17 + 2 * k}]" for k in range(len(dsts))]
    for k, m in enumerate(masks):
        if m == full:
            g("s_mov_b64", pend[k], LIVE)
        else:
            assert m < (1 << 31)
            g("s_and_b64", pend[k], LIVE, hex(m))
    g("s_mov_b32", S_IT, 0)
    g.flush_hazards()
    L = g.newlabel("Lpoll")
    Ld = g.newlabel("Lpolldone")
    g.label(L)
    for k, d in enumerate(dsts):
        g("s_mov_b64", "exec", pend[k])
        mods = "offen sc1"
        if imm and imm[k]:
            mods = f"offen offset:{imm[k]} sc1"
        g("buffer_load_dwordx4", vr(d), voffs[k], SRD_WS, soff, mods=mods)
    g("s_mov_b64", "exec", LIVE)
    g.wait(vm=0)
    for k, d in enumerate(dsts):
        g("s_mov_b64", "exec", pend[k])
        g("v_max3_u32", "v31", f"v{d}", f"v{d + 1}", f"v{d + 2}")
        g("v_max_u32", "v31", "v31", f"v{d + 3}")
        g("v_cmp_eq_u32", pend[k], -1, "v31")
    if len(dsts) == 1:
        g("s_or_b64", "s[100:101]", pend[0], pend[0])
    else:
        g("s_or_b64", "s[100:101]", pend[0], pend[1])
        for k in range(2, len(dsts)):
            g("s_or_b64", "s[100:101]", "s[100:101]", pend[k])
    g("s_cbranch_scc0", Ld)
    g("s_add_u32", S_IT, S_IT, 1)
    g("s_cmp_lt_u32", S_IT, CFG["spin_limit"])
    g("s_cbranch_scc0", Ld)
    if adaptive:
        g("s_bcnt1_i32_b64", "s100", "s[100:101]")
        g("s_cmp_le_u32", "s100", CFG["athr"])
        g.flush_hazards()
        g("s_cbranch_scc1", L)
        g("s_sleep", CFG["asleep"])
    elif CFG["sleep"]:
        g("s_sleep", CFG["sleep"])
    g.flush_hazards()
    g("s_branch", L)
    g.label(Ld)
    g("s_mov_b64", "exec", LIVE)
    g.flush_hazards()


def diag_store():
    g("v_mov_b32", "v30", 0)
    for i in range(12):
        g("v_writelane_b32", "v30", f"s{STAMP0 + i}", i)
    g("s_lshl_b32", "s7", "s2", 4)
    g("s_add_u32", "s7", "s7", S_WAVE)
    g("s_lshl_b32", "s7", "s7", 6)
    g("s_add_u32", "s7", "s7", hex(WS_DIAG))
    g("v_lshlrev_b32", "v29", 2, "v0")
    g("s_mov_b64", "exec", "0xffff")
    g("buffer_store_dword", "v30", "v29", SRD_WS, "s7", mods="offen")


g("s_cmp_ge_u32", "s2", 256)
g("s_cbranch_scc1", "L_end")
g("s_load_dwordx16", "s[16:31]", "s[0:1]", 0)
g("s_load_dwordx8", "s[32:39]", "s[0:1]", 64)
g("s_load_dwordx2", "s[40:41]", "s[0:1]", 96)
g("v_readfirstlane_b32", S_WAVE, "v0")
g("v_and_b32", "v0", 63, "v0")
g("s_and_b32", "s7", "s2", 7)
g("s_lshr_b32", "s8", "s2", 3)
g("s_and_b32", "s9", "s8", 3)
g("s_lshl_b32", S_H, "s7", 2)
g("s_add_u32", S_H, S_H, "s9")
g("s_lshl_b32", S_PI, "s7", 5)
g("s_add_u32", S_PI, S_PI, "s8")
g("s_lshr_b32", "s13", "s8", 2)
g("s_lshr_b32", S_B, "s13", 2)
g("s_and_b32", S_SPL, "s13", 3)
g("s_lshr_b32", S_WAVE, S_WAVE, 6)
g("v_lshlrev_b32", "v1", 4, "v0")
g("v_lshrrev_b32", "v3", 4, "v0")
g("v_and_b32", "v2", 15, "v0")
g("v_lshlrev_b32", "v2", 4, "v2")
g("v_lshl_add_u32", "v2", "v3", 13, "v2")
g("v_lshlrev_b32", "v3", 1, "v3")
g("v_bfe_u32", "v8", "v0", 3, 1)
g("v_lshl_add_u32", "v3", "v8", 10, "v3")
g("s_lshl_b32", S_BH, S_B, 5)
g("s_add_u32", S_BH, S_BH, S_H)
g("s_lshl_b32", S_KV, S_BH, 20)
g("s_lshl_b32", "s7", S_SPL, 18)
g("s_add_u32", S_KV, S_KV, "s7")
g("s_lshl_b32", "s7", S_WAVE, 10)
g("s_add_u32", S_KV, S_KV, "s7")
g("s_lshl_b32", "s11", "s13", 4)
g("s_add_u32", "s11", "s11", S_WAVE)
g("s_lshl_b32", "s12", "s11", 15)
g("s_lshl_b32", "s7", S_H, 8)
g("s_add_u32", "s12", "s12", "s7")
g("s_lshl_b32", "s11", "s11", 3)
g.wait(lgkm=0)
srd(44, 18, 2 * 32 * 4096 * 128 * 2)
srd(60, 16, 2048)
srd(52, 22, 512 * 4096 * 2)
srd(64, 40, WS_SIZE)

kvm = CFG["kv_mods"]
wm = CFG["w_mods"]


def vreg(i):
    return 32 + 4 * i if i < 8 else 64 + 4 * (i - 8)


def kv_load(dst, srd_, i):
    g("s_add_u32", S_T, S_KV, i * 16384)
    g("buffer_load_dwordx4", vr(dst), "v1", srd_, S_T, mods=f"offen {kvm}".strip())


def wo_load(i):
    g("s_add_u32", S_T, S_WO, i // 4 * 4096)
    off = (i % 4) * 1024
    g("buffer_load_dwordx4", vr(96 + 4 * i), "v2", SRD_WO, S_T,
      mods=(f"offen offset:{off} {wm}" if off else f"offen {wm}").strip())


def st_load():
    g("v_lshlrev_b32", "v3", 3, "v0")
    g("s_lshl_b32", "s7", S_BH, 9)
    g("buffer_load_dwordx2", "v[32:33]", "v3", SRD_WS, "s7", mods="offen sc1")


D = CFG["D"]
stream = []
for i in range(16):
    stream.append((f"K{i}", None, (lambda i=i: kv_load(64 + 4 * i, SRD_K, i)), D))
nwo = 0
for i in range(16):
    dd = D + (CFG["DW"] if (CFG["wo0"] < i <= CFG["wo0"] + 9) else 0)
    if i == CFG["stpos"]:
        stream.append(("ST", "PV0", st_load, 99))
    stream.append((f"V{i}", "QDONE" if i < 8 else f"K{i - 8}", (lambda i=i: kv_load(vreg(i), SRD_V, i)), dd))
    if i >= CFG["wo0"] and nwo < 8:
        stream.append((f"WO{nwo}", f"K{8 + nwo}", (lambda i=nwo: wo_load(i)), D + CFG["DW"]))
        nwo += 1
while nwo < 8:
    stream.append((f"WO{nwo}", f"K{8 + nwo}", (lambda i=nwo: wo_load(i)), D + CFG["DW"]))
    nwo += 1
freed = set()
spos = [0]
issued = set()
heavy = set()


def pump(n=1, pace=True, until=None):
    cnt = 0
    while spos[0] < len(stream):
        if until is not None:
            if until in issued:
                return
        elif cnt >= n:
            return
        name, pre, fn, dd = stream[spos[0]]
        if pre is not None and pre not in freed:
            if until is not None:
                raise RuntimeError(f"blocked at {name} needs {pre}")
            return
        if pace:
            hv = 0
            for uid, ent in sorted(g.vm.items(), key=lambda kv: kv[1][0]):
                if uid in heavy:
                    hv += 1
                    if hv == dd:
                        g.wait(vm=ent[0])
                        break
        fn()
        if name[0] in "KVW":
            heavy.add(g.uid)
        issued.add(name)
        spos[0] += 1
        cnt += 1


pump(1, pace=False)
g("buffer_load_dwordx4", "v[24:27]", "v1", SRD_X, 0, mods="offen")
g("buffer_load_dwordx4", "v[28:31]", "v1", SRD_X, 0, mods="offen offset:1024")
g("buffer_load_ushort", "v3", "v3", SRD_X, "s11", mods="offen")
g("buffer_load_dwordx4", "v[60:63]", "v2", SRD_WQ, "s12", mods=f"offen {wm}".strip())
pump(D - 1, pace=False)

if CFG["diag"]:
    g("s_memrealtime", "s[100:101]")
    g.wait(lgkm=0)
    g("s_mov_b32", "s15", "s100")

g("s_cmp_lg_u32", S_WAVE, 0)
g("s_cbranch_scc1", "L_noclear")
st_skip = g.save()
for r in range(4):
    g("v_mov_b32", f"v{8 + r}", -1)
g("s_lshl_b32", "s7", S_B, 7)
g("s_lshl_b32", "s8", S_H, 2)
g("s_add_u32", "s7", "s7", "s8")
g("s_add_u32", "s7", "s7", S_SPL)
g("s_lshl_b32", "s7", "s7", 11)
g("s_add_u32", "s7", "s7", hex(WS_Y))
g("buffer_store_dwordx4", "v[8:11]", "v1", SRD_WS, "s7", mods="offen sc1")
g("buffer_store_dwordx4", "v[8:11]", "v1", SRD_WS, "s7", mods="offen offset:1024 sc1")
g("s_lshl_b32", "s7", S_BH, 9)
g("s_lshl_b32", "s8", S_SPL, 7)
g("s_add_u32", "s7", "s7", "s8")
g("s_mov_b64", "exec", "0xff")
g("buffer_store_dwordx4", "v[8:11]", "v1", SRD_WS, "s7", mods="offen sc1")
g("s_lshl_b32", "s7", S_PI, CFG["hsh"])
g("s_add_u32", "s7", "s7", hex(WS_H))
g("s_mov_b64", "exec", 1)
g("buffer_store_dwordx4", "v[8:11]", "v1", SRD_WS, "s7", mods="offen sc1")
g("s_mov_b64", "exec", -1)
g("s_cmp_ge_u32", "s2", NFFN)
g("s_cbranch_scc1", "L_noclear")
st_skip2 = g.save()
g("s_lshl_b32", "s7", "s2", 12)
g("s_add_u32", "s7", "s7", hex(WS_F))
for k in range(4):
    g("buffer_store_dwordx4", "v[8:11]", "v1", SRD_WS, "s7",
      mods=f"offen offset:{k * 1024} sc1" if k else "offen sc1")
g.label("L_noclear")
g.merge(st_skip)
g.merge(st_skip2)

srd(48, 20, 2 * 32 * 4096 * 128 * 2)
srd(56, 24, 4096 * 512 * 2)
srd(68, 38, 256)
srd(72, 28, 512 * 1376 * 2)
srd(76, 32, 1376 * 512 * 2)
srd(80, 30, 1376 * 2)
srd(84, 34, 512 * 2)
srd(88, 36, 2048)
if CFG["diag"]:
    g("s_mov_b32", f"s{STAMP0}", "s15")
    for i in range(1, 12):
        g("s_mov_b32", f"s{STAMP0 + i}", 0)
g("s_mov_b64", LIVE, -1)
g("s_mov_b32", S_LOG2E, "0x3fb8aa3b")
g("s_mov_b32", S_SCALE, "0x3db504f3")
g("s_lshl_b32", S_WO, S_H, 17)
g("s_lshr_b32", "s7", S_WAVE, 2)
g("s_lshl_b32", "s7", "s7", 15)
g("s_add_u32", S_WO, S_WO, "s7")
g("s_and_b32", "s7", S_WAVE, 3)
g("s_lshl_b32", "s7", "s7", 8)
g("s_add_u32", S_WO, S_WO, "s7")
for r in (20, 21, 22):
    g("v_mov_b32", f"v{r}", 0)
g("v_and_b32", "v12", 1, "v0")
g("v_lshlrev_b32", "v12", 4, "v12")
g("v_mov_b32", "v13", "0xffff")
g("v_lshlrev_b32", "v13", "v12", "v13")
g("v_bfe_u32", "v12", "v0", 1, 2)
for r in range(4):
    g("v_cmp_eq_u32", "vcc", r, "v12")
    g("v_cndmask_b32", f"v{4 + r}", 0, "v13", "vcc")

for b in range(2):
    for k in range(4):
        unpack(f"v{32 + 8 * b + 2 * k}", f"v{33 + 8 * b + 2 * k}", f"v{24 + 4 * b + k}")
for b in range(2):
    base = 32 + 8 * b
    g("v_add_f32", f"v{8 + b}", f"v{base}", f"v{base + 1}")
    g("v_add_f32", f"v{10 + b}", f"v{base + 2}", f"v{base + 3}")
    g("v_add_f32", f"v{12 + b}", f"v{base + 4}", f"v{base + 5}")
    g("v_add_f32", f"v{14 + b}", f"v{base + 6}", f"v{base + 7}")
for b in range(2):
    g("v_add_f32", f"v{8 + b}", f"v{8 + b}", f"v{10 + b}")
    g("v_add_f32", f"v{12 + b}", f"v{12 + b}", f"v{14 + b}")
for b in range(2):
    g("v_add_f32", f"v{8 + b}", f"v{8 + b}", f"v{12 + b}")
wave_reduce("v_add_f32", ["v8", "v9"])
g("v_readlane_b32", "s7", "v8", 63)
g("v_readlane_b32", "s8", "v9", 63)
pump(1)
g("v_mov_b32", "v12", "0x3b000000")
g("v_mul_f32", "v16", "s7", "v12")
g("v_mul_f32", "v17", "s8", "v12")
for b in range(2):
    for k in range(8):
        g("v_sub_f32", f"v{32 + 8 * b + k}", f"v{32 + 8 * b + k}", f"v{16 + b}")
for b in range(2):
    g("v_mul_f32", f"v{8 + b}", f"v{32 + 8 * b}", f"v{32 + 8 * b}")
for k in range(1, 8):
    for b in range(2):
        g("v_fmac_f32", f"v{8 + b}", f"v{32 + 8 * b + k}", f"v{32 + 8 * b + k}")
wave_reduce("v_add_f32", ["v8", "v9"])
g("v_readlane_b32", "s7", "v8", 63)
g("v_readlane_b32", "s8", "v9", 63)
pump(1)
g("v_mul_f32", "v18", "s7", "v12")
g("v_mul_f32", "v19", "s8", "v12")
g("s_mov_b32", "s8", "0xff00ff00")
g("s_mov_b32", "s9", "0xff00ff00")
g("v_cndmask_b32", "v13", "v16", "v17", "s[8:9]")
g("v_cndmask_b32", "v14", "v18", "v19", "s[8:9]")
bf16r2("v13", "v14", "v15")
g("v_add_f32", "v14", "0x3727c5ac", "v14")
bf16r("v14", "v14")
g("v_sqrt_f32", "v14", "v14")
bf16r("v14", "v14")
g("v_rcp_f32", "v14", "v14")
g("v_lshlrev_b32", "v3", 16, "v3")
g("v_sub_f32", "v3", "v3", "v13")
bf16r("v3", "v3")
g("v_mul_f32", "v3", "v3", "v14")
g("v_cvt_pk_bf16_f32", "v16", "v3", "v3")
bmask_mfma("v[12:15]", "v[60:63]", "v16", True)
g("v_lshrrev_b32", "v16", 4, "v0")
g("v_and_b32", "v17", 7, "v0")
g("v_lshl_add_u32", "v16", "v16", 5, "v17")
g("v_bfe_u32", "v17", "v0", 3, 1)
g("v_lshl_add_u32", "v16", "v17", 7, "v16")
g("v_mul_u32_u24", "v16", PSTR, "v16")
g("s_lshl_b32", "s7", S_WAVE, 2)
g("v_add_u32", "v16", "s7", "v16")
for r in range(4):
    g("ds_write_b32", "v16", f"v{12 + r}", mods=f"offset:{L_PART + r * 8 * PSTR}")
pump(until=CFG["b1pos"])
pump(CFG["qx"], pace=False)
g.wait(lgkm=0)
g("s_barrier")
g("s_cmp_lg_u32", S_WAVE, 0)
g("s_cbranch_scc1", "L_nopub")
st_skip = g.save()
g("v_mul_u32_u24", "v16", 4 * PSTR, "v0")
for half in range(2):
    for oo in range(2):
        for k in range(4):
            g("ds_read_b128", vr(32 + 16 * oo + 4 * k), "v16",
              mods=f"offset:{L_PART + (2 * half + oo) * PSTR + 16 * k}")
    for oo in range(2):
        tree_sum([f"v{32 + 16 * oo + k}" for k in range(16)])
        g("v_mov_b32", f"v{12 + 2 * half + oo}", f"v{32 + 16 * oo}")
g("s_lshl_b32", "s7", S_H, 13)
g("s_lshl_b32", "s8", S_B, 12)
g("s_add_u32", "s7", "s7", "s8")
g("s_lshl_b32", "s8", S_SPL, 10)
g("s_add_u32", "s7", "s7", "s8")
g("s_add_u32", "s7", "s7", hex(WS_QP))
g("buffer_store_dwordx4", "v[12:15]", "v1", SRD_WS, "s7", mods="offen sc1")
g.wait(vm=0)
g("v_mov_b32", "v8", 1)
g("v_mov_b32", "v9", "s2")
g("s_mov_b64", "exec", 1)
g("buffer_store_byte", "v8", "v9", SRD_DBG, 0, mods="offen sc1")
g("s_mov_b64", "exec", -1)
g.label("L_nopub")
g.merge(st_skip)

pump(until=CFG["drypos"])
SEGS = ["A", "B", "C", "D", "E", "F", "G", "H", "I"]
if CFG["dry"]:
    pump(1, pace=False)
    g.flush_hazards()
    g("s_mov_b64", LIVE, 0)
    g("s_mov_b64", "exec", 0)
    for n, sg in enumerate(SEGS):
        g("s_cmp_eq_u32", S_WAVE, n + 1)
        g("s_cbranch_scc1", f"L_seg{sg}")
    g.label("L_dryret")
    g("s_mov_b64", LIVE, -1)
    g("s_mov_b64", "exec", -1)
    g.wait(lgkm=0)
    g.nop(10)

pump(until=CFG["gpos"])
g("s_cmp_lg_u32", S_WAVE, 0)
g("s_cbranch_scc1", "L_nogather")
st_skip = g.save()
g("s_mov_b32", S_IT, 0)
g.label("L_flagspin")
g("v_lshlrev_b32", "v16", 2, "v0")
g("buffer_load_dword", "v16", "v16", SRD_DBG, 0, mods="offen sc1")
g.wait(vm=0)
g("v_cmp_ne_u32", "vcc", "0x01010101", "v16")
g("s_cmp_eq_u64", "vcc", 0)
g("s_cbranch_scc1", "L_flagok")
g("s_add_u32", S_IT, S_IT, 1)
g("s_cmp_lt_u32", S_IT, CFG["spin_limit"])
g("s_sleep", 2)
g("s_cbranch_scc1", "L_flagspin")
g.label("L_flagok")
g("v_lshrrev_b32", "v16", 5, "v0")
g("v_and_b32", "v17", 31, "v0")
g("v_lshlrev_b32", "v17", 4, "v17")
g("v_lshl_add_u32", "v16", "v16", 10, "v17")
g("s_lshl_b32", "s7", S_H, 13)
g("s_lshl_b32", "s8", S_B, 9)
g("s_add_u32", "s7", "s7", "s8")
g("s_add_u32", "s7", "s7", hex(WS_QP))
for u in range(4):
    if u == 2:
        g("s_add_u32", "s7", "s7", 4096)
    off = (u % 2) * 2048
    g("buffer_load_dwordx4", vr(32 + 4 * u), "v16", SRD_WS, "s7",
      mods=f"offen offset:{off} sc1" if off else "offen sc1")
for r in range(4):
    g("v_add_f32", f"v{32 + r}", f"v{32 + r}", f"v{36 + r}")
    g("v_add_f32", f"v{40 + r}", f"v{40 + r}", f"v{44 + r}")
for r in range(4):
    g("v_add_f32", f"v{32 + r}", f"v{32 + r}", f"v{40 + r}")
for r in range(4):
    g("v_mov_b32", f"v{36 + r}", f"v{32 + r}")
for r in range(4):
    g("v_permlane32_swap_b32", f"v{32 + r}", f"v{36 + r}")
for r in range(4):
    g("v_add_f32", f"v{32 + r}", f"v{32 + r}", f"v{36 + r}")
g("v_cvt_pk_bf16_f32", "v12", "v32", "v33")
g("v_cvt_pk_bf16_f32", "v13", "v34", "v35")
g("v_lshrrev_b32", "v17", 1, "v17")
g("s_mov_b64", "exec", "0xffffffff")
g("ds_write_b64", "v17", "v[12:13]", mods=f"offset:{L_QB}")
g("s_mov_b64", "exec", -1)
g.label("L_nogather")
g.merge(st_skip)
freed.add("QDONE")
pump(until=CFG["qbar"])
pump(CFG["qx"], pace=False)
g.wait(lgkm=0)
g("s_barrier")
g("v_and_b32", "v12", 15, "v0")
g("v_lshlrev_b32", "v12", 4, "v12")
g("ds_read_b128", "v[8:11]", "v12", mods=f"offset:{L_QB}")
stamp(1)

for G in range(4):
    tgt = 4 * G + 3 + D
    nm = f"K{tgt}" if tgt < 16 else f"V{tgt - 16}"
    pump(until=nm)
    for step in range(4):
        for u in range(4):
            i = 4 * G + u
            g("v_dot2_f32_bf16", f"v{16 + i}", f"v{64 + 4 * i + step}", f"v{8 + step}",
              "0" if step == 0 else f"v{16 + i}")
    for u in range(4):
        freed.add(f"K{4 * G + u}")
    pump(1)
    for sh in (8, 4, 2, 1):
        for u in range(4):
            i = 4 * G + u
            g("v_add_f32_dpp", f"v{16 + i}", f"v{16 + i}", f"v{16 + i}", mods=f"row_ror:{sh} {DPPF}")
    for u in (0, 2):
        i = 4 * G + u
        bf16r2(f"v{16 + i}", f"v{17 + i}", f"v{12 + u}")
    for u in range(4):
        i = 4 * G + u
        g("v_mul_f32", f"v{16 + i}", S_SCALE, f"v{16 + i}")
    for u in (0, 2):
        i = 4 * G + u
        bf16r2(f"v{16 + i}", f"v{17 + i}", f"v{12 + u}")

pump(1)
g("v_max3_f32", "v12", "v16", "v17", "v18")
g("v_max3_f32", "v13", "v19", "v20", "v21")
g("v_max3_f32", "v14", "v22", "v23", "v24")
g("v_max3_f32", "v15", "v25", "v26", "v27")
g("v_max3_f32", "v12", "v12", "v28", "v29")
g("v_max3_f32", "v13", "v13", "v30", "v31")
g("v_max3_f32", "v12", "v12", "v13", "v14")
g("v_max_f32", "v12", "v12", "v15")
for k in range(4):
    g("v_readlane_b32", f"s{8 + k}", "v12", 16 * k)
g("v_mov_b32", "v12", "s8")
g("v_max_f32", "v12", "s9", "v12")
g("v_max_f32", "v12", "s10", "v12")
g("v_max_f32", "v12", "s11", "v12")
g("v_mul_f32", "v12", S_LOG2E, "v12")
for i in range(16):
    g("v_fma_f32", f"v{16 + i}", f"v{16 + i}", S_LOG2E, "-v12")
for i in range(16):
    g("v_exp_f32", f"v{16 + i}", f"v{16 + i}")
pump(1)
g("v_readfirstlane_b32", S_M, "v12")
g("v_add_f32", "v8", "v16", "v17")
g("v_add_f32", "v9", "v18", "v19")
g("v_add_f32", "v10", "v20", "v21")
g("v_add_f32", "v11", "v22", "v23")
g("v_add_f32", "v13", "v24", "v25")
g("v_add_f32", "v14", "v26", "v27")
g("v_add_f32", "v8", "v8", "v28")
g("v_add_f32", "v9", "v9", "v29")
g("v_add_f32", "v10", "v10", "v30")
g("v_add_f32", "v11", "v11", "v31")
tree_sum(["v8", "v9", "v10", "v11", "v13", "v14"])
for k in range(4):
    g("v_readlane_b32", f"s{8 + k}", "v8", 16 * k)
g("v_mov_b32", "v13", "s8")
g("v_add_f32", "v13", "s9", "v13")
g("v_add_f32", "v13", "s10", "v13")
g("v_add_f32", "v13", "s11", "v13")
g("s_lshl_b32", "s7", S_BH, 9)
g("s_lshl_b32", "s8", S_SPL, 7)
g("s_add_u32", "s7", "s7", "s8")
g("s_lshl_b32", "s8", S_WAVE, 3)
g("s_add_u32", "s7", "s7", "s8")
g("v_mov_b32", "v8", 0)
g("s_mov_b64", "exec", 1)
g("buffer_store_dwordx2", "v[12:13]", "v8", SRD_WS, "s7", mods="offen sc1")
g("s_mov_b64", "exec", -1)
for i in range(16):
    g("v_cvt_pk_bf16_f32", f"v{16 + i}", f"v{16 + i}", f"v{16 + i}")
stamp(2)


def factor():
    g("v_max_u32", "v34", "v32", "v33")
    g("v_cmp_eq_u32", "vcc", -1, "v34")
    g("s_cmp_eq_u64", "vcc", 0)
    g("s_cbranch_scc1", "L_stok")
    st_skip = g.save()
    g("s_mov_b32", S_IT, 0)
    g.label("L_stspin")
    g("s_lshl_b32", "s7", S_BH, 9)
    g("buffer_load_dwordx2", "v[32:33]", "v3", SRD_WS, "s7", mods="offen sc1")
    g.wait(vm=0)
    g("v_max_u32", "v34", "v32", "v33")
    g("v_cmp_eq_u32", "vcc", -1, "v34")
    g("s_cmp_eq_u64", "vcc", 0)
    g("s_cbranch_scc1", "L_stok")
    g("s_add_u32", S_IT, S_IT, 1)
    g("s_cmp_lt_u32", S_IT, CFG["spin_limit"])
    g("s_sleep", 1)
    g("s_cbranch_scc1", "L_stspin")
    g.label("L_stok")
    g.merge(st_skip)
    g("v_mov_b32", "v34", "v32")
    wave_reduce("v_max_f32", ["v34"])
    g("v_readlane_b32", "s7", "v34", 63)
    g("v_subrev_f32", "v34", "s7", "v32")
    g("v_exp_f32", "v34", "v34")
    g("v_mul_f32", "v34", "v34", "v33")
    wave_reduce("v_add_f32", ["v34"])
    g("v_readlane_b32", "s8", "v34", 63)
    g("v_mov_b32", "v35", "s7")
    g("v_sub_f32", "v35", S_M, "v35")
    g("v_exp_f32", "v35", "v35")
    g("v_rcp_f32", "v34", "s8")
    g("v_mul_f32", "v35", "v35", "v34")
    g("v_lshrrev_b32", "v39", 4, "v0")
    g("v_and_b32", "v37", 15, "v0")
    g("v_lshl_add_u32", "v36", "v39", 5, "v37")
    g("v_mul_u32_u24", "v36", PSTR, "v36")
    g("s_lshl_b32", "s7", S_WAVE, 2)
    g("v_add_u32", "v36", "s7", "v36")
    g("v_lshlrev_b32", "v38", 4, "v37")
    g("v_lshl_add_u32", "v38", "v39", 7, "v38")
    g("s_lshr_b32", "s7", S_WAVE, 2)
    g("s_lshl_b32", "s7", "s7", 11)
    g("s_and_b32", "s10", S_WAVE, 3)
    g("s_lshl_b32", "s10", "s10", 9)
    g("s_add_u32", "s7", "s7", "s10")
    g("v_add_u32", "v38", "s7", "v38")
    g("v_and_b32", "v37", 7, "v0")
    g("v_lshl_add_u32", "v37", "v39", 3, "v37")
    g("s_lshr_b32", "s7", S_WAVE, 2)
    g("s_lshl_b32", "s7", "s7", 5)
    g("v_add_u32", "v37", "s7", "v37")
    g("v_mul_u32_u24", "v37", PSTR, "v37")
    g("s_mov_b32", "s14", "0x00ff00ff")
    g("s_mov_b32", "s15", "0x00ff00ff")


for i in range(16):
    tgt = i + D
    if tgt < 16:
        pump(until=f"V{tgt}")
    else:
        pump(100)
    bmask_mfma("v[12:15]", vr(vreg(i)), f"v{16 + i}", i == 0)
    freed.add(f"PV{i}")
    if i == CFG["stuse"]:
        factor()
pump(100)
assert spos[0] == len(stream)
stamp(3)

g.dry_guard = True
g.label("L_segA")
for r in range(4):
    g("v_mul_f32", f"v{12 + r}", f"v{12 + r}", "v35")
setexec("s[14:15]")
for r in range(4):
    g("ds_write_b32", "v36", f"v{12 + r}", mods=f"offset:{L_PART + r * 8 * PSTR}")
setexec(-1)
g.wait(lgkm=0)
barrier()
stamp(4)
for k in range(4):
    g("ds_read_b128", vr(40 + 4 * k), "v37", mods=f"offset:{L_PART + 16 * k}")
tree_sum([f"v{40 + k}" for k in range(16)])
g("v_cvt_pk_bf16_f32", "v40", "v40", "v40")
seg_end()
g.label("L_segB")
for i in range(8):
    bmask_mfma("v[12:15]", vr(96 + 4 * i), "v40", i == 0, bcast=i)
setexec("s[14:15]")
g("ds_write_b128", "v38", "v[12:15]", mods=f"offset:{L_YP}")
setexec(-1)
g.wait(lgkm=0)
barrier()
seg_end()
g("s_cmp_lt_u32", S_WAVE, 2)
g("s_cbranch_scc1", "L_segG")
st_y = g.save()
g("s_cmp_ge_u32", "s2", NFFN)
g("s_cbranch_scc1", "L_fin")
g("s_cmp_lt_u32", S_WAVE, 4)
g("s_cbranch_scc1", "L_fin")
g("s_cmp_ge_u32", S_WAVE, 8)
g("s_cbranch_scc1", "L_fin")

g.label("L_segC")
g("v_lshrrev_b32", "v16", 4, "v0")
g("v_and_b32", "v17", 15, "v0")
g("v_lshlrev_b32", "v17", 4, "v17")
g("v_lshl_add_u32", "v17", "v16", 10, "v17")
g("s_lshl_b32", T[8], "s2", 14)
g("s_and_b32", T[9], S_WAVE, 3)
g("s_lshl_b32", T[9], T[9], 8)
g("s_add_u32", T[8], T[8], T[9])
for i in range(4):
    g("buffer_load_dwordx4", vr(48 + 4 * i), "v17", SRD_W2, T[8], mods="offen")
    if i < 3:
        g("s_add_u32", T[8], T[8], 4096)
g("s_cbranch_execz", "L_c2")
g("s_cmp_lg_u32", S_WAVE, 4)
g("s_cbranch_scc1", "L_segF")
st_ffn2 = g.save()
g.label("L_c2")
g("v_lshrrev_b32", "v16", 1, "v0")
g("s_movk_i32", T[8], 2752)
g("v_mul_lo_u32", "v16", "v16", T[8])
g("v_and_b32", "v17", 1, "v0")
g("v_lshl_add_u32", "v16", "v17", 4, "v16")
g("s_lshl_b32", T[8], "s2", 5)
g("s_mov_b32", T[9], L_W1)
for k in range(16):
    g("s_mov_b32", "m0", T[9])
    g("buffer_load_dwordx4", "v16", SRD_W1, T[8], mods="offen lds")
    if k < 15:
        g("s_add_u32", T[8], T[8], 32 * 2752)
        g("s_add_u32", T[9], T[9], 1024)
g("v_and_b32", "v13", 15, "v0")
g("v_lshlrev_b32", "v13", 1, "v13")
g("s_lshl_b32", T[8], "s2", 5)
g("buffer_load_ushort", "v3", "v13", SRD_B1, T[8], mods="offen")
g.wait(vm=0)
g("v_bfe_u32", "v16", "v0", 2, 2)
g("v_lshlrev_b32", "v16", 8, "v16")
g("v_lshrrev_b32", "v17", 4, "v0")
g("v_lshl_add_u32", "v16", "v17", 6, "v16")
g("v_and_b32", "v17", 3, "v0")
g("v_lshl_add_u32", "v16", "v17", 3, "v16")
g("s_cbranch_execz", "L_dryret")
for t in range(16):
    for hh in range(2):
        g("ds_read_b64_tr_b16", vr(64 + 4 * t + 2 * hh, 2), "v16",
          mods=f"offset:{L_W1 + t * 1024 + hh * 32}")
g("v_lshlrev_b32", "v3", 16, "v3")
g.wait(lgkm=0)
g.label("L_segD")
g("s_mov_b32", T[8], hex(WS_H))
for k in range(4):
    g("v_lshlrev_b32", f"v{24 + k}", CFG["hsh"], "v0")
    if k:
        g("v_add_u32", f"v{24 + k}", (64 * k) << CFG["hsh"], f"v{24 + k}")
if CFG["rep"]:
    poll_one("v26", T[8], 1 << 21)
poll_gather([32, 36, 40, 44], ["v24", "v25", "v26", "v27"], T[8], [full] * 4)
stamp(7)
for b in range(2):
    g("v_readlane_b32", T[b], f"v{32 + 8 * b}", 0)
for b in range(2):
    for k in range(8):
        g("v_subrev_f32", f"v{16 + 8 * b + k}", T[b], f"v{32 + 8 * b + k}")
for b in range(2):
    base = 16 + 8 * b
    s1, s2 = f"v{8 + 2 * b}", f"v{9 + 2 * b}"
    g("v_add_f32", s1, f"v{base}", f"v{base + 1}")
    g("v_mul_f32", s2, f"v{base}", f"v{base}")
    g("v_fmac_f32", s2, f"v{base + 1}", f"v{base + 1}")
for k in range(2, 8):
    for b in range(2):
        base = 16 + 8 * b
        s1, s2 = f"v{8 + 2 * b}", f"v{9 + 2 * b}"
        g("v_add_f32", s1, s1, f"v{base + k}")
        g("v_fmac_f32", s2, f"v{base + k}", f"v{base + k}")
wave_reduce("v_add_f32", ["v8", "v9", "v10", "v11"])
for k in range(4):
    g("v_readlane_b32", T[2 + k], f"v{8 + k}", 63)
g("v_mov_b32", "v12", "0x3b000000")
MU = ["v8", "v10"]
VA = ["v9", "v11"]
for b in range(2):
    g("v_mul_f32", MU[b], T[2 + 2 * b], "v12")
    g("v_mul_f32", VA[b], T[3 + 2 * b], "v12")
for b in range(2):
    g("v_fma_f32", VA[b], f"-{MU[b]}", MU[b], VA[b])
    g("v_add_f32", MU[b], T[b], MU[b])
for b in range(2):
    g("v_max_f32", VA[b], 0, VA[b])
for b in range(2):
    bf16r2(MU[b], VA[b], f"v{13 + b}")
for b in range(2):
    g("v_add_f32", VA[b], "0x3727c5ac", VA[b])
for b in range(2):
    bf16r(VA[b], VA[b])
for b in range(2):
    g("v_sqrt_f32", VA[b], VA[b])
for b in range(2):
    bf16r(VA[b], VA[b])
for b in range(2):
    g("v_rcp_f32", VA[b], VA[b])
for b in range(2):
    base = 32 + 8 * b
    for k in range(8):
        g("v_sub_f32", f"v{base + k}", f"v{base + k}", MU[b])
    for k in range(0, 8, 2):
        bf16r2(f"v{base + k}", f"v{base + k + 1}", f"v{13 + (k // 2) % 2}")
    for k in range(8):
        g("v_mul_f32", f"v{base + k}", f"v{base + k}", VA[b])
    for k in range(0, 8, 2):
        g("v_cvt_pk_bf16_f32", f"v{16 + 4 * b + k // 2}", f"v{base + k}", f"v{base + k + 1}")
g("v_lshlrev_b32", "v12", 3, "v0")
for b in range(2):
    g("ds_write_b64", "v12", vr(16 + 4 * b, 2), mods=f"offset:{L_HN + b * 1024}")
    g("ds_write_b64", "v12", vr(18 + 4 * b, 2), mods=f"offset:{L_HN + b * 1024 + 512}")
g("v_and_b32", "v12", 1, "v0")
g("v_lshlrev_b32", "v12", 10, "v12")
g("v_lshrrev_b32", "v13", 4, "v0")
g("v_lshl_add_u32", "v12", "v13", 4, "v12")
g.wait(lgkm=0)
seg_end()
g.label("L_segE")
for half in range(2):
    for tt in range(8):
        t = half * 8 + tt
        g("ds_read_b128", vr(16 + 4 * tt), "v12", mods=f"offset:{L_HN + t * 64}")
    for tt in range(8):
        t = half * 8 + tt
        g("v_mfma_f32_16x16x32_bf16", "v[8:11]", vr(16 + 4 * tt), vr(64 + 4 * t), "0" if t == 0 else "v[8:11]")
K1 = -2.0 * 0.7978845608028654 * 1.4426950408889634
K3 = K1 * 0.044715
g("s_mov_b32", T[8], f32hex(K3))
g("v_mov_b32", "v14", f32hex(K1))
g("v_and_b32", "v16", 3, "v0")
g("v_lshlrev_b32", "v16", 4, "v16")
g("v_bfe_u32", "v17", "v0", 2, 2)
g("v_lshl_add_u32", "v16", "v17", 2, "v16")
bf16r2("v8", "v9", "v12")
g("v_add_f32", "v8", "v8", "v3")
g("v_add_f32", "v9", "v9", "v3")
bf16r2("v8", "v9", "v12")
ZT = (("v8", "v12"), ("v9", "v13"))
for z, t in ZT:
    g("v_mul_f32", t, z, z)
for z, t in ZT:
    g("v_fma_f32", t, t, T[8], "v14")
for z, t in ZT:
    g("v_mul_f32", t, t, z)
for z, t in ZT:
    g("v_exp_f32", t, t)
for z, t in ZT:
    g("v_add_f32", t, 1.0, t)
for z, t in ZT:
    g("v_rcp_f32", t, t)
for z, t in ZT:
    g("v_mul_f32", z, z, t)
for z in ("v8", "v9"):
    g("v_cvt_pk_bf16_f32", z, z, z)
setexec("0xffff")
g("ds_write_b32", "v16", "v8", mods=f"offset:{L_H1}")
g("ds_write_b32", "v16", "v9", mods=f"offset:{L_H1 + 64}")
setexec(-1)
g.wait(lgkm=0)
seg_end()
g.label("L_segF")
g.merge(st_ffn2)
g("v_bfe_u32", "v12", "v0", 3, 1)
g("v_lshlrev_b32", "v12", 6, "v12")
g("v_lshrrev_b32", "v13", 4, "v0")
g("v_lshl_add_u32", "v12", "v13", 4, "v12")
g("v_bfe_u32", "v20", "v0", 3, 1)
g("v_lshlrev_b32", "v20", 11, "v20")
g("v_lshl_add_u32", "v20", "v13", 7, "v20")
g("v_and_b32", "v21", 7, "v0")
g("v_lshl_add_u32", "v20", "v21", 4, "v20")
g("s_lshl_b32", T[8], "s2", 12)
g("s_and_b32", T[9], S_WAVE, 3)
g("s_lshl_b32", T[9], T[9], 9)
g("s_add_u32", T[8], T[8], T[9])
g("s_add_u32", T[8], T[8], hex(WS_F))
g.wait(vm=0)
barrier()
g("ds_read_b128", "v[16:19]", "v12", mods=f"offset:{L_H1}")
for i in range(4):
    bmask_mfma("v[12:15]", vr(48 + 4 * i), f"v{16 + i}", i == 0)
g("buffer_store_dwordx4", "v[12:15]", "v20", SRD_WS, T[8], mods="offen sc1")
stamp(8)
seg_end()
g("s_branch", "L_fin")

g.label("L_segG")
g.restore(st_y)
g("s_lshl_b32", T[8], S_WAVE, 10)
g("v_add_u32", "v16", T[8], "v1")
for k in range(4):
    g("ds_read_b128", vr(32 + 4 * k), "v16", mods=f"offset:{L_YP + 2048 * k}")
g("s_lshl_b32", T[8], S_B, 7)
g("s_lshl_b32", T[9], S_H, 2)
g("s_add_u32", T[8], T[8], T[9])
g("s_add_u32", T[8], T[8], S_SPL)
g("s_lshl_b32", T[8], T[8], 11)
g("s_add_u32", T[8], T[8], hex(WS_Y))
for r in range(4):
    g("v_add_f32", f"v{32 + r}", f"v{32 + r}", f"v{36 + r}")
    g("v_add_f32", f"v{40 + r}", f"v{40 + r}", f"v{44 + r}")
for r in range(4):
    g("v_add_f32", f"v{32 + r}", f"v{32 + r}", f"v{40 + r}")
g("buffer_store_dwordx4", "v[32:35]", "v16", SRD_WS, T[8], mods="offen sc1")
stamp(5)
g("s_cbranch_execz", "L_g2")
g("s_cmp_lg_u32", S_WAVE, 0)
g("s_cbranch_scc1", "L_fin")
g.label("L_g2")
TB, TT, TX = T[10], T[11], T[12]
g("s_lshr_b32", TB, S_PI, 7)
g("s_and_b32", TT, S_PI, 127)
g("s_lshr_b32", T[8], TT, 3)
g("s_lshl_b32", T[8], T[8], 5)
g("s_and_b32", T[9], TT, 7)
g("s_add_u32", T[8], T[8], T[9])
g("s_lshl_b32", TX, T[8], 1)
g("v_and_b32", "v20", 3, "v0")
g("v_lshlrev_b32", "v20", 4, "v20")
g("buffer_load_ushort", "v22", "v20", SRD_B2, TX, mods="offen")
g("s_lshl_b32", T[8], TB, 10)
g("s_add_u32", TX, TX, T[8])
g("buffer_load_ushort", "v21", "v20", SRD_X, TX, mods="offen")
g("v_lshlrev_b32", "v16", 11, "v0")
g("v_add_u32", "v17", 0x20000, "v16")
g("s_lshl_b32", T[8], TB, 18)
g("s_lshl_b32", T[9], TT, 4)
g("s_add_u32", T[8], T[8], T[9])
g("s_add_u32", T[8], T[8], hex(WS_Y))
seg_end()
g.label("L_segH")
poll_gather([32, 36], ["v16", "v17"], T[8], [full, full], adaptive=True)
stamp(6)
for r in range(4):
    g("v_add_f32", f"v{32 + r}", f"v{32 + r}", f"v{36 + r}")
wave_reduce("v_add_f32", ["v32", "v33", "v34", "v35"])
for r in range(4):
    g("v_readlane_b32", T[r], f"v{32 + r}", 63)
for r in range(4):
    g("v_writelane_b32", "v24", T[r], r)
bf16r("v24", "v24")
g("v_lshlrev_b32", "v21", 16, "v21")
g("v_add_f32", "v24", "v24", "v21")
bf16r("v24", "v24")
g("v_lshlrev_b32", "v25", 2, "v0")
g("s_lshl_b32", T[8], S_PI, CFG["hsh"])
g("s_add_u32", T[8], T[8], hex(WS_H))
setexec(15)
g("buffer_store_dword", "v24", "v25", SRD_WS, T[8], mods="offen sc1")
setexec(-1)
seg_end()
g("s_cmp_ge_u32", "s2", NFFN)
g("s_cbranch_scc1", "L_segI")
st_skip = g.save()
g("s_barrier")
g.label("L_segI")
g.merge(st_skip)
g("v_lshlrev_b32", "v16", 12, "v0")
g("v_add_u32", "v17", 0x40000, "v16")
for r in range(4):
    g("v_mov_b32", f"v{36 + r}", 0)
g("s_lshl_b32", T[8], S_PI, 4)
g("s_add_u32", T[8], T[8], hex(WS_F))
if CFG["rep"]:
    poll_one("v16", T[8], 1 << 13)
poll_gather([32, 36], ["v16", "v17"], T[8], [full, (1 << (NFFN - 64)) - 1])
for r in range(4):
    g("v_add_f32", f"v{32 + r}", f"v{32 + r}", f"v{36 + r}")
wave_reduce("v_add_f32", ["v32", "v33", "v34", "v35"])
for r in range(4):
    g("v_readlane_b32", T[r], f"v{32 + r}", 63)
for r in range(4):
    g("v_writelane_b32", "v26", T[r], r)
bf16r("v26", "v26")
g("v_lshlrev_b32", "v22", 16, "v22")
g("v_add_f32", "v26", "v26", "v22")
bf16r("v26", "v26")
g("v_add_f32", "v26", "v26", "v24")
g("v_cvt_pk_bf16_f32", "v26", "v26", "v26")
setexec(15)
g("buffer_store_short", "v26", "v20", SRD_OUT, TX, mods="offen")
setexec(-1)
stamp(9)
seg_end()
g.dry_guard = False

g.label("L_fin")
if CFG["diag"]:
    g.nop(8)
    g.wait(vm=0, lgkm=0)
    diag_store()
g.label("L_end")
g("s_endpgm")
if not CFG["dry"]:
    g.label("L_dryret")
    g("s_endpgm")

hdr = open("cdna_kernels/" + NAME + ".s.ref").read().split("\n")
head = []
for line in hdr:
    if line.startswith("; @launch"):
        head.append(f"; @launch grid=(256,1,1) block=(1024,1,1) lds={LDS_BYTES}")
    elif line.startswith(";"):
        head.append(line)
    else:
        break
src = "\n".join(head) + "\n"
src += f""".amdgcn_target "amdgcn-amd-amdhsa--gfx950"
.text
.globl {NAME}_kernel
.p2align 8
.type {NAME}_kernel,@function
{NAME}_kernel:
"""
src += g.text()
src += f""".section .rodata,"a"
.p2align 6
.amdhsa_kernel {NAME}_kernel
  .amdhsa_next_free_vgpr 128
  .amdhsa_next_free_sgpr 102
  .amdhsa_accum_offset 128
  .amdhsa_group_segment_fixed_size 0
  .amdhsa_kernarg_size 104
  .amdhsa_user_sgpr_count 2
  .amdhsa_user_sgpr_kernarg_segment_ptr 1
  .amdhsa_system_sgpr_workgroup_id_x 1
.end_amdhsa_kernel
"""
open(sys.argv[1], "w").write(src)
print("instructions:", g.ninstr)
```

```python
import copy
import re

TRANS = ("v_exp_f32", "v_log_f32", "v_rcp_f32", "v_rsq_f32", "v_sqrt_f32", "v_sin_f32", "v_cos_f32")
NO_DST_SALU = ("s_cmp", "s_cbranch", "s_branch", "s_barrier", "s_waitcnt", "s_nop", "s_sleep",
               "s_setprio", "s_endpgm", "s_bitcmp")


def parse_regs(op):
    op = op.strip()
    if op.startswith("-"):
        op = op[1:]
    m = re.fullmatch(r"abs\((.*)\)", op)
    if m:
        op = m.group(1)
    m = re.fullmatch(r"\|(.*)\|", op)
    if m:
        op = m.group(1)
    m = re.fullmatch(r"([vsa])(\d+)", op)
    if m:
        return {(m.group(1), int(m.group(2)))}
    m = re.fullmatch(r"([vsa])\[(\d+):(\d+)\]", op)
    if m:
        return {(m.group(1), i) for i in range(int(m.group(2)), int(m.group(3)) + 1)}
    if op in ("vcc", "vcc_lo", "vcc_hi"):
        return {("s", "vcc")}
    if op in ("exec", "exec_lo", "exec_hi"):
        return {("x", "exec")}
    if op == "m0":
        return {("x", "m0")}
    return set()


class Ins:
    __slots__ = ("op", "reads", "writes", "valu", "trans", "dot", "mfma", "salu", "vmem", "ds",
                 "dpp", "dma", "srcAB", "srcC", "store_data", "wide", "states", "lanesel", "perm",
                 "rdlane")

    def __init__(self):
        self.op = ""
        self.reads = set()
        self.writes = set()
        self.valu = self.trans = self.dot = self.mfma = self.salu = self.vmem = self.ds = False
        self.dpp = self.dma = self.wide = self.perm = self.rdlane = False
        self.srcAB = set()
        self.srcC = set()
        self.store_data = set()
        self.states = 1
        self.lanesel = set()


def classify(op, ops, mods):
    i = Ins()
    i.op = op
    R = [parse_regs(o) for o in ops]
    allr = lambda idx: set().union(*[R[k] for k in idx]) if idx else set()
    n = len(ops)
    if op.startswith("v_mfma"):
        i.mfma = True
        i.writes = R[0]
        i.srcAB = R[1] | R[2]
        i.srcC = R[3]
        i.reads = i.srcAB | i.srcC
    elif op.startswith("v_"):
        i.valu = True
        base = op.replace("_dpp", "").replace("_e32", "").replace("_e64", "")
        i.trans = base in TRANS
        i.dot = base.startswith("v_dot")
        i.dpp = op.endswith("_dpp") or any(k in mods for k in ("row_", "quad_perm", "wave_"))
        if base.startswith("v_permlane"):
            i.perm = True
            i.writes = R[0] | R[1]
            i.reads = R[0] | R[1]
        elif "_co_" in base:
            i.writes = R[0] | R[1]
            i.reads = allr(range(2, n))
        else:
            i.writes = R[0]
            i.reads = allr(range(1, n))
            if base in ("v_fmac_f32", "v_dot2c_f32_bf16", "v_writelane_b32") or i.dpp:
                i.reads |= R[0]
        if base in ("v_readlane_b32", "v_readfirstlane_b32"):
            i.rdlane = True
            if base == "v_readlane_b32":
                i.lanesel = R[2]
        if base == "v_writelane_b32":
            i.lanesel = R[2]
        if i.dot:
            i.srcAB = R[1] | R[2]
            i.srcC = R[3] if n > 3 else R[0]
    elif op.startswith("buffer_") or op.startswith("global_"):
        i.vmem = True
        if "_load" in op:
            if re.search(r"\blds\b", mods) or "_lds_" in op:
                i.dma = True
                i.reads = allr(range(0, n)) | {("x", "m0")}
            else:
                i.writes = R[0]
                i.reads = allr(range(1, n))
                if "d16" in op:
                    i.reads |= R[0]
        elif "_store" in op or "_atomic" in op:
            i.reads = allr(range(0, n))
            if op.startswith("buffer_"):
                i.store_data = R[0]
            else:
                i.store_data = R[1]
            i.wide = len(i.store_data) > 2
        else:
            pass
    elif op.startswith("ds_"):
        i.ds = True
        if op.startswith("ds_read") or "_rtn" in op or "permute" in op or "swizzle" in op:
            i.writes = R[0]
            i.reads = allr(range(1, n))
        else:
            i.reads = allr(range(0, n))
    elif op.startswith("s_"):
        i.salu = True
        if op.startswith(NO_DST_SALU):
            i.reads = allr(range(0, n))
        else:
            i.writes = R[0] if n else set()
            i.reads = allr(range(1, n))
            if "saveexec" in op:
                i.writes |= {("x", "exec")}
                i.reads |= {("x", "exec")}
        if op == "s_nop":
            i.states = int(ops[0]) + 1
    else:
        raise ValueError("unknown op " + op)
    return i


def need(p, c):
    n = 0
    if p.valu:
        vw = {r for r in p.writes if r[0] == "v"}
        sw = {r for r in p.writes if r[0] == "s"}
        if vw:
            if c.dpp and (vw & c.reads):
                n = max(n, 2)
            if c.rdlane and (vw & c.reads):
                n = max(n, 1)
            if c.mfma and (vw & c.reads):
                n = max(n, 2)
            if c.perm and (vw & c.reads):
                n = max(n, 2)
            if p.trans and (c.valu or c.mfma) and (vw & (c.reads | c.writes)):
                n = max(n, 1)
            if p.dot:
                if c.dot and c.op == p.op and not (vw & c.srcAB):
                    pass
                elif vw & (c.reads | c.writes):
                    n = max(n, 3)
        if sw:
            if (c.valu or c.mfma) and (sw & c.reads):
                n = max(n, 2)
            if c.lanesel & sw:
                n = max(n, 4)
            if c.vmem and (sw & c.reads):
                n = max(n, 5)
    if p.mfma:
        D = p.writes
        if c.mfma:
            if D & c.srcAB:
                n = max(n, 8)
            if D & c.srcC:
                n = max(n, 0 if (c.srcC == D) else 6)
            elif D & c.writes:
                n = max(n, 8)
        else:
            if D & (c.reads | c.writes):
                n = max(n, 8)
        if c.valu and (p.srcC & c.writes):
            n = max(n, 3)
    if p.vmem and p.wide and (p.store_data & c.writes):
        n = max(n, 2)
    if p.salu and ("x", "m0") in p.writes and c.dma:
        n = max(n, 1)
    return n


WINDOW = 12


class Gen:
    def __init__(self):
        self.out = []
        self.hists = [[]]
        self.vm = {}
        self.lg = {}
        self.smem = set()
        self.uid = 0
        self.lab = 0
        self.ninstr = 0
        self.dry_guard = False

    def save(self):
        return (copy.deepcopy(self.hists), copy.deepcopy(self.vm), copy.deepcopy(self.lg), set(self.smem))

    def restore(self, st):
        self.hists, self.vm, self.lg, self.smem = (copy.deepcopy(st[0]), copy.deepcopy(st[1]),
                                                   copy.deepcopy(st[2]), set(st[3]))

    def merge(self, st):
        self.hists = self.hists + copy.deepcopy(st[0])
        for mine, other in ((self.vm, st[1]), (self.lg, st[2])):
            for k, v in other.items():
                if k in mine:
                    mine[k][0] = min(mine[k][0], v[0])
                else:
                    mine[k] = copy.deepcopy(v)
        self.smem |= st[3]

    def newlabel(self, base="L"):
        self.lab += 1
        return f"{base}_{self.lab}"

    def label(self, name):
        self.out.append(f"{name}:")

    def comment(self, s):
        self.out.append(f"    ; {s}")

    def raw(self, s):
        self.out.append(s)

    def _push(self, ins, text):
        self.out.append("    " + text)
        self.ninstr += 1
        for h in self.hists:
            h.append(ins)
            if len(h) > WINDOW:
                del h[0]
        if len(self.hists) > 1:
            uniq = []
            for h in self.hists:
                if not any(len(u) == len(h) and all(a is b for a, b in zip(u, h)) for u in uniq):
                    uniq.append(h)
            self.hists = uniq

    def _pad_for(self, c):
        worst = 0
        for h in self.hists:
            dist = 0
            for p in reversed(h):
                nd = need(p, c)
                if nd > dist:
                    worst = max(worst, nd - dist)
                dist += p.states
        return worst

    def nop(self, states):
        while states > 0:
            k = min(states, 16)
            ins = classify("s_nop", [str(k - 1)], "")
            self._push(ins, f"s_nop {k - 1}")
            states -= k

    def wait(self, vm=None, lgkm=None):
        parts = []
        if vm is not None:
            vm = min(vm, 63)
            parts.append(f"vmcnt({vm})")
            self.vm = {k: v for k, v in self.vm.items() if v[0] < vm}
        if lgkm is not None:
            lgkm = min(lgkm, 15)
            parts.append(f"lgkmcnt({lgkm})")
            self.lg = {k: v for k, v in self.lg.items() if v[0] < lgkm}
            if lgkm == 0:
                self.smem = set()
        ins = classify("s_waitcnt", [], "")
        if self.dry_guard and vm is not None:
            lab = self.newlabel("Lw")
            self._push(classify("s_cbranch_execz", [lab], ""), f"s_cbranch_execz {lab}")
            self._push(ins, "s_waitcnt " + " ".join(parts))
            self.label(lab)
        else:
            self._push(ins, "s_waitcnt " + " ".join(parts))

    def flush_hazards(self):
        worst = 0
        for h in self.hists:
            dist = 0
            for p in reversed(h):
                nd = 0
                if p.mfma:
                    nd = 8
                elif p.valu:
                    nd = 2
                    if p.dot:
                        nd = 3
                    if any(r[0] == "s" for r in p.writes):
                        nd = 5
                elif p.vmem and p.wide:
                    nd = 2
                elif p.salu and ("x", "m0") in p.writes:
                    nd = 1
                if nd > dist:
                    worst = max(worst, nd - dist)
                dist += p.states
        self.nop(worst)

    def __call__(self, op, *ops, mods=""):
        ops = [str(o) for o in ops]
        c = classify(op, ops, mods)
        touched = c.reads | c.writes
        wv = None
        for k, v in self.vm.items():
            if v[1] & touched:
                wv = v[0] if wv is None else min(wv, v[0])
        wl = None
        for k, v in self.lg.items():
            if v[1] & touched:
                wl = v[0] if wl is None else min(wl, v[0])
        if self.smem & touched:
            wl = 0
        if wl is not None:
            if self.smem:
                wl = 0
            wl = min(wl, 14)
        if wv is not None or wl is not None:
            self.wait(vm=wv, lgkm=wl)
        pad = self._pad_for(c)
        if pad:
            self.nop(pad)
        text = op
        if ops:
            text += " " + ", ".join(ops)
        if mods:
            text += " " + mods
        self._push(c, text)
        if c.vmem:
            for v in self.vm.values():
                v[0] += 1
            self.uid += 1
            self.vm[self.uid] = [0, set(c.writes)]
            assert len(self.vm) <= 63, "too many outstanding vmem"
        elif c.ds:
            for v in self.lg.values():
                v[0] += 1
            self.uid += 1
            self.lg[self.uid] = [0, set(c.writes)]
        elif op.startswith("s_load") or op.startswith("s_memtime") or op.startswith("s_memrealtime"):
            self.smem |= c.writes
        return self.uid

    def wait_regs(self, *ops):
        regs = set()
        for o in ops:
            regs |= parse_regs(o)
        wv = None
        for k, v in self.vm.items():
            if v[1] & regs:
                wv = v[0] if wv is None else min(wv, v[0])
        if wv is not None:
            self.wait(vm=wv)

    def vm_younger(self, uid):
        return self.vm[uid][0] if uid in self.vm else None

    def text(self):
        return "\n".join(self.out) + "\n"
```

```python
import sys
import struct
from asmgen import Gen

NAME = "sequential_preLN__mha_block_cached__dense_activation_gelu__decode"

CFG = dict(
    kv_mods="nt", w_mods="nt", diag=0, spin_limit=200000,
    D=2,
    DW=0,
    wo0=5,
    stpos=9,
    stuse=6,
    rchk=13,
    b1pos="K4",
    drypos="K8",
    gpos="K9",
    qbar="K13",
    qx=1,
    dry=1,
    hsh=7,
    prio=0,
    sleep=0,
    sleep1=0,
    athr=6,
    asleep=1,
    rep=1,
    fspin=2,
    pdly=2,
    gdly=2,
    nob1=0,
    nob2=0,
    noclr=0,
    nost=0,
    nowo=0,
    nokc=0,
    nend=0,
    dend=4,
    zsleep=0,
    hsleep=1,
    ysleep=1,
    fsleep=1,
)
for a in sys.argv[2:]:
    k, v = a.split("=", 1)
    if isinstance(CFG[k], int):
        v = int(v)
    CFG[k] = v

NFFN = 86
WS_ST = 0x0
WS_H = 0x8000
WS_Y = 0x10000
WS_F = 0x100000
WS_QP = 0x180000
WS_HR = 0x1d0000
WS_DIAG = 0x200000
WS_SIZE = 0x400000
NONCE = "s[40:41]"
N_LO, N_HI = "s40", "s41"
PSTR = 80
L_PART = 0
L_QB = 20480
L_YP = 20736
L_ZP = 28928
L_CS = 29440
L_STAT = 29696
L_HN = 47104 + 1024
L_WST = 29712 + 16
L_NONCE = 29712
L_W1 = 31744
LDS_BYTES = 50176

S_WAVE, S_H, S_B, S_SPL = "s3", "s4", "s5", "s6"
SRD_K, SRD_V, SRD_WQ, SRD_WO = "s[44:47]", "s[48:51]", "s[52:55]", "s[56:59]"
SRD_X, SRD_WS, SRD_DBG, SRD_W1 = "s[60:63]", "s[64:67]", "s[68:71]", "s[72:75]"
SRD_W2, SRD_B1, SRD_B2, SRD_OUT = "s[76:79]", "s[80:83]", "s[84:87]", "s[88:91]"
S_KV, S_T, S_WO, S_M, S_BH, S_PI = "s92", "s93", "s94", "s95", "s96", "s97"
LIVE = "s[98:99]"
S_LOG2E, S_SCALE = "s42", "s43"
T = [f"s{16 + i}" for i in range(14)]
S_IT = "s29"
STAMP0 = 30
DPPF = "row_mask:0xf bank_mask:0xf"
full = (1 << 64) - 1


def vr(a, n=4):
    return f"v[{a}:{a + n - 1}]"


def f32hex(x):
    return "0x%08x" % struct.unpack("<I", struct.pack("<f", x))[0]


g = Gen()


def stamp(slot):
    if not CFG["diag"]:
        return
    lab = None
    if g.dry_guard:
        lab = g.newlabel("Lst")
        g("s_cbranch_execz", lab)
    g("s_memrealtime", "s[100:101]")
    g.wait(lgkm=0)
    g("s_mov_b32", f"s{STAMP0 + slot}", "s100")
    if lab:
        g.label(lab)


def srd(dst_base, ptr_lo, nbytes):
    g("s_mov_b32", f"s{dst_base}", f"s{ptr_lo}")
    g("s_and_b32", f"s{dst_base + 1}", f"s{ptr_lo + 1}", "0xffff")
    g("s_mov_b32", f"s{dst_base + 2}", hex(nbytes))
    g("s_mov_b32", f"s{dst_base + 3}", "0x00020000")


def setexec(m):
    if g.dry_guard:
        if m == -1:
            g("s_mov_b64", "exec", LIVE)
        else:
            g("s_and_b64", "exec", LIVE, m)
    else:
        g("s_mov_b64", "exec", m)


def barrier():
    if g.dry_guard:
        lab = g.newlabel("Lb")
        g("s_cbranch_execz", lab)
        g("s_barrier")
        g.label(lab)
    else:
        g("s_barrier")


def seg_end():
    g("s_cbranch_execz", "L_dryret")


def wave_reduce(op, regs):
    for sh in (8, 4, 2, 1):
        for r in regs:
            g(op + "_dpp", r, r, r, mods=f"row_ror:{sh} {DPPF}")
    for r in regs:
        g(op + "_dpp", r, r, r, mods="row_bcast:15 row_mask:0xa bank_mask:0xf")
    for r in regs:
        g(op + "_dpp", r, r, r, mods="row_bcast:31 row_mask:0xc bank_mask:0xf")


def bf16r(dst, src, tmp=None):
    t = tmp or dst
    g("v_cvt_pk_bf16_f32", t, src, src)
    g("v_and_b32", dst, "0xffff0000", t)


def bf16r2(a, b, tmp):
    g("v_cvt_pk_bf16_f32", tmp, a, b)
    g("v_lshlrev_b32", a, 16, tmp)
    g("v_and_b32", b, "0xffff0000", tmp)


def unpack(dlo, dhi, src):
    g("v_lshlrev_b32", dlo, 16, src)
    g("v_and_b32", dhi, "0xffff0000", src)


def tree_sum(regs, op="v_add_f32"):
    regs = list(regs)
    while len(regs) > 1:
        nxt = []
        for i in range(0, len(regs) - 1, 2):
            g(op, regs[i], regs[i], regs[i + 1])
            nxt.append(regs[i])
        if len(regs) % 2:
            nxt.append(regs[-1])
        regs = nxt
    return regs[0]


def bmask_mfma(D, A, val, first, bcast=None):
    for r in range(4):
        if bcast is None:
            g("v_and_b32", f"v{8 + r}", val, f"v{4 + r}")
        else:
            g("v_and_b32_dpp", f"v{8 + r}", val, f"v{4 + r}", mods=f"row_newbcast:{bcast} {DPPF}")
    g("v_mfma_f32_16x16x32_bf16", D, A, "v[8:11]", "0" if first else D)


def poll_one(voff, soff, lane_mask, imm=0):
    g("s_and_b64", "exec", LIVE, hex(lane_mask))
    g("s_mov_b32", S_IT, 0)
    g.flush_hazards()
    L = g.newlabel("Lp1")
    Ld = g.newlabel("Lp1done")
    g("s_cbranch_execz", Ld)
    g.label(L)
    g("buffer_load_dword", "v31", voff, SRD_WS, soff, mods=(f"offen offset:{imm + 12} sc1"))
    sv = g.dry_guard
    g.dry_guard = False
    g.wait(vm=0)
    g.dry_guard = sv
    g("v_cmp_eq_u32", "vcc", -1, "v31")
    g("s_add_u32", S_IT, S_IT, 1)
    g("s_cmp_eq_u64", "vcc", 0)
    g("s_cbranch_scc1", Ld)
    g("s_cmp_lt_u32", S_IT, CFG["spin_limit"])
    if CFG["sleep1"]:
        g("s_sleep", CFG["sleep1"])
    g("s_cbranch_scc1", L)
    g.label(Ld)
    g("s_mov_b64", "exec", LIVE)


def poll_gather(dsts, voffs, soff, masks, imm=None, adaptive=False, slp=None):
    pend = [f"s[{16 + 2 * k}:{17 + 2 * k}]" for k in range(len(dsts))]
    for k, m in enumerate(masks):
        if m == full:
            g("s_mov_b64", pend[k], LIVE)
        elif isinstance(m, str):
            g("s_and_b64", pend[k], LIVE, m)
        else:
            assert m < (1 << 31)
            g("s_and_b64", pend[k], LIVE, hex(m))
    g("s_mov_b32", S_IT, 0)
    g.flush_hazards()
    L = g.newlabel("Lpoll")
    Ld = g.newlabel("Lpolldone")
    g.label(L)
    for k, d in enumerate(dsts):
        g("s_mov_b64", "exec", pend[k])
        mods = "offen sc1"
        if imm and imm[k]:
            mods = f"offen offset:{imm[k]} sc1"
        g("buffer_load_dwordx4", vr(d), voffs[k], SRD_WS, soff, mods=mods)
    g("s_mov_b64", "exec", LIVE)
    g.wait(vm=0)
    for k, d in enumerate(dsts):
        g("s_mov_b64", "exec", pend[k])
        g("v_max3_u32", "v31", f"v{d}", f"v{d + 1}", f"v{d + 2}")
        g("v_max_u32", "v31", "v31", f"v{d + 3}")
        g("v_cmp_eq_u32", pend[k], -1, "v31")
    if len(dsts) == 1:
        g("s_or_b64", "s[100:101]", pend[0], pend[0])
    else:
        g("s_or_b64", "s[100:101]", pend[0], pend[1])
        for k in range(2, len(dsts)):
            g("s_or_b64", "s[100:101]", "s[100:101]", pend[k])
    g("s_cbranch_scc0", Ld)
    g("s_add_u32", S_IT, S_IT, 1)
    g("s_cmp_lt_u32", S_IT, CFG["spin_limit"])
    g("s_cbranch_scc0", Ld)
    if adaptive:
        g("s_bcnt1_i32_b64", "s100", "s[100:101]")
        g("s_cmp_le_u32", "s100", CFG["athr"])
        g.flush_hazards()
        g("s_cbranch_scc1", L)
        g("s_sleep", CFG["asleep"])
    elif slp:
        g("s_sleep", slp)
    g.flush_hazards()
    g("s_branch", L)
    g.label(Ld)
    g("s_mov_b64", "exec", LIVE)
    g.flush_hazards()


def poll_tag(dst, voff, soff, mask, pre=False):
    pend = "s[16:17]"
    if mask == full:
        g("s_mov_b64", pend, LIVE)
    else:
        g("s_and_b64", pend, LIVE, mask)
    g("s_mov_b32", S_IT, 0)
    g.flush_hazards()
    L = g.newlabel("Lpt")
    Ld = g.newlabel("Lptdone")
    Lc = g.newlabel("Lptchk")
    if pre:
        g("s_branch", Lc)
    g.label(L)
    g("s_mov_b64", "exec", pend)
    g("buffer_load_dwordx4", vr(dst), voff, SRD_WS, soff, mods="offen sc1")
    g("s_mov_b64", "exec", LIVE)
    g.wait(vm=0)
    g.label(Lc)
    g("s_mov_b64", "exec", pend)
    g("v_cmp_ne_u64", pend, NONCE, vr(dst + 2, 2))
    g("s_or_b64", "s[100:101]", pend, pend)
    g("s_cbranch_scc0", Ld)
    g("s_add_u32", S_IT, S_IT, 1)
    g("s_cmp_lt_u32", S_IT, CFG["spin_limit"])
    g("s_cbranch_scc0", Ld)
    g("s_sleep", 2)
    g.flush_hazards()
    g("s_branch", L)
    g.label(Ld)
    g("s_mov_b64", "exec", LIVE)
    g.flush_hazards()


def diag_store():
    g("v_mov_b32", "v30", 0)
    for i in range(10):
        g("v_writelane_b32", "v30", f"s{STAMP0 + i}", i)
    g("s_lshl_b32", "s7", "s2", 4)
    g("s_add_u32", "s7", "s7", S_WAVE)
    g("s_lshl_b32", "s7", "s7", 6)
    g("s_add_u32", "s7", "s7", hex(WS_DIAG))
    g("v_lshlrev_b32", "v29", 2, "v0")
    g("s_mov_b64", "exec", "0xffff")
    g("buffer_store_dword", "v30", "v29", SRD_WS, "s7", mods="offen")


g("s_cmp_ge_u32", "s2", 256)
g("s_cbranch_scc1", "L_end")
g("s_load_dwordx16", "s[16:31]", "s[0:1]", 0)
g("s_load_dwordx8", "s[32:39]", "s[0:1]", 64)
g("s_load_dwordx2", "s[40:41]", "s[0:1]", 96)
g("v_readfirstlane_b32", S_WAVE, "v0")
g("v_and_b32", "v0", 63, "v0")
g("s_and_b32", "s7", "s2", 7)
g("s_lshr_b32", "s8", "s2", 3)
g("s_and_b32", "s9", "s8", 3)
g("s_lshl_b32", S_H, "s7", 2)
g("s_add_u32", S_H, S_H, "s9")
g("s_mov_b32", S_PI, S_H)
g("s_lshr_b32", "s13", "s8", 2)
g("s_lshr_b32", S_B, "s13", 2)
g("s_and_b32", S_SPL, "s13", 3)
g("s_lshr_b32", S_WAVE, S_WAVE, 6)
g("v_lshlrev_b32", "v1", 4, "v0")
g("v_lshrrev_b32", "v3", 4, "v0")
g("v_and_b32", "v2", 15, "v0")
g("v_lshlrev_b32", "v2", 4, "v2")
g("v_lshl_add_u32", "v2", "v3", 13, "v2")
g("v_lshlrev_b32", "v3", 1, "v3")
g("v_bfe_u32", "v8", "v0", 3, 1)
g("v_lshl_add_u32", "v3", "v8", 10, "v3")
g("s_lshl_b32", S_BH, S_B, 5)
g("s_add_u32", S_BH, S_BH, S_H)
g("s_lshl_b32", S_KV, S_BH, 20)
g("s_lshl_b32", "s7", S_SPL, 18)
g("s_add_u32", S_KV, S_KV, "s7")
g("s_lshl_b32", "s7", S_WAVE, 10)
g("s_add_u32", S_KV, S_KV, "s7")
g("s_lshl_b32", "s11", "s13", 4)
g("s_add_u32", "s11", "s11", S_WAVE)
g("s_lshl_b32", "s12", "s11", 15)
g("s_lshl_b32", "s7", S_H, 8)
g("s_add_u32", "s12", "s12", "s7")
g("s_lshl_b32", "s11", "s11", 3)
g.wait(lgkm=0)
srd(44, 18, 2 * 32 * 4096 * 128 * 2)
srd(60, 16, 2048)
srd(52, 22, 512 * 4096 * 2)
srd(64, 40, WS_SIZE)
srd(68, 38, 256)

kvm = CFG["kv_mods"]
wm = CFG["w_mods"]


def vreg(i):
    return 32 + 4 * i if i < 8 else 64 + 4 * (i - 8)


def kv_load(dst, srd_, i):
    g("s_add_u32", S_T, S_KV, i * 16384)
    g("buffer_load_dwordx4", vr(dst), "v1", srd_, S_T, mods=f"offen {kvm}".strip())


def wo_load(i):
    if CFG["nowo"]:
        g("buffer_load_dword", f"v{96 + 4 * i}", "v1", SRD_X, 0, mods="offen")
        return
    g("s_add_u32", S_T, S_WO, i // 4 * 4096)
    off = (i % 4) * 1024
    g("buffer_load_dwordx4", vr(96 + 4 * i), "v2", SRD_WO, S_T,
      mods=(f"offen offset:{off} {wm}" if off else f"offen {wm}").strip())


def st_load():
    g("v_lshlrev_b32", "v3", 3, "v0")
    g("s_lshl_b32", "s7", S_BH, 9)
    g("buffer_load_dwordx2", "v[32:33]", "v3", SRD_WS, "s7", mods="offen sc1")


D = CFG["D"]
stream = []
for i in range(16):
    stream.append((f"K{i}", None, (lambda i=i: kv_load(64 + 4 * i, SRD_K, i)), D))
nwo = 0
for i in range(16):
    dd = D + (CFG["DW"] if (CFG["wo0"] < i <= CFG["wo0"] + 9) else 0)
    stream.append((f"V{i}", "QDONE" if i < 8 else f"K{i - 8}", (lambda i=i: kv_load(vreg(i), SRD_V, i)), dd))
    if i >= CFG["wo0"] and nwo < 8:
        stream.append((f"WO{nwo}", f"K{8 + nwo}", (lambda i=nwo: wo_load(i)), D + CFG["DW"]))
        nwo += 1
while nwo < 8:
    stream.append((f"WO{nwo}", f"K{8 + nwo}", (lambda i=nwo: wo_load(i)), D + CFG["DW"]))
    nwo += 1
NE = CFG["nend"]
for idx in range(len(stream) - NE, len(stream)):
    nm, pre, fn, dd = stream[idx]
    if dd < 99:
        stream[idx] = (nm, pre, fn, CFG["dend"])
freed = set()
spos = [0]
issued = set()
heavy = set()


def pump(n=1, pace=True, until=None):
    cnt = 0
    while spos[0] < len(stream):
        if until is not None:
            if until in issued:
                return
        elif cnt >= n:
            return
        name, pre, fn, dd = stream[spos[0]]
        if pre is not None and pre not in freed:
            if until is not None:
                raise RuntimeError(f"blocked at {name} needs {pre}")
            return
        if pace:
            hv = 0
            for uid, ent in sorted(g.vm.items(), key=lambda kv: kv[1][0]):
                if uid in heavy:
                    hv += 1
                    if hv == dd:
                        g.wait(vm=ent[0])
                        break
        fn()
        if name[0] in "KVW":
            heavy.add(g.uid)
        issued.add(name)
        spos[0] += 1
        cnt += 1


g("s_or_b32", "s7", "s2", S_WAVE)
g("s_cmp_lg_u32", "s7", 0)
g("s_cbranch_scc1", "L_nononce")
st_skip = g.save()
g("s_memrealtime", "s[8:9]")
g("v_mov_b32", "v10", 0)
g.wait(lgkm=0)
g("s_bitset1_b32", "s9", 31)
g("v_mov_b32", "v8", "s8")
g("v_mov_b32", "v9", "s9")
g("s_mov_b64", "exec", 1)
g("buffer_store_dwordx2", "v[8:9]", "v10", SRD_DBG, 0, mods="offen sc1")
g("s_mov_b64", "exec", -1)
g.label("L_nononce")
g.merge(st_skip)
pump(1, pace=False)
g("buffer_load_dwordx4", "v[24:27]", "v1", SRD_X, 0, mods="offen")
g("buffer_load_dwordx4", "v[28:31]", "v1", SRD_X, 0, mods="offen offset:1024")
g("buffer_load_ushort", "v3", "v3", SRD_X, "s11", mods="offen")
g("buffer_load_dwordx4", "v[60:63]", "v2", SRD_WQ, "s12", mods=f"offen {wm}".strip())
pump(D - 1, pace=False)

if CFG["diag"]:
    g("s_memrealtime", "s[100:101]")
    g.wait(lgkm=0)
    g("s_mov_b32", "s15", "s100")

g("s_cmp_lg_u32", S_WAVE, 1)
g("s_cbranch_scc1", "L_noclear")
st_skip = g.save()
for r in range(4):
    g("v_mov_b32", f"v{8 + r}", -1)
g("s_lshl_b32", "s7", S_B, 7)
g("s_lshl_b32", "s8", S_H, 2)
g("s_add_u32", "s7", "s7", "s8")
g("s_add_u32", "s7", "s7", S_SPL)
g("s_lshl_b32", "s7", "s7", 11)
g("s_add_u32", "s7", "s7", hex(WS_Y))
g("buffer_store_dwordx4", "v[8:11]", "v1", SRD_WS, "s7", mods="offen sc1")
g("buffer_store_dwordx4", "v[8:11]", "v1", SRD_WS, "s7", mods="offen offset:1024 sc1")
g("s_mov_b64", "exec", "0xff")
g("ds_write_b128", "v1", "v[8:11]", mods=f"offset:{L_WST}")
g("s_cmp_lt_u32", "s2", 224)
g("s_cbranch_scc1", "L_noclrh")
g("s_lshl_b32", "s7", S_PI, 7)
g("s_add_u32", "s7", "s7", hex(WS_H))
g("buffer_store_dwordx4", "v[8:11]", "v1", SRD_WS, "s7", mods="offen sc1")
g.label("L_noclrh")
g("s_mov_b64", "exec", -1)
g("s_cmp_ge_u32", "s2", NFFN)
g("s_cbranch_scc1", "L_noclear")
st_skip2 = g.save()
g("s_lshl_b32", "s7", "s2", 12)
g("s_add_u32", "s7", "s7", hex(WS_F))
for k in range(4):
    g("buffer_store_dwordx4", "v[8:11]", "v1", SRD_WS, "s7",
      mods=f"offen offset:{k * 1024} sc1" if k else "offen sc1")
g.label("L_noclear")
g.merge(st_skip)
g.merge(st_skip2)
uids_before_clear_end = set(g.vm.keys())
g("v_mov_b32", "v22", 0)
g("v_mov_b32", "v23", 0)

srd(48, 20, 2 * 32 * 4096 * 128 * 2)
srd(56, 24, 4096 * 512 * 2)
srd(72, 28, 512 * 1376 * 2)
srd(76, 32, 1376 * 512 * 2)
srd(80, 30, 1376 * 2)
srd(84, 34, 512 * 2)
srd(88, 36, 2048)
if CFG["diag"]:
    g("s_mov_b32", f"s{STAMP0}", "s15")
    for i in range(1, 10):
        g("s_mov_b32", f"s{STAMP0 + i}", 0)
g("s_mov_b64", LIVE, -1)
if CFG["prio"]:
    for lvl in (1, 2, 3):
        lab = g.newlabel("Lprio")
        g("s_cmp_lt_u32", S_WAVE, 4 * lvl if CFG["prio"] == 1 else {1: 8, 2: 12, 3: 99}[lvl])
        g("s_cbranch_scc1", lab)
        g("s_setprio", lvl)
        g.label(lab)
g("s_mov_b32", S_LOG2E, "0x3fb8aa3b")
g("s_mov_b32", S_SCALE, "0x3db504f3")
g("s_lshl_b32", S_WO, S_H, 17)
g("s_lshr_b32", "s7", S_WAVE, 2)
g("s_lshl_b32", "s7", "s7", 15)
g("s_add_u32", S_WO, S_WO, "s7")
g("s_and_b32", "s7", S_WAVE, 3)
g("s_lshl_b32", "s7", "s7", 8)
g("s_add_u32", S_WO, S_WO, "s7")
for r in (16, 17, 18, 19, 20, 21, 52, 53, 54):
    g("v_mov_b32", f"v{r}", 0)
g("v_and_b32", "v12", 1, "v0")
g("v_lshlrev_b32", "v12", 4, "v12")
g("v_mov_b32", "v13", "0xffff")
g("v_lshlrev_b32", "v13", "v12", "v13")
g("v_bfe_u32", "v12", "v0", 1, 2)
for r in range(4):
    g("v_cmp_eq_u32", "vcc", r, "v12")
    g("v_cndmask_b32", f"v{4 + r}", 0, "v13", "vcc")

for b in range(2):
    for k in range(4):
        unpack(f"v{32 + 8 * b + 2 * k}", f"v{33 + 8 * b + 2 * k}", f"v{24 + 4 * b + k}")
for b in range(2):
    base = 32 + 8 * b
    g("v_add_f32", f"v{8 + b}", f"v{base}", f"v{base + 1}")
    g("v_add_f32", f"v{10 + b}", f"v{base + 2}", f"v{base + 3}")
    g("v_add_f32", f"v{12 + b}", f"v{base + 4}", f"v{base + 5}")
    g("v_add_f32", f"v{14 + b}", f"v{base + 6}", f"v{base + 7}")
for b in range(2):
    g("v_add_f32", f"v{8 + b}", f"v{8 + b}", f"v{10 + b}")
    g("v_add_f32", f"v{12 + b}", f"v{12 + b}", f"v{14 + b}")
for b in range(2):
    g("v_add_f32", f"v{8 + b}", f"v{8 + b}", f"v{12 + b}")
wave_reduce("v_add_f32", ["v8", "v9"])
g("v_readlane_b32", "s7", "v8", 63)
g("v_readlane_b32", "s8", "v9", 63)
pump(1)
g("s_cmp_lg_u32", S_WAVE, 1)
g("s_cbranch_scc1", "L_nn1")
st_skip = g.save()
g("buffer_load_dwordx2", "v[22:23]", "v20", SRD_DBG, 0, mods="offen sc1")
g.label("L_nn1")
g.merge(st_skip)
g("v_mov_b32", "v12", "0x3b000000")
g("v_mul_f32", "v16", "s7", "v12")
g("v_mul_f32", "v17", "s8", "v12")
for b in range(2):
    for k in range(8):
        g("v_sub_f32", f"v{32 + 8 * b + k}", f"v{32 + 8 * b + k}", f"v{16 + b}")
for b in range(2):
    g("v_mul_f32", f"v{8 + b}", f"v{32 + 8 * b}", f"v{32 + 8 * b}")
for k in range(1, 8):
    for b in range(2):
        g("v_fmac_f32", f"v{8 + b}", f"v{32 + 8 * b + k}", f"v{32 + 8 * b + k}")
wave_reduce("v_add_f32", ["v8", "v9"])
g("v_readlane_b32", "s7", "v8", 63)
g("v_readlane_b32", "s8", "v9", 63)
pump(1)
g("v_mul_f32", "v18", "s7", "v12")
g("v_mul_f32", "v19", "s8", "v12")
g("s_mov_b32", "s8", "0xff00ff00")
g("s_mov_b32", "s9", "0xff00ff00")
g("v_cndmask_b32", "v13", "v16", "v17", "s[8:9]")
g("v_cndmask_b32", "v14", "v18", "v19", "s[8:9]")
bf16r2("v13", "v14", "v15")
g("v_add_f32", "v14", "0x3727c5ac", "v14")
bf16r("v14", "v14")
g("v_sqrt_f32", "v14", "v14")
bf16r("v14", "v14")
g("v_rcp_f32", "v14", "v14")
g("v_lshlrev_b32", "v3", 16, "v3")
g("v_sub_f32", "v3", "v3", "v13")
bf16r("v3", "v3")
g("v_mul_f32", "v3", "v3", "v14")
g("v_cvt_pk_bf16_f32", "v16", "v3", "v3")
bmask_mfma("v[12:15]", "v[60:63]", "v16", True)
g("v_lshrrev_b32", "v16", 4, "v0")
g("v_and_b32", "v17", 7, "v0")
g("v_lshl_add_u32", "v16", "v16", 5, "v17")
g("v_bfe_u32", "v17", "v0", 3, 1)
g("v_lshl_add_u32", "v16", "v17", 7, "v16")
g("v_mul_u32_u24", "v16", PSTR, "v16")
g("s_lshl_b32", "s7", S_WAVE, 2)
g("v_add_u32", "v16", "s7", "v16")
for r in range(4):
    g("ds_write_b32", "v16", f"v{12 + r}", mods=f"offset:{L_PART + r * 8 * PSTR}")
pump(until=CFG["b1pos"])
pump(CFG["qx"], pace=False)
g("s_cmp_lg_u32", S_WAVE, 1)
g("s_cbranch_scc1", "L_clrok")
st_skip = g.save()
pend_clear = [v[0] for k, v in g.vm.items() if k in uids_before_clear_end]
if pend_clear:
    g.wait(vm=min(pend_clear))
g("v_cmp_ne_u32", "vcc", 0, "v23")
g("s_cmp_lg_u64", "vcc", 0)
g("s_cbranch_scc1", "L_nonceok")
st_ok = g.save()
g("s_mov_b32", S_IT, 0)
g.label("L_noncespin")
g("v_mov_b32", "v20", 0)
g("buffer_load_dwordx2", "v[22:23]", "v20", SRD_DBG, 0, mods="offen sc1")
g.wait(vm=0)
g("v_cmp_ne_u32", "vcc", 0, "v23")
g("s_cmp_lg_u64", "vcc", 0)
g("s_cbranch_scc1", "L_nonceok")
g("s_add_u32", S_IT, S_IT, 1)
g("s_cmp_lt_u32", S_IT, CFG["spin_limit"])
g("s_sleep", CFG["fspin"])
g("s_cbranch_scc1", "L_noncespin")
g.label("L_nonceok")
g.merge(st_ok)
g("v_mov_b32", "v20", 0)
g("s_mov_b64", "exec", 1)
g("ds_write_b64", "v20", "v[22:23]", mods=f"offset:{L_NONCE}")
g("s_mov_b64", "exec", -1)
g.label("L_clrok")
g.merge(st_skip)
g.wait(lgkm=0)
if not CFG["nob1"]:
    g("s_barrier")
g("v_mov_b32", "v20", 0)
g("ds_read_b64", "v[22:23]", "v20", mods=f"offset:{L_NONCE}")
g("v_readfirstlane_b32", N_LO, "v22")
g("v_readfirstlane_b32", N_HI, "v23")
g("s_cmp_lg_u32", S_WAVE, 2)
g("s_cbranch_scc1", "L_nopub")
st_skip = g.save()
g("v_mul_u32_u24", "v16", 4 * PSTR, "v0")
for half in range(2):
    for oo in range(2):
        for k in range(4):
            g("ds_read_b128", vr(32 + 16 * oo + 4 * k), "v16",
              mods=f"offset:{L_PART + (2 * half + oo) * PSTR + 16 * k}")
    for oo in range(2):
        tree_sum([f"v{32 + 16 * oo + k}" for k in range(16)])
        g("v_mov_b32", f"v{8 + 4 * half + oo}", f"v{32 + 16 * oo}")
    g("v_mov_b32", f"v{10 + 4 * half}", "v22")
    g("v_mov_b32", f"v{11 + 4 * half}", "v23")
g("s_lshl_b32", "s7", S_H, 14)
g("s_lshl_b32", "s8", S_B, 13)
g("s_add_u32", "s7", "s7", "s8")
g("s_lshl_b32", "s8", S_SPL, 11)
g("s_add_u32", "s7", "s7", "s8")
g("s_add_u32", "s7", "s7", hex(WS_QP))
g("buffer_store_dwordx4", "v[8:11]", "v1", SRD_WS, "s7", mods="offen sc1")
g("buffer_store_dwordx4", "v[12:15]", "v1", SRD_WS, "s7", mods="offen offset:1024 sc1")
g.label("L_nopub")
g.merge(st_skip)

pump(until=CFG["drypos"])
SEGS = ["A", "B", "C", "D", "E", "F", "G", "H", "I", "J"]
if CFG["dry"]:
    pump(1, pace=False)
    g.flush_hazards()
    g("s_mov_b64", LIVE, 0)
    g("s_mov_b64", "exec", 0)
    for n, sg in enumerate(SEGS):
        g("s_cmp_eq_u32", S_WAVE, n + 4)
        g("s_cbranch_scc1", f"L_seg{sg}")
    g.label("L_dryret")
    g("s_mov_b64", LIVE, -1)
    g("s_mov_b64", "exec", -1)
    g.wait(lgkm=0)
    g.nop(10)

GW = 3 if not CFG["nob2"] else 99


def q_loads():
    g("s_lshl_b32", "s7", S_H, 14)
    g("s_lshl_b32", "s8", S_B, 9)
    g("s_add_u32", "s7", "s7", "s8")
    g("s_add_u32", "s7", "s7", hex(WS_QP))
    for u in range(4):
        for part in range(2):
            g("buffer_load_dwordx4", vr(32 + 8 * u + 4 * part), "v12", SRD_WS, "s7",
              mods=f"offen offset:{part * 1024} sc1" if part else "offen sc1")
        if u < 3:
            g("s_add_u32", "s7", "s7", 4096)


def q_check():
    for k in range(8):
        g("v_xor_b32", f"v{16 + k}", N_LO, f"v{34 + 4 * k}")
        g("v_xor_b32", f"v{24 + k}", N_HI, f"v{35 + 4 * k}")
    for k in range(0, 16, 4):
        g("v_or3_b32", f"v{16 + k}", f"v{16 + k}", f"v{17 + k}", f"v{18 + k}")
    for k in range(0, 16, 4):
        g("v_or_b32", f"v{16 + k}", f"v{16 + k}", f"v{19 + k}")
    g("v_or3_b32", "v16", "v16", "v20", "v24")
    g("v_or_b32", "v16", "v16", "v28")
    g("v_cmp_ne_u32", "vcc", 0, "v16")
    g("s_cmp_eq_u64", "vcc", 0)


pump(until=CFG["gpos"])
g("s_cmp_lg_u32", S_WAVE, GW)
g("s_cbranch_scc1", "L_g1")
st_skip = g.save()
g("v_lshrrev_b32", "v12", 5, "v0")
g("v_and_b32", "v13", 31, "v0")
g("v_lshlrev_b32", "v13", 4, "v13")
g("v_lshl_add_u32", "v12", "v12", 11, "v13")
q_loads()
g.label("L_g1")
g.merge(st_skip)
pump(CFG["gdly"])
g("s_cmp_lg_u32", S_WAVE, GW)
g("s_cbranch_scc1", "L_nogather")
st_skip = g.save()
q_check()
g("s_cbranch_scc1", "L_qok")
st_ok = g.save()
g("s_mov_b32", S_IT, 0)
g.label("L_qspin")
q_loads()
g.wait(vm=0)
q_check()
g("s_cbranch_scc1", "L_qok")
g("s_add_u32", S_IT, S_IT, 1)
g("s_cmp_lt_u32", S_IT, CFG["spin_limit"])
g("s_sleep", CFG["fspin"])
g("s_cbranch_scc1", "L_qspin")
g.label("L_qok")
g.merge(st_ok)
CI = [0, 1, 4, 5]
for r in range(4):
    g("v_add_f32", f"v{16 + r}", f"v{32 + CI[r]}", f"v{40 + CI[r]}")
    g("v_add_f32", f"v{20 + r}", f"v{48 + CI[r]}", f"v{56 + CI[r]}")
for r in range(4):
    g("v_add_f32", f"v{16 + r}", f"v{16 + r}", f"v{20 + r}")
for r in range(4):
    g("v_mov_b32", f"v{20 + r}", f"v{16 + r}")
for r in range(4):
    g("v_permlane32_swap_b32", f"v{16 + r}", f"v{20 + r}")
for r in range(4):
    g("v_add_f32", f"v{16 + r}", f"v{16 + r}", f"v{20 + r}")
g("v_cvt_pk_bf16_f32", "v14", "v16", "v17")
g("v_cvt_pk_bf16_f32", "v15", "v18", "v19")
g("v_lshrrev_b32", "v13", 1, "v13")
g("ds_write_b64", "v13", "v[14:15]", mods=f"offset:{L_QB}")
g.label("L_nogather")
g.merge(st_skip)
freed.add("QDONE")
pump(until=CFG["qbar"])
pump(CFG["qx"], pace=False)
g.wait(lgkm=0)
if not CFG["nob2"]:
    g("s_barrier")
g("v_and_b32", "v12", 15, "v0")
g("v_lshlrev_b32", "v12", 4, "v12")
g("ds_read_b128", "v[8:11]", "v12", mods=f"offset:{L_QB}")
stamp(1)

for G in range(4):
    tgt = 4 * G + 3 + D
    nm = f"K{tgt}" if tgt < 16 else f"V{tgt - 16}"
    pump(until=nm)
    for step in range(4 if not CFG["nokc"] else 1):
        for u in range(4):
            i = 4 * G + u
            g("v_dot2_f32_bf16", f"v{16 + i}", f"v{64 + 4 * i + step}", f"v{8 + step}",
              "0" if step == 0 else f"v{16 + i}")
    for u in range(4):
        freed.add(f"K{4 * G + u}")
    pump(1)
    for sh in ((8, 4, 2, 1) if not CFG["nokc"] else ()):
        for u in range(4):
            i = 4 * G + u
            g("v_add_f32_dpp", f"v{16 + i}", f"v{16 + i}", f"v{16 + i}", mods=f"row_ror:{sh} {DPPF}")
    for u in (0, 2):
        i = 4 * G + u
        bf16r2(f"v{16 + i}", f"v{17 + i}", f"v{12 + u}")
    for u in range(4):
        i = 4 * G + u
        g("v_mul_f32", f"v{16 + i}", S_SCALE, f"v{16 + i}")
    for u in (0, 2):
        i = 4 * G + u
        bf16r2(f"v{16 + i}", f"v{17 + i}", f"v{12 + u}")

pump(1)
g("v_max3_f32", "v12", "v16", "v17", "v18")
g("v_max3_f32", "v13", "v19", "v20", "v21")
g("v_max3_f32", "v14", "v22", "v23", "v24")
g("v_max3_f32", "v15", "v25", "v26", "v27")
g("v_max3_f32", "v12", "v12", "v28", "v29")
g("v_max3_f32", "v13", "v13", "v30", "v31")
g("v_max3_f32", "v12", "v12", "v13", "v14")
g("v_max_f32", "v12", "v12", "v15")
for k in range(4):
    g("v_readlane_b32", f"s{8 + k}", "v12", 16 * k)
g("v_mov_b32", "v12", "s8")
g("v_max_f32", "v12", "s9", "v12")
g("v_max_f32", "v12", "s10", "v12")
g("v_max_f32", "v12", "s11", "v12")
g("v_mul_f32", "v12", S_LOG2E, "v12")
for i in range(16):
    g("v_fma_f32", f"v{16 + i}", f"v{16 + i}", S_LOG2E, "-v12")
for i in range(16):
    g("v_exp_f32", f"v{16 + i}", f"v{16 + i}")
pump(1)
g("v_readfirstlane_b32", S_M, "v12")
g("v_add_f32", "v8", "v16", "v17")
g("v_add_f32", "v9", "v18", "v19")
g("v_add_f32", "v10", "v20", "v21")
g("v_add_f32", "v11", "v22", "v23")
g("v_add_f32", "v13", "v24", "v25")
g("v_add_f32", "v14", "v26", "v27")
g("v_add_f32", "v8", "v8", "v28")
g("v_add_f32", "v9", "v9", "v29")
g("v_add_f32", "v10", "v10", "v30")
g("v_add_f32", "v11", "v11", "v31")
tree_sum(["v8", "v9", "v10", "v11", "v13", "v14"])
for k in range(4):
    g("v_readlane_b32", f"s{8 + k}", "v8", 16 * k)
g("v_mov_b32", "v13", "s8")
g("v_add_f32", "v13", "s9", "v13")
g("v_add_f32", "v13", "s10", "v13")
g("v_add_f32", "v13", "s11", "v13")
g("s_lshl_b32", "s8", S_WAVE, 3)
g("v_mov_b32", "v8", "s8")
g("s_mov_b64", "exec", 1)
g("ds_write_b64", "v8", "v[12:13]", mods=f"offset:{L_WST}")
g("s_mov_b64", "exec", -1)
for i in range(16):
    g("v_cvt_pk_bf16_f32", f"v{16 + i}", f"v{16 + i}", f"v{16 + i}")
stamp(2)


def factor():
    g("v_and_b32", "v3", 15, "v0")
    g("v_lshlrev_b32", "v3", 3, "v3")
    g("s_mov_b32", S_IT, 0)
    g.flush_hazards()
    g.label("L_stspin")
    g("ds_read_b64", "v[32:33]", "v3", mods=f"offset:{L_WST}")
    g.wait(lgkm=0)
    g("v_max_u32", "v34", "v32", "v33")
    g("v_cmp_eq_u32", "vcc", -1, "v34")
    g("s_add_u32", S_IT, S_IT, 1)
    g("s_cmp_eq_u64", "vcc", 0)
    g("s_cbranch_scc1", "L_stok")
    g("s_cmp_lt_u32", S_IT, CFG["spin_limit"])
    g("s_sleep", 1)
    g("s_cbranch_scc1", "L_stspin")
    g.label("L_stok")
    g("v_mov_b32", "v40", "v32")
    for sh in (8, 4, 2, 1):
        g("v_max_f32_dpp", "v40", "v40", "v40", mods=f"row_ror:{sh} {DPPF}")
    g("v_sub_f32", "v41", "v32", "v40")
    g("v_exp_f32", "v41", "v41")
    g("v_sub_f32", "v35", S_M, "v40")
    g("v_mul_f32", "v41", "v41", "v33")
    g("v_exp_f32", "v35", "v35")
    for sh in (8, 4, 2, 1):
        g("v_add_f32_dpp", "v41", "v41", "v41", mods=f"row_ror:{sh} {DPPF}")
    g("s_cmp_lg_u32", S_WAVE, 0)
    g("s_cbranch_scc1", "L_nostat")
    st_skip = g.save()
    g("v_mov_b32", "v42", N_LO)
    g("v_mov_b32", "v43", N_HI)
    g("s_lshl_b32", "s7", S_B, 7)
    g("s_lshl_b32", "s8", S_H, 2)
    g("s_add_u32", "s7", "s7", "s8")
    g("s_add_u32", "s7", "s7", S_SPL)
    g("s_lshl_b32", "s7", "s7", 4)
    g("v_mov_b32", "v34", 0)
    g("s_mov_b64", "exec", 1)
    g("buffer_store_dwordx4", "v[40:43]", "v34", SRD_WS, "s7", mods="offen sc1")
    g("s_mov_b64", "exec", -1)
    g.label("L_nostat")
    g.merge(st_skip)
    g("v_lshrrev_b32", "v39", 4, "v0")
    g("v_and_b32", "v37", 15, "v0")
    g("v_lshl_add_u32", "v36", "v39", 5, "v37")
    g("v_mul_u32_u24", "v36", PSTR, "v36")
    g("s_lshl_b32", "s7", S_WAVE, 2)
    g("v_add_u32", "v36", "s7", "v36")
    g("v_lshlrev_b32", "v38", 4, "v37")
    g("v_lshl_add_u32", "v38", "v39", 7, "v38")
    g("s_lshr_b32", "s7", S_WAVE, 2)
    g("s_lshl_b32", "s7", "s7", 11)
    g("s_and_b32", "s10", S_WAVE, 3)
    g("s_lshl_b32", "s10", "s10", 9)
    g("s_add_u32", "s7", "s7", "s10")
    g("v_add_u32", "v38", "s7", "v38")
    g("v_and_b32", "v37", 7, "v0")
    g("v_lshl_add_u32", "v37", "v39", 3, "v37")
    g("s_lshr_b32", "s7", S_WAVE, 2)
    g("s_lshl_b32", "s7", "s7", 5)
    g("v_add_u32", "v37", "s7", "v37")
    g("v_mul_u32_u24", "v37", PSTR, "v37")
    g("s_mov_b32", "s14", "0x00ff00ff")
    g("s_mov_b32", "s15", "0x00ff00ff")


names = [e[0] for e in stream]
for i in range(16):
    tgt = i + D
    while tgt < 16 and tgt + 1 < 16 + 8:
        nxt = tgt + 1
        if nxt < 16 and stream[names.index(f"V{nxt}")][3] >= nxt - i and stream[names.index(f"V{nxt}")][3] > D + CFG["DW"]:
            tgt = nxt
        else:
            break
    if tgt < 16:
        pump(until=f"V{tgt}")
    else:
        pump(100)
    bmask_mfma("v[12:15]", vr(vreg(i)), f"v{16 + i}", i == 0)
    freed.add(f"PV{i}")
    if i == CFG["stuse"]:
        factor()
    if i == CFG["rchk"]:
        g("s_cmp_lt_u32", "s2", 224)
        g("s_cbranch_scc1", "L_norchk")
        st_skip = g.save()
        g("v_lshrrev_b32", "v52", 3, "v0")
        g("s_lshl_b32", "s7", S_WAVE, 3)
        g("v_add_u32", "v52", "s7", "v52")
        g("v_and_b32", "v53", 7, "v52")
        g("v_bfe_u32", "v54", "v52", 3, 2)
        g("v_lshl_add_u32", "v53", "v53", 2, "v54")
        g("v_lshrrev_b32", "v54", 5, "v52")
        g("v_lshl_add_u32", "v53", "v53", 2, "v54")
        g("v_lshlrev_b32", "v53", 4, "v53")
        g("v_lshlrev_b32", "v54", 4, "v52")
        g("s_lshr_b32", "s7", S_PI, 4)
        g("s_lshl_b32", "s7", "s7", 11)
        g("v_add_u32", "v54", "s7", "v54")
        g("buffer_load_dwordx4", "v[56:59]", "v53", SRD_WS, 0, mods="offen sc1")
        g("buffer_load_dwordx4", "v[60:63]", "v54", SRD_WS, 0, mods="offen sc1")
        g.label("L_norchk")
        g.merge(st_skip)
pump(100)
assert spos[0] == len(stream)
stamp(3)

g.dry_guard = True
g.label("L_segA")
for r in range(4):
    g("v_mul_f32", f"v{12 + r}", f"v{12 + r}", "v35")
setexec("s[14:15]")
for r in range(4):
    g("ds_write_b32", "v36", f"v{12 + r}", mods=f"offset:{L_PART + r * 8 * PSTR}")
setexec(-1)
g.wait(lgkm=0)
barrier()
stamp(4)
for k in range(4):
    g("ds_read_b128", vr(64 + 4 * k), "v37", mods=f"offset:{L_PART + 16 * k}")
tree_sum([f"v{64 + k}" for k in range(16)])
g("v_cvt_pk_bf16_f32", "v40", "v64", "v64")
seg_end()
g.label("L_segB")
for i in range(8):
    bmask_mfma("v[12:15]", vr(96 + 4 * i), "v40", i == 0, bcast=i)
setexec("s[14:15]")
g("ds_write_b128", "v38", "v[12:15]", mods=f"offset:{L_YP}")
setexec(-1)
g.wait(lgkm=0)
barrier()
seg_end()
g("s_cmp_lt_u32", S_WAVE, 2)
g("s_cbranch_scc1", "L_segG")
st_y = g.save()
g("s_cmp_ge_u32", "s2", 224)
g("s_cbranch_scc1", "L_segH")
g("s_cmp_ge_u32", "s2", NFFN)
g("s_cbranch_scc1", "L_fin")
g("s_cmp_lt_u32", S_WAVE, 4)
g("s_cbranch_scc1", "L_fin")
g("s_cmp_gt_u32", S_WAVE, 8)
g("s_cbranch_scc1", "L_fin")
g("s_cmp_eq_u32", S_WAVE, 8)
g("s_cbranch_scc1", "L_segF")
st_stat = g.save()

g.label("L_segC")
TQ = T[12]
g("s_and_b32", TQ, S_WAVE, 3)
g("v_lshrrev_b32", "v18", 4, "v0")
g("v_and_b32", "v20", 1, "v0")
g("v_lshlrev_b32", "v20", 10, "v20")
g("v_lshl_add_u32", "v20", "v18", 4, "v20")
g("s_lshl_b32", T[8], TQ, 8)
g("v_add_u32", "v20", T[8], "v20")
g("v_and_b32", "v21", 3, "v0")
g("v_lshlrev_b32", "v21", 4, "v21")
g("v_bfe_u32", "v22", "v0", 2, 2)
g("v_lshl_add_u32", "v21", "v22", 2, "v21")
g("s_lshl_b32", T[8], TQ, 6)
g("v_add_u32", "v22", T[8], "v21")
g("s_lshl_b32", T[8], TQ, 7)
g("v_add_u32", "v21", T[8], "v21")
g("v_bfe_u32", "v23", "v0", 3, 1)
g("v_lshlrev_b32", "v28", 3, "v23")
g("v_lshlrev_b32", "v23", 6, "v23")
g("v_lshl_add_u32", "v23", "v18", 4, "v23")
g("v_lshlrev_b32", "v19", 4, "v18")
g("v_bfe_u32", "v29", "v0", 3, 1)
g("v_lshlrev_b32", "v29", 11, "v29")
g("v_lshl_add_u32", "v29", "v18", 7, "v29")
g("v_and_b32", "v30", 7, "v0")
g("v_lshl_add_u32", "v29", "v30", 4, "v29")
g("s_lshl_b32", T[11], "s2", 12)
g("s_lshl_b32", T[9], TQ, 9)
g("s_add_u32", T[11], T[11], T[9])
g("s_add_u32", T[11], T[11], hex(WS_F))
g("v_bfe_u32", "v31", "v0", 2, 2)
g("v_lshlrev_b32", "v31", 8, "v31")
g("v_lshl_add_u32", "v31", "v18", 6, "v31")
g("v_and_b32", "v17", 3, "v0")
g("v_lshl_add_u32", "v31", "v17", 3, "v31")
g("s_lshl_b32", T[8], TQ, 12)
g("v_add_u32", "v31", T[8], "v31")
for r in range(4):
    g("v_mov_b32", f"v{8 + r}", "0x3f803f80")
g("v_lshrrev_b32", "v16", 1, "v0")
g("s_movk_i32", T[8], 2752)
g("v_mul_lo_u32", "v16", "v16", T[8])
g("v_and_b32", "v17", 1, "v0")
g("v_lshl_add_u32", "v16", "v17", 4, "v16")
g("s_mul_i32", T[8], TQ, 128 * 2752)
g("s_lshl_b32", T[9], "s2", 5)
g("s_add_u32", T[8], T[8], T[9])
g("s_lshl_b32", T[9], TQ, 12)
g("s_add_u32", T[9], T[9], L_W1)
if CFG["zsleep"]:
    g("s_sleep", CFG["zsleep"])
for k in range(4):
    g("s_mov_b32", "m0", T[9])
    g("buffer_load_dwordx4", "v16", SRD_W1, T[8], mods="offen lds")
    if k < 3:
        g("s_add_u32", T[8], T[8], 32 * 2752)
        g("s_add_u32", T[9], T[9], 1024)
g("v_and_b32", "v17", 15, "v0")
g("v_lshlrev_b32", "v17", 4, "v17")
g("v_lshl_add_u32", "v17", "v18", 10, "v17")
g("s_lshl_b32", T[8], "s2", 14)
g("s_lshl_b32", T[9], TQ, 8)
g("s_add_u32", T[8], T[8], T[9])
for i in range(4):
    g("buffer_load_dwordx4", vr(48 + 4 * i), "v17", SRD_W2, T[8], mods="offen")
    if i < 3:
        g("s_add_u32", T[8], T[8], 4096)
g("v_lshlrev_b32", "v17", 1, "v18")
g("s_lshl_b32", T[8], "s2", 5)
for i in range(4):
    g("buffer_load_ushort", f"v{24 + i}", "v17", SRD_B1, T[8], mods=f"offen offset:{8 * i}" if i else "offen")
g.wait(vm=0)
g("s_cbranch_execz", "L_c3")
for tt in range(4):
    for hh in range(2):
        g("ds_read_b64_tr_b16", vr(64 + 4 * tt + 2 * hh, 2), "v31",
          mods=f"offset:{L_W1 + tt * 1024 + hh * 32}")
g.label("L_c3")
for tt in range(4):
    g("v_mfma_f32_16x16x32_bf16", "v[12:15]", "v[8:11]", vr(64 + 4 * tt), "0" if tt == 0 else "v[12:15]")
for i in range(4):
    g("v_lshlrev_b32", f"v{24 + i}", 16, f"v{24 + i}")
setexec("0xffff")
g("ds_write_b32", "v22", "v12", mods=f"offset:{L_CS}")
setexec(-1)
g.wait(lgkm=0)
seg_end()
g.label("L_segD")
barrier()
for tt in range(4):
    g("ds_read_b128", vr(32 + 4 * tt), "v20", mods=f"offset:{L_HN + tt * 64}")
for q in range(4):
    g("ds_read_b128", vr(80 + 4 * q), "v19", mods=f"offset:{L_CS + 64 * q}")
for tt in range(4):
    g("v_mfma_f32_16x16x32_bf16", "v[12:15]", vr(32 + 4 * tt), vr(64 + 4 * tt), "0" if tt == 0 else "v[12:15]")
for i in range(4):
    g("v_add_f32", f"v{80 + i}", f"v{80 + i}", f"v{84 + i}")
    g("v_add_f32", f"v{88 + i}", f"v{88 + i}", f"v{92 + i}")
for i in range(4):
    g("v_add_f32", f"v{80 + i}", f"v{80 + i}", f"v{88 + i}")
setexec("0xffff")
g("ds_write_b32", "v21", "v12", mods=f"offset:{L_ZP}")
g("ds_write_b32", "v21", "v13", mods=f"offset:{L_ZP + 64}")
setexec(-1)
K1 = -2.0 * 0.7978845608028654 * 1.4426950408889634
K3 = K1 * 0.044715
g("s_mov_b32", T[8], f32hex(K3))
g("v_mov_b32", "v31", f32hex(K1))
g.wait(lgkm=0)
barrier()
seg_end()
g.label("L_segE")
for q in range(4):
    g("ds_read_b128", vr(96 + 4 * q), "v23", mods=f"offset:{L_ZP + 128 * q}")
g("ds_read_b64", "v[112:113]", "v28", mods=f"offset:{L_STAT}")
for i in range(4):
    g("v_add_f32", f"v{96 + i}", f"v{96 + i}", f"v{100 + i}")
    g("v_add_f32", f"v{104 + i}", f"v{104 + i}", f"v{108 + i}")
Z = [f"v{96 + i}" for i in range(4)]
TT_ = [f"v{100 + i}" for i in range(4)]
for i in range(4):
    g("v_add_f32", Z[i], Z[i], f"v{104 + i}")
for i in range(4):
    g("v_fma_f32", Z[i], "-v112", f"v{80 + i}", Z[i])
for i in range(4):
    g("v_mul_f32", Z[i], Z[i], "v113")
bf16r2(Z[0], Z[1], TT_[0])
bf16r2(Z[2], Z[3], TT_[1])
for i in range(4):
    g("v_add_f32", Z[i], Z[i], f"v{24 + i}")
bf16r2(Z[0], Z[1], TT_[0])
bf16r2(Z[2], Z[3], TT_[1])
for i in range(4):
    g("v_mul_f32", TT_[i], Z[i], Z[i])
for i in range(4):
    g("v_fma_f32", TT_[i], TT_[i], T[8], "v31")
for i in range(4):
    g("v_mul_f32", TT_[i], TT_[i], Z[i])
for i in range(4):
    g("v_exp_f32", TT_[i], TT_[i])
for i in range(4):
    g("v_add_f32", TT_[i], 1.0, TT_[i])
for i in range(4):
    g("v_rcp_f32", TT_[i], TT_[i])
for i in range(4):
    g("v_mul_f32", Z[i], Z[i], TT_[i])
for i in range(4):
    g("v_cvt_pk_bf16_f32", Z[i], Z[i], Z[i])
for i in range(4):
    bmask_mfma("v[12:15]", vr(48 + 4 * i), Z[i], i == 0)
g("buffer_store_dwordx4", "v[12:15]", "v29", SRD_WS, T[11], mods="offen sc1")
stamp(8)
seg_end()
g("s_branch", "L_fin")

g.label("L_segF")
g.restore(st_stat)
g("s_mov_b32", T[8], hex(WS_H))
g("v_mov_b32", "v28", 0)
g("v_lshlrev_b32", "v29", 3, "v0")
g("v_and_b32", "v30", 31, "v0")
g("v_lshlrev_b32", "v30", 6, "v30")
g("s_movk_i32", T[9], (128 + 3) * 16)
poll_tag(32, "v30", T[9], full)
if CFG["rep"]:
    poll_one("v1", T[8], 1 << 21, imm=2048)
poll_gather([32, 36, 40, 44], ["v1"] * 4, T[8], [full] * 4, imm=[0, 1024, 2048, 3072], slp=CFG["hsleep"])
stamp(7)
for k in range(8):
    g("v_cvt_pk_bf16_f32", f"v{16 + k}", f"v{32 + 2 * k}", f"v{33 + 2 * k}")
for b in range(2):
    g("ds_write_b64", "v29", vr(16 + 4 * b, 2), mods=f"offset:{L_HN + b * 1024}")
    g("ds_write_b64", "v29", vr(18 + 4 * b, 2), mods=f"offset:{L_HN + b * 1024 + 512}")
for b in range(2):
    g("v_readlane_b32", T[b], f"v{32 + 8 * b}", 0)
g.wait(lgkm=0)
barrier()
for b in range(2):
    for k in range(8):
        g("v_subrev_f32", f"v{32 + 8 * b + k}", T[b], f"v{32 + 8 * b + k}")
for b in range(2):
    base = 32 + 8 * b
    s1, s2 = f"v{8 + 2 * b}", f"v{9 + 2 * b}"
    g("v_add_f32", s1, f"v{base}", f"v{base + 1}")
    g("v_mul_f32", s2, f"v{base}", f"v{base}")
    g("v_fmac_f32", s2, f"v{base + 1}", f"v{base + 1}")
for k in range(2, 8):
    for b in range(2):
        base = 32 + 8 * b
        s1, s2 = f"v{8 + 2 * b}", f"v{9 + 2 * b}"
        g("v_add_f32", s1, s1, f"v{base + k}")
        g("v_fmac_f32", s2, f"v{base + k}", f"v{base + k}")
wave_reduce("v_add_f32", ["v8", "v9", "v10", "v11"])
g("v_mov_b32", "v12", "0x3b000000")
MU = ["v8", "v10"]
VA = ["v9", "v11"]
for b in range(2):
    g("v_mul_f32", MU[b], MU[b], "v12")
    g("v_mul_f32", VA[b], VA[b], "v12")
for b in range(2):
    g("v_fma_f32", VA[b], f"-{MU[b]}", MU[b], VA[b])
    g("v_add_f32", MU[b], T[b], MU[b])
for b in range(2):
    g("v_max_f32", VA[b], 0, VA[b])
for b in range(2):
    bf16r2(MU[b], VA[b], f"v{13 + b}")
for b in range(2):
    g("v_add_f32", VA[b], "0x3727c5ac", VA[b])
for b in range(2):
    bf16r(VA[b], VA[b])
for b in range(2):
    g("v_sqrt_f32", VA[b], VA[b])
for b in range(2):
    bf16r(VA[b], VA[b])
for b in range(2):
    g("v_rcp_f32", VA[b], VA[b])
g("s_mov_b32", T[0], 0)
g("s_brev_b32", T[1], 1)
g("s_and_b64", "exec", LIVE, f"s[{T[0][1:]}:{T[1][1:]}]")
g("ds_write_b128", "v28", "v[8:11]", mods=f"offset:{L_STAT}")
setexec(-1)
g.wait(lgkm=0)
barrier()
seg_end()
g("s_branch", "L_fin")

g.label("L_segG")
g.restore(st_y)
g("s_lshl_b32", T[8], S_WAVE, 10)
g("v_add_u32", "v16", T[8], "v1")
for k in range(4):
    g("ds_read_b128", vr(32 + 4 * k), "v16", mods=f"offset:{L_YP + 2048 * k}")
g("s_lshl_b32", T[8], S_B, 7)
g("s_lshl_b32", T[9], S_H, 2)
g("s_add_u32", T[8], T[8], T[9])
g("s_add_u32", T[8], T[8], S_SPL)
g("s_lshl_b32", T[8], T[8], 11)
g("s_add_u32", T[8], T[8], hex(WS_Y))
for r in range(4):
    g("v_add_f32", f"v{32 + r}", f"v{32 + r}", f"v{36 + r}")
    g("v_add_f32", f"v{40 + r}", f"v{40 + r}", f"v{44 + r}")
for r in range(4):
    g("v_add_f32", f"v{32 + r}", f"v{32 + r}", f"v{40 + r}")
g("buffer_store_dwordx4", "v[32:35]", "v16", SRD_WS, T[8], mods="offen sc1")
stamp(5)
seg_end()
g("s_cmp_lt_u32", "s2", 224)
g("s_cbranch_scc1", "L_fin")


def xlane_sum(base, tmp):
    for r in range(4):
        g("v_add_f32_dpp", f"v{base + r}", f"v{base + r}", f"v{base + r}", mods=f"row_ror:8 {DPPF}")
    for op in ("v_permlane16_swap_b32", "v_permlane32_swap_b32"):
        for r in range(4):
            g("v_mov_b32", f"v{tmp + r}", f"v{base + r}")
        for r in range(4):
            g(op, f"v{base + r}", f"v{tmp + r}")
        for r in range(4):
            g("v_add_f32", f"v{base + r}", f"v{base + r}", f"v{tmp + r}")


g.label("L_segH")
g.merge(st_y)
TB, TK, TX = T[10], T[11], T[12]
g("s_lshr_b32", TB, S_PI, 4)
g("s_and_b32", TK, S_PI, 15)
g("v_lshrrev_b32", "v18", 3, "v0")
g("v_and_b32", "v19", 7, "v0")
g("v_lshlrev_b32", "v19", 4, "v19")
g("v_lshl_add_u32", "v16", "v18", 11, "v19")
g("v_lshl_add_u32", "v17", "v18", 12, "v19")
g("s_lshl_b32", T[8], S_WAVE, 7)
g("v_add_u32", "v19", T[8], "v19")
g("v_and_b32", "v23", 31, "v0")
g("v_lshlrev_b32", "v25", 2, "v23")
g("v_lshrrev_b32", "v24", 5, "v0")
g("v_lshl_add_u32", "v24", "v24", 10, "v25")
g("v_and_b32", "v20", 3, "v23")
g("v_lshlrev_b32", "v20", 4, "v20")
g("v_lshrrev_b32", "v23", 2, "v23")
g("v_lshl_add_u32", "v20", "v23", 1, "v20")
g("s_lshl_b32", TX, TK, 6)
g("buffer_load_ushort", "v22", "v20", SRD_B2, TX, mods="offen")
g("s_lshl_b32", T[8], TB, 10)
g("s_add_u32", TX, TX, T[8])
g("buffer_load_ushort", "v21", "v20", SRD_X, TX, mods="offen")
g("s_lshl_b32", T[8], TB, 18)
g("s_lshl_b32", T[9], S_WAVE, 14)
g("s_add_u32", T[8], T[8], T[9])
g("s_lshl_b32", T[9], TK, 7)
g("s_add_u32", T[8], T[8], T[9])
g("s_add_u32", T[8], T[8], hex(WS_Y))
g("v_cmp_gt_u32", "vcc", NFFN, "v52")
g("s_mov_b32", T[9], 0)
g.wait_regs("v[56:63]")
st_pre = g.save()
poll_tag(56, "v53", T[9], "vcc", pre=True)
poll_tag(60, "v54", T[9], full, pre=True)
g.merge(st_pre)
g("v_mov_b32", "v44", "v60")
g("v_mov_b32", "v45", "v61")
g("v_mov_b32", "v46", "v44")
g("v_max_f32_dpp", "v46", "v46", "v46", mods=f"row_ror:8 {DPPF}")
g("v_mov_b32", "v47", "v46")
g("v_permlane16_swap_b32", "v46", "v47")
g("v_max_f32", "v46", "v46", "v47")
g("v_sub_f32", "v44", "v44", "v46")
g("v_exp_f32", "v44", "v44")
g("v_mul_f32", "v45", "v45", "v44")
g("v_add_f32_dpp", "v45", "v45", "v45", mods=f"row_ror:8 {DPPF}")
g("v_mov_b32", "v47", "v45")
g("v_permlane16_swap_b32", "v45", "v47")
g("v_add_f32", "v45", "v45", "v47")
g("v_rcp_f32", "v45", "v45")
g("v_mul_f32", "v44", "v44", "v45")
poll_gather([32], ["v16"], T[8], [full], slp=CFG["ysleep"])
for r in range(4):
    g("v_mul_f32", f"v{32 + r}", f"v{32 + r}", "v44")
xlane_sum(32, 36)
setexec("0xff")
g("ds_write_b128", "v19", "v[32:35]", mods=f"offset:{L_PART}")
setexec(-1)
for r in range(4):
    g("v_mov_b32", f"v{40 + r}", 0)
g("s_lshl_b32", T[8], S_WAVE, 15)
g("s_lshl_b32", T[9], S_PI, 7)
g("s_add_u32", T[8], T[8], T[9])
g("s_add_u32", T[8], T[8], hex(WS_F))
g.wait(lgkm=0)
barrier()
seg_end()
g("s_cmp_gt_u32", S_WAVE, 10)
g("s_cbranch_scc1", "L_fin")
g("s_cmp_lg_u32", S_WAVE, 0)
g("s_cbranch_scc1", "L_segJ")
st_j = g.save()
g.label("L_segI")
stamp(6)
for k in range(8):
    g("ds_read_b32", f"v{32 + k}", "v24", mods=f"offset:{L_PART + 128 * k}")
g("v_lshlrev_b32", "v21", 16, "v21")
g("v_lshlrev_b32", "v22", 16, "v22")
g("s_lshl_b32", T[9], S_PI, 7)
g("s_add_u32", T[9], T[9], hex(WS_H))
tree_sum([f"v{32 + k}" for k in range(8)])
g("v_mov_b32", "v33", "v32")
g("v_permlane32_swap_b32", "v32", "v33")
g("v_add_f32", "v32", "v32", "v33")
bf16r("v32", "v32")
g("v_add_f32", "v26", "v32", "v21")
bf16r("v26", "v26")
setexec("0xffffffff")
g("buffer_store_dword", "v26", "v25", SRD_WS, T[9], mods="offen sc1")
setexec(-1)
seg_end()
g.label("L_segJ")
g.merge(st_j)
g("s_lshl_b32", T[9], S_WAVE, 3)
g("v_add_u32", "v27", T[9], "v18")
g("v_cmp_gt_u32", "vcc", NFFN, "v27")
poll_gather([40], ["v17"], T[8], ["vcc"], slp=CFG["fsleep"])
xlane_sum(40, 36)
setexec("0xff")
g("ds_write_b128", "v19", "v[40:43]", mods=f"offset:{L_PART + 2048}")
setexec(-1)
g.wait(lgkm=0)
barrier()
g("s_cbranch_execz", "L_j2")
g("s_cmp_lg_u32", S_WAVE, 0)
g("s_cbranch_scc1", "L_fin")
g.label("L_j2")
g("v_lshrrev_b32", "v27", 5, "v0")
g("v_mul_u32_u24", "v27", 768, "v27")
g("v_add_u32", "v27", "v27", "v25")
for k in range(6):
    g("ds_read_b32", f"v{32 + k}", "v27", mods=f"offset:{L_PART + 2048 + 128 * k}")
g("s_mov_b32", T[0], -1)
g("s_mov_b32", T[1], 0)
g("v_cndmask_b32", "v37", 0, "v37", f"s[{T[0][1:]}:{T[1][1:]}]")
tree_sum([f"v{32 + k}" for k in range(6)])
g("v_mov_b32", "v33", "v32")
g("v_permlane32_swap_b32", "v32", "v33")
g("v_add_f32", "v32", "v32", "v33")
bf16r("v32", "v32")
g("v_add_f32", "v32", "v32", "v22")
bf16r("v32", "v32")
g("v_add_f32", "v32", "v32", "v26")
g("v_cvt_pk_bf16_f32", "v32", "v32", "v32")
setexec("0xffffffff")
g("buffer_store_short", "v32", "v20", SRD_OUT, TX, mods="offen")
setexec(-1)
stamp(9)
seg_end()
g.dry_guard = False

g.label("L_fin")
if CFG["diag"]:
    g.nop(8)
    g.wait(vm=0, lgkm=0)
    diag_store()
g.label("L_end")
g("s_endpgm")
if not CFG["dry"]:
    g.label("L_dryret")
    g("s_endpgm")

hdr = open("cdna_kernels/" + NAME + ".s.ref").read().split("\n")
head = []
for line in hdr:
    if line.startswith("; @launch"):
        head.append(f"; @launch grid=(256,1,1) block=(1024,1,1) lds={LDS_BYTES}")
    elif line.startswith(";"):
        head.append(line)
    else:
        break
src = "\n".join(head) + "\n"
src += f""".amdgcn_target "amdgcn-amd-amdhsa--gfx950"
.text
.globl {NAME}_kernel
.p2align 8
.type {NAME}_kernel,@function
{NAME}_kernel:
"""
src += g.text()
src += f""".section .rodata,"a"
.p2align 6
.amdhsa_kernel {NAME}_kernel
  .amdhsa_next_free_vgpr 128
  .amdhsa_next_free_sgpr 102
  .amdhsa_accum_offset 128
  .amdhsa_group_segment_fixed_size 0
  .amdhsa_kernarg_size 104
  .amdhsa_user_sgpr_count 2
  .amdhsa_user_sgpr_kernarg_segment_ptr 1
  .amdhsa_system_sgpr_workgroup_id_x 1
.end_amdhsa_kernel
"""
open(sys.argv[1], "w").write(src)
print("instructions:", g.ninstr)
```

```python
import sys
import struct
from asmgen import Gen

NAME = "sequential_preLN__mha_block_cached__dense_activation_gelu__decode"

CFG = dict(
    kv_mods="nt", w_mods="nt", diag=0, spin_limit=200000,
    D=2,
    DW=0,
    wo0=5,
    stpos=9,
    stuse=6,
    rchk=13,
    b1pos="K4",
    drypos="K8",
    gpos="K9",
    qbar="K13",
    qx=1,
    dry=1,
    hsh=7,
    prio=0,
    sleep=0,
    sleep1=0,
    athr=6,
    asleep=1,
    rep=1,
    fspin=2,
    pdly=2,
    gdly=2,
    nob1=0,
    nob2=0,
    noclr=0,
    nost=0,
    nowo=0,
    nokc=0,
    nend=0,
    dend=4,
    zsleep=0,
    hsleep=1,
    ysleep=1,
    fsleep=1,
)
for a in sys.argv[2:]:
    k, v = a.split("=", 1)
    if isinstance(CFG[k], int):
        v = int(v)
    CFG[k] = v

NFFN = 86
WS_ST = 0x0
WS_H = 0x8000
WS_Y = 0x10000
WS_F = 0x100000
WS_QP = 0x180000
WS_HR = 0x1d0000
WS_DIAG = 0x200000
WS_SIZE = 0x400000
NONCE = "s[40:41]"
N_LO, N_HI = "s40", "s41"
PSTR = 80
L_PART = 0
L_QB = 20480
L_YP = 20736
L_ZP = 28928
L_CS = 29440
L_STAT = 29696
L_HN = 47104 + 1024
L_WST = 29712 + 16
L_NONCE = 29712
L_W1 = 31744
LDS_BYTES = 50176

S_WAVE, S_H, S_B, S_SPL = "s3", "s4", "s5", "s6"
SRD_K, SRD_V, SRD_WQ, SRD_WO = "s[44:47]", "s[48:51]", "s[52:55]", "s[56:59]"
SRD_X, SRD_WS, SRD_DBG, SRD_W1 = "s[60:63]", "s[64:67]", "s[68:71]", "s[72:75]"
SRD_W2, SRD_B1, SRD_B2, SRD_OUT = "s[76:79]", "s[80:83]", "s[84:87]", "s[88:91]"
S_KV, S_T, S_WO, S_M, S_BH, S_PI = "s92", "s93", "s94", "s95", "s96", "s97"
LIVE = "s[98:99]"
S_LOG2E, S_SCALE = "s42", "s43"
T = [f"s{16 + i}" for i in range(14)]
S_IT = "s29"
STAMP0 = 30
DPPF = "row_mask:0xf bank_mask:0xf"
full = (1 << 64) - 1


def vr(a, n=4):
    return f"v[{a}:{a + n - 1}]"


def f32hex(x):
    return "0x%08x" % struct.unpack("<I", struct.pack("<f", x))[0]


g = Gen()


def stamp(slot):
    if not CFG["diag"]:
        return
    lab = None
    if g.dry_guard:
        lab = g.newlabel("Lst")
        g("s_cbranch_execz", lab)
    g("s_memrealtime", "s[100:101]")
    g.wait(lgkm=0)
    g("s_mov_b32", f"s{STAMP0 + slot}", "s100")
    if lab:
        g.label(lab)


def srd(dst_base, ptr_lo, nbytes):
    g("s_mov_b32", f"s{dst_base}", f"s{ptr_lo}")
    g("s_and_b32", f"s{dst_base + 1}", f"s{ptr_lo + 1}", "0xffff")
    g("s_mov_b32", f"s{dst_base + 2}", hex(nbytes))
    g("s_mov_b32", f"s{dst_base + 3}", "0x00020000")


def setexec(m):
    if g.dry_guard:
        if m == -1:
            g("s_mov_b64", "exec", LIVE)
        else:
            g("s_and_b64", "exec", LIVE, m)
    else:
        g("s_mov_b64", "exec", m)


def barrier():
    if g.dry_guard:
        lab = g.newlabel("Lb")
        g("s_cbranch_execz", lab)
        g("s_barrier")
        g.label(lab)
    else:
        g("s_barrier")


def seg_end():
    g("s_cbranch_execz", "L_dryret")


def wave_reduce(op, regs):
    for sh in (8, 4, 2, 1):
        for r in regs:
            g(op + "_dpp", r, r, r, mods=f"row_ror:{sh} {DPPF}")
    for r in regs:
        g(op + "_dpp", r, r, r, mods="row_bcast:15 row_mask:0xa bank_mask:0xf")
    for r in regs:
        g(op + "_dpp", r, r, r, mods="row_bcast:31 row_mask:0xc bank_mask:0xf")


def bf16r(dst, src, tmp=None):
    t = tmp or dst
    g("v_cvt_pk_bf16_f32", t, src, src)
    g("v_and_b32", dst, "0xffff0000", t)


def bf16r2(a, b, tmp):
    g("v_cvt_pk_bf16_f32", tmp, a, b)
    g("v_lshlrev_b32", a, 16, tmp)
    g("v_and_b32", b, "0xffff0000", tmp)


def unpack(dlo, dhi, src):
    g("v_lshlrev_b32", dlo, 16, src)
    g("v_and_b32", dhi, "0xffff0000", src)


def tree_sum(regs, op="v_add_f32"):
    regs = list(regs)
    while len(regs) > 1:
        nxt = []
        for i in range(0, len(regs) - 1, 2):
            g(op, regs[i], regs[i], regs[i + 1])
            nxt.append(regs[i])
        if len(regs) % 2:
            nxt.append(regs[-1])
        regs = nxt
    return regs[0]


def bmask_mfma(D, A, val, first, bcast=None):
    for r in range(4):
        if bcast is None:
            g("v_and_b32", f"v{8 + r}", val, f"v{4 + r}")
        else:
            g("v_and_b32_dpp", f"v{8 + r}", val, f"v{4 + r}", mods=f"row_newbcast:{bcast} {DPPF}")
    g("v_mfma_f32_16x16x32_bf16", D, A, "v[8:11]", "0" if first else D)


def poll_one(voff, soff, lane_mask, imm=0):
    g("s_and_b64", "exec", LIVE, hex(lane_mask))
    g("s_mov_b32", S_IT, 0)
    g.flush_hazards()
    L = g.newlabel("Lp1")
    Ld = g.newlabel("Lp1done")
    g("s_cbranch_execz", Ld)
    g.label(L)
    g("buffer_load_dword", "v31", voff, SRD_WS, soff, mods=(f"offen offset:{imm + 12} sc1"))
    sv = g.dry_guard
    g.dry_guard = False
    g.wait(vm=0)
    g.dry_guard = sv
    g("v_cmp_eq_u32", "vcc", -1, "v31")
    g("s_add_u32", S_IT, S_IT, 1)
    g("s_cmp_eq_u64", "vcc", 0)
    g("s_cbranch_scc1", Ld)
    g("s_cmp_lt_u32", S_IT, CFG["spin_limit"])
    if CFG["sleep1"]:
        g("s_sleep", CFG["sleep1"])
    g("s_cbranch_scc1", L)
    g.label(Ld)
    g("s_mov_b64", "exec", LIVE)


def poll_gather(dsts, voffs, soff, masks, imm=None, adaptive=False, slp=None):
    pend = [f"s[{16 + 2 * k}:{17 + 2 * k}]" for k in range(len(dsts))]
    for k, m in enumerate(masks):
        if m == full:
            g("s_mov_b64", pend[k], LIVE)
        elif isinstance(m, str):
            g("s_and_b64", pend[k], LIVE, m)
        else:
            assert m < (1 << 31)
            g("s_and_b64", pend[k], LIVE, hex(m))
    g("s_mov_b32", S_IT, 0)
    g.flush_hazards()
    L = g.newlabel("Lpoll")
    Ld = g.newlabel("Lpolldone")
    g.label(L)
    for k, d in enumerate(dsts):
        g("s_mov_b64", "exec", pend[k])
        mods = "offen sc1"
        if imm and imm[k]:
            mods = f"offen offset:{imm[k]} sc1"
        g("buffer_load_dwordx4", vr(d), voffs[k], SRD_WS, soff, mods=mods)
    g("s_mov_b64", "exec", LIVE)
    g.wait(vm=0)
    for k, d in enumerate(dsts):
        g("s_mov_b64", "exec", pend[k])
        g("v_max3_u32", "v31", f"v{d}", f"v{d + 1}", f"v{d + 2}")
        g("v_max_u32", "v31", "v31", f"v{d + 3}")
        g("v_cmp_eq_u32", pend[k], -1, "v31")
    if len(dsts) == 1:
        g("s_or_b64", "s[100:101]", pend[0], pend[0])
    else:
        g("s_or_b64", "s[100:101]", pend[0], pend[1])
        for k in range(2, len(dsts)):
            g("s_or_b64", "s[100:101]", "s[100:101]", pend[k])
    g("s_cbranch_scc0", Ld)
    g("s_add_u32", S_IT, S_IT, 1)
    g("s_cmp_lt_u32", S_IT, CFG["spin_limit"])
    g("s_cbranch_scc0", Ld)
    if adaptive:
        g("s_bcnt1_i32_b64", "s100", "s[100:101]")
        g("s_cmp_le_u32", "s100", CFG["athr"])
        g.flush_hazards()
        g("s_cbranch_scc1", L)
        g("s_sleep", CFG["asleep"])
    elif slp:
        g("s_sleep", slp)
    g.flush_hazards()
    g("s_branch", L)
    g.label(Ld)
    g("s_mov_b64", "exec", LIVE)
    g.flush_hazards()


def poll_tag(dst, voff, soff, mask, pre=False):
    pend = "s[16:17]"
    if mask == full:
        g("s_mov_b64", pend, LIVE)
    else:
        g("s_and_b64", pend, LIVE, mask)
    g("s_mov_b32", S_IT, 0)
    g.flush_hazards()
    L = g.newlabel("Lpt")
    Ld = g.newlabel("Lptdone")
    Lc = g.newlabel("Lptchk")
    if pre:
        g("s_branch", Lc)
    g.label(L)
    g("s_mov_b64", "exec", pend)
    g("buffer_load_dwordx4", vr(dst), voff, SRD_WS, soff, mods="offen sc1")
    g("s_mov_b64", "exec", LIVE)
    g.wait(vm=0)
    g.label(Lc)
    g("s_mov_b64", "exec", pend)
    g("v_cmp_ne_u64", pend, NONCE, vr(dst + 2, 2))
    g("s_or_b64", "s[100:101]", pend, pend)
    g("s_cbranch_scc0", Ld)
    g("s_add_u32", S_IT, S_IT, 1)
    g("s_cmp_lt_u32", S_IT, CFG["spin_limit"])
    g("s_cbranch_scc0", Ld)
    g("s_sleep", 2)
    g.flush_hazards()
    g("s_branch", L)
    g.label(Ld)
    g("s_mov_b64", "exec", LIVE)
    g.flush_hazards()


def diag_store():
    if CFG["diag"] == 2:
        lab = g.newlabel("Ldd")
        g("s_cmp_lg_u32", S_WAVE, 0)
        g("s_cbranch_scc1", lab)
        g("s_cmp_eq_u32", "s2", 255)
        g("s_cselect_b32", "s7", 8, 0)
        g("s_cmp_eq_u32", "s2", 5)
        g("s_cselect_b32", "s7", 36, "s7")
        g("s_cmp_eq_u32", "s7", 0)
        g("s_cbranch_scc1", lab)
        g("v_mov_b32", "v30", 0)
        for n, i in enumerate((0, 1, 2, 3, 5, 6, 9)):
            g("s_sub_u32", "s8", f"s{STAMP0 + i}", N_LO)
            g("v_writelane_b32", "v30", "s8", n)
        g("v_lshlrev_b32", "v29", 2, "v0")
        g("s_mov_b64", "exec", "0x7f")
        g("buffer_store_dword", "v30", "v29", SRD_DBG, "s7", mods="offen")
        g.label(lab)
        return
    g("v_mov_b32", "v30", 0)
    for i in range(10):
        g("v_writelane_b32", "v30", f"s{STAMP0 + i}", i)
    g("s_lshl_b32", "s7", "s2", 4)
    g("s_add_u32", "s7", "s7", S_WAVE)
    g("s_lshl_b32", "s7", "s7", 6)
    g("s_add_u32", "s7", "s7", hex(WS_DIAG))
    g("v_lshlrev_b32", "v29", 2, "v0")
    g("s_mov_b64", "exec", "0xffff")
    g("buffer_store_dword", "v30", "v29", SRD_WS, "s7", mods="offen")


g("s_cmp_ge_u32", "s2", 256)
g("s_cbranch_scc1", "L_end")
g("s_load_dwordx16", "s[16:31]", "s[0:1]", 0)
g("s_load_dwordx8", "s[32:39]", "s[0:1]", 64)
g("s_load_dwordx2", "s[40:41]", "s[0:1]", 96)
g("v_readfirstlane_b32", S_WAVE, "v0")
g("v_and_b32", "v0", 63, "v0")
g("s_and_b32", "s7", "s2", 7)
g("s_lshr_b32", "s8", "s2", 3)
g("s_and_b32", "s9", "s8", 3)
g("s_lshl_b32", S_H, "s7", 2)
g("s_add_u32", S_H, S_H, "s9")
g("s_mov_b32", S_PI, S_H)
g("s_lshr_b32", "s13", "s8", 2)
g("s_lshr_b32", S_B, "s13", 2)
g("s_and_b32", S_SPL, "s13", 3)
g("s_lshr_b32", S_WAVE, S_WAVE, 6)
g("v_lshlrev_b32", "v1", 4, "v0")
g("v_lshrrev_b32", "v3", 4, "v0")
g("v_and_b32", "v2", 15, "v0")
g("v_lshlrev_b32", "v2", 4, "v2")
g("v_lshl_add_u32", "v2", "v3", 13, "v2")
g("v_lshlrev_b32", "v3", 1, "v3")
g("v_bfe_u32", "v8", "v0", 3, 1)
g("v_lshl_add_u32", "v3", "v8", 10, "v3")
g("s_lshl_b32", S_BH, S_B, 5)
g("s_add_u32", S_BH, S_BH, S_H)
g("s_lshl_b32", S_KV, S_BH, 20)
g("s_lshl_b32", "s7", S_SPL, 18)
g("s_add_u32", S_KV, S_KV, "s7")
g("s_lshl_b32", "s7", S_WAVE, 10)
g("s_add_u32", S_KV, S_KV, "s7")
g("s_lshl_b32", "s11", "s13", 4)
g("s_add_u32", "s11", "s11", S_WAVE)
g("s_lshl_b32", "s12", "s11", 15)
g("s_lshl_b32", "s7", S_H, 8)
g("s_add_u32", "s12", "s12", "s7")
g("s_lshl_b32", "s11", "s11", 3)
g.wait(lgkm=0)
srd(44, 18, 2 * 32 * 4096 * 128 * 2)
srd(60, 16, 2048)
srd(52, 22, 512 * 4096 * 2)
srd(64, 40, WS_SIZE)
srd(68, 38, 256)

kvm = CFG["kv_mods"]
wm = CFG["w_mods"]


def vreg(i):
    return 32 + 4 * i if i < 8 else 64 + 4 * (i - 8)


def kv_load(dst, srd_, i):
    g("s_add_u32", S_T, S_KV, i * 16384)
    g("buffer_load_dwordx4", vr(dst), "v1", srd_, S_T, mods=f"offen {kvm}".strip())


def wo_load(i):
    if CFG["nowo"]:
        g("buffer_load_dword", f"v{96 + 4 * i}", "v1", SRD_X, 0, mods="offen")
        return
    g("s_add_u32", S_T, S_WO, i // 4 * 4096)
    off = (i % 4) * 1024
    g("buffer_load_dwordx4", vr(96 + 4 * i), "v2", SRD_WO, S_T,
      mods=(f"offen offset:{off} {wm}" if off else f"offen {wm}").strip())


def st_load():
    g("v_lshlrev_b32", "v3", 3, "v0")
    g("s_lshl_b32", "s7", S_BH, 9)
    g("buffer_load_dwordx2", "v[32:33]", "v3", SRD_WS, "s7", mods="offen sc1")


D = CFG["D"]
stream = []
for i in range(16):
    stream.append((f"K{i}", None, (lambda i=i: kv_load(64 + 4 * i, SRD_K, i)), D))
nwo = 0
for i in range(16):
    dd = D + (CFG["DW"] if (CFG["wo0"] < i <= CFG["wo0"] + 9) else 0)
    stream.append((f"V{i}", "QDONE" if i < 8 else f"K{i - 8}", (lambda i=i: kv_load(vreg(i), SRD_V, i)), dd))
    if i >= CFG["wo0"] and nwo < 8:
        stream.append((f"WO{nwo}", f"K{8 + nwo}", (lambda i=nwo: wo_load(i)), D + CFG["DW"]))
        nwo += 1
while nwo < 8:
    stream.append((f"WO{nwo}", f"K{8 + nwo}", (lambda i=nwo: wo_load(i)), D + CFG["DW"]))
    nwo += 1
NE = CFG["nend"]
for idx in range(len(stream) - NE, len(stream)):
    nm, pre, fn, dd = stream[idx]
    if dd < 99:
        stream[idx] = (nm, pre, fn, CFG["dend"])
freed = set()
spos = [0]
issued = set()
heavy = set()


def pump(n=1, pace=True, until=None):
    cnt = 0
    while spos[0] < len(stream):
        if until is not None:
            if until in issued:
                return
        elif cnt >= n:
            return
        name, pre, fn, dd = stream[spos[0]]
        if pre is not None and pre not in freed:
            if until is not None:
                raise RuntimeError(f"blocked at {name} needs {pre}")
            return
        if pace:
            hv = 0
            for uid, ent in sorted(g.vm.items(), key=lambda kv: kv[1][0]):
                if uid in heavy:
                    hv += 1
                    if hv == dd:
                        g.wait(vm=ent[0])
                        break
        fn()
        if name[0] in "KVW":
            heavy.add(g.uid)
        issued.add(name)
        spos[0] += 1
        cnt += 1


g("s_or_b32", "s7", "s2", S_WAVE)
g("s_cmp_lg_u32", "s7", 0)
g("s_cbranch_scc1", "L_nononce")
st_skip = g.save()
g("s_memrealtime", "s[8:9]")
g("v_mov_b32", "v10", 0)
g.wait(lgkm=0)
g("s_bitset1_b32", "s9", 31)
g("v_mov_b32", "v8", "s8")
g("v_mov_b32", "v9", "s9")
g("s_mov_b64", "exec", 1)
g("buffer_store_dwordx2", "v[8:9]", "v10", SRD_DBG, 0, mods="offen sc1")
g("s_mov_b64", "exec", -1)
g.label("L_nononce")
g.merge(st_skip)
pump(1, pace=False)
g("buffer_load_dwordx4", "v[24:27]", "v1", SRD_X, 0, mods="offen")
g("buffer_load_dwordx4", "v[28:31]", "v1", SRD_X, 0, mods="offen offset:1024")
g("buffer_load_ushort", "v3", "v3", SRD_X, "s11", mods="offen")
g("buffer_load_dwordx4", "v[60:63]", "v2", SRD_WQ, "s12", mods=f"offen {wm}".strip())
pump(D - 1, pace=False)

if CFG["diag"]:
    g("s_memrealtime", "s[100:101]")
    g.wait(lgkm=0)
    g("s_mov_b32", "s15", "s100")

g("s_cmp_lg_u32", S_WAVE, 1)
g("s_cbranch_scc1", "L_noclear")
st_skip = g.save()
for r in range(4):
    g("v_mov_b32", f"v{8 + r}", -1)
g("s_lshl_b32", "s7", S_B, 7)
g("s_lshl_b32", "s8", S_H, 2)
g("s_add_u32", "s7", "s7", "s8")
g("s_add_u32", "s7", "s7", S_SPL)
g("s_lshl_b32", "s7", "s7", 11)
g("s_add_u32", "s7", "s7", hex(WS_Y))
g("buffer_store_dwordx4", "v[8:11]", "v1", SRD_WS, "s7", mods="offen sc1")
g("buffer_store_dwordx4", "v[8:11]", "v1", SRD_WS, "s7", mods="offen offset:1024 sc1")
g("s_mov_b64", "exec", "0xff")
g("ds_write_b128", "v1", "v[8:11]", mods=f"offset:{L_WST}")
g("s_cmp_lt_u32", "s2", 224)
g("s_cbranch_scc1", "L_noclrh")
g("s_lshl_b32", "s7", S_PI, 7)
g("s_add_u32", "s7", "s7", hex(WS_H))
g("buffer_store_dwordx4", "v[8:11]", "v1", SRD_WS, "s7", mods="offen sc1")
g.label("L_noclrh")
g("s_mov_b64", "exec", -1)
g("s_cmp_ge_u32", "s2", NFFN)
g("s_cbranch_scc1", "L_noclear")
st_skip2 = g.save()
g("s_lshl_b32", "s7", "s2", 12)
g("s_add_u32", "s7", "s7", hex(WS_F))
for k in range(4):
    g("buffer_store_dwordx4", "v[8:11]", "v1", SRD_WS, "s7",
      mods=f"offen offset:{k * 1024} sc1" if k else "offen sc1")
g.label("L_noclear")
g.merge(st_skip)
g.merge(st_skip2)
uids_before_clear_end = set(g.vm.keys())
g("v_mov_b32", "v22", 0)
g("v_mov_b32", "v23", 0)

srd(48, 20, 2 * 32 * 4096 * 128 * 2)
srd(56, 24, 4096 * 512 * 2)
srd(72, 28, 512 * 1376 * 2)
srd(76, 32, 1376 * 512 * 2)
srd(80, 30, 1376 * 2)
srd(84, 34, 512 * 2)
srd(88, 36, 2048)
if CFG["diag"]:
    g("s_mov_b32", f"s{STAMP0}", "s15")
    for i in range(1, 10):
        g("s_mov_b32", f"s{STAMP0 + i}", 0)
g("s_mov_b64", LIVE, -1)
if CFG["prio"]:
    for lvl in (1, 2, 3):
        lab = g.newlabel("Lprio")
        g("s_cmp_lt_u32", S_WAVE, 4 * lvl if CFG["prio"] == 1 else {1: 8, 2: 12, 3: 99}[lvl])
        g("s_cbranch_scc1", lab)
        g("s_setprio", lvl)
        g.label(lab)
g("s_mov_b32", S_LOG2E, "0x3fb8aa3b")
g("s_mov_b32", S_SCALE, "0x3db504f3")
g("s_lshl_b32", S_WO, S_H, 17)
g("s_lshr_b32", "s7", S_WAVE, 2)
g("s_lshl_b32", "s7", "s7", 15)
g("s_add_u32", S_WO, S_WO, "s7")
g("s_and_b32", "s7", S_WAVE, 3)
g("s_lshl_b32", "s7", "s7", 8)
g("s_add_u32", S_WO, S_WO, "s7")
for r in (16, 17, 18, 19, 20, 21, 52, 53, 54):
    g("v_mov_b32", f"v{r}", 0)
g("v_and_b32", "v12", 1, "v0")
g("v_lshlrev_b32", "v12", 4, "v12")
g("v_mov_b32", "v13", "0xffff")
g("v_lshlrev_b32", "v13", "v12", "v13")
g("v_bfe_u32", "v12", "v0", 1, 2)
for r in range(4):
    g("v_cmp_eq_u32", "vcc", r, "v12")
    g("v_cndmask_b32", f"v{4 + r}", 0, "v13", "vcc")

for b in range(2):
    for k in range(4):
        unpack(f"v{32 + 8 * b + 2 * k}", f"v{33 + 8 * b + 2 * k}", f"v{24 + 4 * b + k}")
for b in range(2):
    base = 32 + 8 * b
    g("v_add_f32", f"v{8 + b}", f"v{base}", f"v{base + 1}")
    g("v_add_f32", f"v{10 + b}", f"v{base + 2}", f"v{base + 3}")
    g("v_add_f32", f"v{12 + b}", f"v{base + 4}", f"v{base + 5}")
    g("v_add_f32", f"v{14 + b}", f"v{base + 6}", f"v{base + 7}")
for b in range(2):
    g("v_add_f32", f"v{8 + b}", f"v{8 + b}", f"v{10 + b}")
    g("v_add_f32", f"v{12 + b}", f"v{12 + b}", f"v{14 + b}")
for b in range(2):
    g("v_add_f32", f"v{8 + b}", f"v{8 + b}", f"v{12 + b}")
wave_reduce("v_add_f32", ["v8", "v9"])
g("v_readlane_b32", "s7", "v8", 63)
g("v_readlane_b32", "s8", "v9", 63)
pump(1)
g("s_cmp_lg_u32", S_WAVE, 1)
g("s_cbranch_scc1", "L_nn1")
st_skip = g.save()
g("buffer_load_dwordx2", "v[22:23]", "v20", SRD_DBG, 0, mods="offen sc1")
g.label("L_nn1")
g.merge(st_skip)
g("v_mov_b32", "v12", "0x3b000000")
g("v_mul_f32", "v16", "s7", "v12")
g("v_mul_f32", "v17", "s8", "v12")
for b in range(2):
    for k in range(8):
        g("v_sub_f32", f"v{32 + 8 * b + k}", f"v{32 + 8 * b + k}", f"v{16 + b}")
for b in range(2):
    g("v_mul_f32", f"v{8 + b}", f"v{32 + 8 * b}", f"v{32 + 8 * b}")
for k in range(1, 8):
    for b in range(2):
        g("v_fmac_f32", f"v{8 + b}", f"v{32 + 8 * b + k}", f"v{32 + 8 * b + k}")
wave_reduce("v_add_f32", ["v8", "v9"])
g("v_readlane_b32", "s7", "v8", 63)
g("v_readlane_b32", "s8", "v9", 63)
pump(1)
g("v_mul_f32", "v18", "s7", "v12")
g("v_mul_f32", "v19", "s8", "v12")
g("s_mov_b32", "s8", "0xff00ff00")
g("s_mov_b32", "s9", "0xff00ff00")
g("v_cndmask_b32", "v13", "v16", "v17", "s[8:9]")
g("v_cndmask_b32", "v14", "v18", "v19", "s[8:9]")
bf16r2("v13", "v14", "v15")
g("v_add_f32", "v14", "0x3727c5ac", "v14")
bf16r("v14", "v14")
g("v_sqrt_f32", "v14", "v14")
bf16r("v14", "v14")
g("v_rcp_f32", "v14", "v14")
g("v_lshlrev_b32", "v3", 16, "v3")
g("v_sub_f32", "v3", "v3", "v13")
bf16r("v3", "v3")
g("v_mul_f32", "v3", "v3", "v14")
g("v_cvt_pk_bf16_f32", "v16", "v3", "v3")
bmask_mfma("v[12:15]", "v[60:63]", "v16", True)
g("v_lshrrev_b32", "v16", 4, "v0")
g("v_and_b32", "v17", 7, "v0")
g("v_lshl_add_u32", "v16", "v16", 5, "v17")
g("v_bfe_u32", "v17", "v0", 3, 1)
g("v_lshl_add_u32", "v16", "v17", 7, "v16")
g("v_mul_u32_u24", "v16", PSTR, "v16")
g("s_lshl_b32", "s7", S_WAVE, 2)
g("v_add_u32", "v16", "s7", "v16")
for r in range(4):
    g("ds_write_b32", "v16", f"v{12 + r}", mods=f"offset:{L_PART + r * 8 * PSTR}")
pump(until=CFG["b1pos"])
pump(CFG["qx"], pace=False)
g("s_cmp_lg_u32", S_WAVE, 1)
g("s_cbranch_scc1", "L_clrok")
st_skip = g.save()
pend_clear = [v[0] for k, v in g.vm.items() if k in uids_before_clear_end]
if pend_clear:
    g.wait(vm=min(pend_clear))
g("v_cmp_ne_u32", "vcc", 0, "v23")
g("s_cmp_lg_u64", "vcc", 0)
g("s_cbranch_scc1", "L_nonceok")
st_ok = g.save()
g("s_mov_b32", S_IT, 0)
g.label("L_noncespin")
g("v_mov_b32", "v20", 0)
g("buffer_load_dwordx2", "v[22:23]", "v20", SRD_DBG, 0, mods="offen sc1")
g.wait(vm=0)
g("v_cmp_ne_u32", "vcc", 0, "v23")
g("s_cmp_lg_u64", "vcc", 0)
g("s_cbranch_scc1", "L_nonceok")
g("s_add_u32", S_IT, S_IT, 1)
g("s_cmp_lt_u32", S_IT, CFG["spin_limit"])
g("s_sleep", CFG["fspin"])
g("s_cbranch_scc1", "L_noncespin")
g.label("L_nonceok")
g.merge(st_ok)
g("v_mov_b32", "v20", 0)
g("s_mov_b64", "exec", 1)
g("ds_write_b64", "v20", "v[22:23]", mods=f"offset:{L_NONCE}")
g("s_mov_b64", "exec", -1)
g.label("L_clrok")
g.merge(st_skip)
g.wait(lgkm=0)
if not CFG["nob1"]:
    g("s_barrier")
g("v_mov_b32", "v20", 0)
g("ds_read_b64", "v[22:23]", "v20", mods=f"offset:{L_NONCE}")
g("v_readfirstlane_b32", N_LO, "v22")
g("v_readfirstlane_b32", N_HI, "v23")
g("s_cmp_lg_u32", S_WAVE, 2)
g("s_cbranch_scc1", "L_nopub")
st_skip = g.save()
g("v_mul_u32_u24", "v16", 4 * PSTR, "v0")
for half in range(2):
    for oo in range(2):
        for k in range(4):
            g("ds_read_b128", vr(32 + 16 * oo + 4 * k), "v16",
              mods=f"offset:{L_PART + (2 * half + oo) * PSTR + 16 * k}")
    for oo in range(2):
        tree_sum([f"v{32 + 16 * oo + k}" for k in range(16)])
        g("v_mov_b32", f"v{8 + 4 * half + oo}", f"v{32 + 16 * oo}")
    g("v_mov_b32", f"v{10 + 4 * half}", "v22")
    g("v_mov_b32", f"v{11 + 4 * half}", "v23")
g("s_lshl_b32", "s7", S_H, 14)
g("s_lshl_b32", "s8", S_B, 13)
g("s_add_u32", "s7", "s7", "s8")
g("s_lshl_b32", "s8", S_SPL, 11)
g("s_add_u32", "s7", "s7", "s8")
g("s_add_u32", "s7", "s7", hex(WS_QP))
g("buffer_store_dwordx4", "v[8:11]", "v1", SRD_WS, "s7", mods="offen sc1")
g("buffer_store_dwordx4", "v[12:15]", "v1", SRD_WS, "s7", mods="offen offset:1024 sc1")
g.label("L_nopub")
g.merge(st_skip)

pump(until=CFG["drypos"])
SEGS = ["A", "B", "C", "D", "E", "F", "G", "H", "I", "J"]
if CFG["dry"]:
    pump(1, pace=False)
    g.flush_hazards()
    g("s_mov_b64", LIVE, 0)
    g("s_mov_b64", "exec", 0)
    for n, sg in enumerate(SEGS):
        g("s_cmp_eq_u32", S_WAVE, n + 4)
        g("s_cbranch_scc1", f"L_seg{sg}")
    g.label("L_dryret")
    g("s_mov_b64", LIVE, -1)
    g("s_mov_b64", "exec", -1)
    g.wait(lgkm=0)
    g.nop(10)

GW = 3 if not CFG["nob2"] else 99


def q_loads():
    g("s_lshl_b32", "s7", S_H, 14)
    g("s_lshl_b32", "s8", S_B, 9)
    g("s_add_u32", "s7", "s7", "s8")
    g("s_add_u32", "s7", "s7", hex(WS_QP))
    for u in range(4):
        for part in range(2):
            g("buffer_load_dwordx4", vr(32 + 8 * u + 4 * part), "v12", SRD_WS, "s7",
              mods=f"offen offset:{part * 1024} sc1" if part else "offen sc1")
        if u < 3:
            g("s_add_u32", "s7", "s7", 4096)


def q_check():
    for k in range(8):
        g("v_xor_b32", f"v{16 + k}", N_LO, f"v{34 + 4 * k}")
        g("v_xor_b32", f"v{24 + k}", N_HI, f"v{35 + 4 * k}")
    for k in range(0, 16, 4):
        g("v_or3_b32", f"v{16 + k}", f"v{16 + k}", f"v{17 + k}", f"v{18 + k}")
    for k in range(0, 16, 4):
        g("v_or_b32", f"v{16 + k}", f"v{16 + k}", f"v{19 + k}")
    g("v_or3_b32", "v16", "v16", "v20", "v24")
    g("v_or_b32", "v16", "v16", "v28")
    g("v_cmp_ne_u32", "vcc", 0, "v16")
    g("s_cmp_eq_u64", "vcc", 0)


pump(until=CFG["gpos"])
g("s_cmp_lg_u32", S_WAVE, GW)
g("s_cbranch_scc1", "L_g1")
st_skip = g.save()
g("v_lshrrev_b32", "v12", 5, "v0")
g("v_and_b32", "v13", 31, "v0")
g("v_lshlrev_b32", "v13", 4, "v13")
g("v_lshl_add_u32", "v12", "v12", 11, "v13")
q_loads()
g.label("L_g1")
g.merge(st_skip)
pump(CFG["gdly"])
g("s_cmp_lg_u32", S_WAVE, GW)
g("s_cbranch_scc1", "L_nogather")
st_skip = g.save()
q_check()
g("s_cbranch_scc1", "L_qok")
st_ok = g.save()
g("s_mov_b32", S_IT, 0)
g.label("L_qspin")
q_loads()
g.wait(vm=0)
q_check()
g("s_cbranch_scc1", "L_qok")
g("s_add_u32", S_IT, S_IT, 1)
g("s_cmp_lt_u32", S_IT, CFG["spin_limit"])
g("s_sleep", CFG["fspin"])
g("s_cbranch_scc1", "L_qspin")
g.label("L_qok")
g.merge(st_ok)
CI = [0, 1, 4, 5]
for r in range(4):
    g("v_add_f32", f"v{16 + r}", f"v{32 + CI[r]}", f"v{40 + CI[r]}")
    g("v_add_f32", f"v{20 + r}", f"v{48 + CI[r]}", f"v{56 + CI[r]}")
for r in range(4):
    g("v_add_f32", f"v{16 + r}", f"v{16 + r}", f"v{20 + r}")
for r in range(4):
    g("v_mov_b32", f"v{20 + r}", f"v{16 + r}")
for r in range(4):
    g("v_permlane32_swap_b32", f"v{16 + r}", f"v{20 + r}")
for r in range(4):
    g("v_add_f32", f"v{16 + r}", f"v{16 + r}", f"v{20 + r}")
g("v_cvt_pk_bf16_f32", "v14", "v16", "v17")
g("v_cvt_pk_bf16_f32", "v15", "v18", "v19")
g("v_lshrrev_b32", "v13", 1, "v13")
g("ds_write_b64", "v13", "v[14:15]", mods=f"offset:{L_QB}")
g.label("L_nogather")
g.merge(st_skip)
freed.add("QDONE")
pump(until=CFG["qbar"])
pump(CFG["qx"], pace=False)
g.wait(lgkm=0)
if not CFG["nob2"]:
    g("s_barrier")
g("v_and_b32", "v12", 15, "v0")
g("v_lshlrev_b32", "v12", 4, "v12")
g("ds_read_b128", "v[8:11]", "v12", mods=f"offset:{L_QB}")
stamp(1)

for G in range(4):
    tgt = 4 * G + 3 + D
    nm = f"K{tgt}" if tgt < 16 else f"V{tgt - 16}"
    pump(until=nm)
    for step in range(4 if not CFG["nokc"] else 1):
        for u in range(4):
            i = 4 * G + u
            g("v_dot2_f32_bf16", f"v{16 + i}", f"v{64 + 4 * i + step}", f"v{8 + step}",
              "0" if step == 0 else f"v{16 + i}")
    for u in range(4):
        freed.add(f"K{4 * G + u}")
    pump(1)
    for sh in ((8, 4, 2, 1) if not CFG["nokc"] else ()):
        for u in range(4):
            i = 4 * G + u
            g("v_add_f32_dpp", f"v{16 + i}", f"v{16 + i}", f"v{16 + i}", mods=f"row_ror:{sh} {DPPF}")
    for u in (0, 2):
        i = 4 * G + u
        bf16r2(f"v{16 + i}", f"v{17 + i}", f"v{12 + u}")
    for u in range(4):
        i = 4 * G + u
        g("v_mul_f32", f"v{16 + i}", S_SCALE, f"v{16 + i}")
    for u in (0, 2):
        i = 4 * G + u
        bf16r2(f"v{16 + i}", f"v{17 + i}", f"v{12 + u}")

pump(1)
g("v_max3_f32", "v12", "v16", "v17", "v18")
g("v_max3_f32", "v13", "v19", "v20", "v21")
g("v_max3_f32", "v14", "v22", "v23", "v24")
g("v_max3_f32", "v15", "v25", "v26", "v27")
g("v_max3_f32", "v12", "v12", "v28", "v29")
g("v_max3_f32", "v13", "v13", "v30", "v31")
g("v_max3_f32", "v12", "v12", "v13", "v14")
g("v_max_f32", "v12", "v12", "v15")
for k in range(4):
    g("v_readlane_b32", f"s{8 + k}", "v12", 16 * k)
g("v_mov_b32", "v12", "s8")
g("v_max_f32", "v12", "s9", "v12")
g("v_max_f32", "v12", "s10", "v12")
g("v_max_f32", "v12", "s11", "v12")
g("v_mul_f32", "v12", S_LOG2E, "v12")
for i in range(16):
    g("v_fma_f32", f"v{16 + i}", f"v{16 + i}", S_LOG2E, "-v12")
for i in range(16):
    g("v_exp_f32", f"v{16 + i}", f"v{16 + i}")
pump(1)
g("v_readfirstlane_b32", S_M, "v12")
g("v_add_f32", "v8", "v16", "v17")
g("v_add_f32", "v9", "v18", "v19")
g("v_add_f32", "v10", "v20", "v21")
g("v_add_f32", "v11", "v22", "v23")
g("v_add_f32", "v13", "v24", "v25")
g("v_add_f32", "v14", "v26", "v27")
g("v_add_f32", "v8", "v8", "v28")
g("v_add_f32", "v9", "v9", "v29")
g("v_add_f32", "v10", "v10", "v30")
g("v_add_f32", "v11", "v11", "v31")
tree_sum(["v8", "v9", "v10", "v11", "v13", "v14"])
for k in range(4):
    g("v_readlane_b32", f"s{8 + k}", "v8", 16 * k)
g("v_mov_b32", "v13", "s8")
g("v_add_f32", "v13", "s9", "v13")
g("v_add_f32", "v13", "s10", "v13")
g("v_add_f32", "v13", "s11", "v13")
g("s_lshl_b32", "s8", S_WAVE, 3)
g("v_mov_b32", "v8", "s8")
g("s_mov_b64", "exec", 1)
g("ds_write_b64", "v8", "v[12:13]", mods=f"offset:{L_WST}")
g("s_mov_b64", "exec", -1)
for i in range(16):
    g("v_cvt_pk_bf16_f32", f"v{16 + i}", f"v{16 + i}", f"v{16 + i}")
stamp(2)


def factor():
    g("v_and_b32", "v3", 15, "v0")
    g("v_lshlrev_b32", "v3", 3, "v3")
    g("s_mov_b32", S_IT, 0)
    g.flush_hazards()
    g.label("L_stspin")
    g("ds_read_b64", "v[32:33]", "v3", mods=f"offset:{L_WST}")
    g.wait(lgkm=0)
    g("v_max_u32", "v34", "v32", "v33")
    g("v_cmp_eq_u32", "vcc", -1, "v34")
    g("s_add_u32", S_IT, S_IT, 1)
    g("s_cmp_eq_u64", "vcc", 0)
    g("s_cbranch_scc1", "L_stok")
    g("s_cmp_lt_u32", S_IT, CFG["spin_limit"])
    g("s_sleep", 1)
    g("s_cbranch_scc1", "L_stspin")
    g.label("L_stok")
    g("v_mov_b32", "v40", "v32")
    for sh in (8, 4, 2, 1):
        g("v_max_f32_dpp", "v40", "v40", "v40", mods=f"row_ror:{sh} {DPPF}")
    g("v_sub_f32", "v41", "v32", "v40")
    g("v_exp_f32", "v41", "v41")
    g("v_sub_f32", "v35", S_M, "v40")
    g("v_mul_f32", "v41", "v41", "v33")
    g("v_exp_f32", "v35", "v35")
    for sh in (8, 4, 2, 1):
        g("v_add_f32_dpp", "v41", "v41", "v41", mods=f"row_ror:{sh} {DPPF}")
    g("s_cmp_lg_u32", S_WAVE, 0)
    g("s_cbranch_scc1", "L_nostat")
    st_skip = g.save()
    g("v_mov_b32", "v42", N_LO)
    g("v_mov_b32", "v43", N_HI)
    g("s_lshl_b32", "s7", S_B, 7)
    g("s_lshl_b32", "s8", S_H, 2)
    g("s_add_u32", "s7", "s7", "s8")
    g("s_add_u32", "s7", "s7", S_SPL)
    g("s_lshl_b32", "s7", "s7", 4)
    g("v_mov_b32", "v34", 0)
    g("s_mov_b64", "exec", 1)
    g("buffer_store_dwordx4", "v[40:43]", "v34", SRD_WS, "s7", mods="offen sc1")
    g("s_mov_b64", "exec", -1)
    g.label("L_nostat")
    g.merge(st_skip)
    g("v_lshrrev_b32", "v39", 4, "v0")
    g("v_and_b32", "v37", 15, "v0")
    g("v_lshl_add_u32", "v36", "v39", 5, "v37")
    g("v_mul_u32_u24", "v36", PSTR, "v36")
    g("s_lshl_b32", "s7", S_WAVE, 2)
    g("v_add_u32", "v36", "s7", "v36")
    g("v_lshlrev_b32", "v38", 4, "v37")
    g("v_lshl_add_u32", "v38", "v39", 7, "v38")
    g("s_lshr_b32", "s7", S_WAVE, 2)
    g("s_lshl_b32", "s7", "s7", 11)
    g("s_and_b32", "s10", S_WAVE, 3)
    g("s_lshl_b32", "s10", "s10", 9)
    g("s_add_u32", "s7", "s7", "s10")
    g("v_add_u32", "v38", "s7", "v38")
    g("v_and_b32", "v37", 7, "v0")
    g("v_lshl_add_u32", "v37", "v39", 3, "v37")
    g("s_lshr_b32", "s7", S_WAVE, 2)
    g("s_lshl_b32", "s7", "s7", 5)
    g("v_add_u32", "v37", "s7", "v37")
    g("v_mul_u32_u24", "v37", PSTR, "v37")
    g("s_mov_b32", "s14", "0x00ff00ff")
    g("s_mov_b32", "s15", "0x00ff00ff")


names = [e[0] for e in stream]
for i in range(16):
    tgt = i + D
    while tgt < 16 and tgt + 1 < 16 + 8:
        nxt = tgt + 1
        if nxt < 16 and stream[names.index(f"V{nxt}")][3] >= nxt - i and stream[names.index(f"V{nxt}")][3] > D + CFG["DW"]:
            tgt = nxt
        else:
            break
    if tgt < 16:
        pump(until=f"V{tgt}")
    else:
        pump(100)
    bmask_mfma("v[12:15]", vr(vreg(i)), f"v{16 + i}", i == 0)
    freed.add(f"PV{i}")
    if i == CFG["stuse"]:
        factor()
    if i == CFG["rchk"]:
        g("s_cmp_lt_u32", "s2", 224)
        g("s_cbranch_scc1", "L_norchk")
        st_skip = g.save()
        g("v_lshrrev_b32", "v52", 3, "v0")
        g("s_lshl_b32", "s7", S_WAVE, 3)
        g("v_add_u32", "v52", "s7", "v52")
        g("v_and_b32", "v53", 7, "v52")
        g("v_bfe_u32", "v54", "v52", 3, 2)
        g("v_lshl_add_u32", "v53", "v53", 2, "v54")
        g("v_lshrrev_b32", "v54", 5, "v52")
        g("v_lshl_add_u32", "v53", "v53", 2, "v54")
        g("v_lshlrev_b32", "v53", 4, "v53")
        g("v_lshlrev_b32", "v54", 4, "v52")
        g("s_lshr_b32", "s7", S_PI, 4)
        g("s_lshl_b32", "s7", "s7", 11)
        g("v_add_u32", "v54", "s7", "v54")
        g("buffer_load_dwordx4", "v[56:59]", "v53", SRD_WS, 0, mods="offen sc1")
        g("buffer_load_dwordx4", "v[60:63]", "v54", SRD_WS, 0, mods="offen sc1")
        g.label("L_norchk")
        g.merge(st_skip)
pump(100)
assert spos[0] == len(stream)
stamp(3)

g.dry_guard = True
g.label("L_segA")
for r in range(4):
    g("v_mul_f32", f"v{12 + r}", f"v{12 + r}", "v35")
setexec("s[14:15]")
for r in range(4):
    g("ds_write_b32", "v36", f"v{12 + r}", mods=f"offset:{L_PART + r * 8 * PSTR}")
setexec(-1)
g.wait(lgkm=0)
barrier()
stamp(4)
for k in range(4):
    g("ds_read_b128", vr(64 + 4 * k), "v37", mods=f"offset:{L_PART + 16 * k}")
tree_sum([f"v{64 + k}" for k in range(16)])
g("v_cvt_pk_bf16_f32", "v40", "v64", "v64")
seg_end()
g.label("L_segB")
for i in range(8):
    bmask_mfma("v[12:15]", vr(96 + 4 * i), "v40", i == 0, bcast=i)
setexec("s[14:15]")
g("ds_write_b128", "v38", "v[12:15]", mods=f"offset:{L_YP}")
setexec(-1)
g.wait(lgkm=0)
barrier()
seg_end()
g("s_cmp_lt_u32", S_WAVE, 2)
g("s_cbranch_scc1", "L_segG")
st_y = g.save()
g("s_cmp_ge_u32", "s2", 224)
g("s_cbranch_scc1", "L_segH")
g("s_cmp_ge_u32", "s2", NFFN)
g("s_cbranch_scc1", "L_fin")
g("s_cmp_lt_u32", S_WAVE, 4)
g("s_cbranch_scc1", "L_fin")
g("s_cmp_gt_u32", S_WAVE, 8)
g("s_cbranch_scc1", "L_fin")
g("s_cmp_eq_u32", S_WAVE, 8)
g("s_cbranch_scc1", "L_segF")
st_stat = g.save()

g.label("L_segC")
TQ = T[12]
g("s_and_b32", TQ, S_WAVE, 3)
g("v_lshrrev_b32", "v18", 4, "v0")
g("v_and_b32", "v20", 1, "v0")
g("v_lshlrev_b32", "v20", 10, "v20")
g("v_lshl_add_u32", "v20", "v18", 4, "v20")
g("s_lshl_b32", T[8], TQ, 8)
g("v_add_u32", "v20", T[8], "v20")
g("v_and_b32", "v21", 3, "v0")
g("v_lshlrev_b32", "v21", 4, "v21")
g("v_bfe_u32", "v22", "v0", 2, 2)
g("v_lshl_add_u32", "v21", "v22", 2, "v21")
g("s_lshl_b32", T[8], TQ, 6)
g("v_add_u32", "v22", T[8], "v21")
g("s_lshl_b32", T[8], TQ, 7)
g("v_add_u32", "v21", T[8], "v21")
g("v_bfe_u32", "v23", "v0", 3, 1)
g("v_lshlrev_b32", "v28", 3, "v23")
g("v_lshlrev_b32", "v23", 6, "v23")
g("v_lshl_add_u32", "v23", "v18", 4, "v23")
g("v_lshlrev_b32", "v19", 4, "v18")
g("v_bfe_u32", "v29", "v0", 3, 1)
g("v_lshlrev_b32", "v29", 11, "v29")
g("v_lshl_add_u32", "v29", "v18", 7, "v29")
g("v_and_b32", "v30", 7, "v0")
g("v_lshl_add_u32", "v29", "v30", 4, "v29")
g("s_lshl_b32", T[11], "s2", 12)
g("s_lshl_b32", T[9], TQ, 9)
g("s_add_u32", T[11], T[11], T[9])
g("s_add_u32", T[11], T[11], hex(WS_F))
g("v_bfe_u32", "v31", "v0", 2, 2)
g("v_lshlrev_b32", "v31", 8, "v31")
g("v_lshl_add_u32", "v31", "v18", 6, "v31")
g("v_and_b32", "v17", 3, "v0")
g("v_lshl_add_u32", "v31", "v17", 3, "v31")
g("s_lshl_b32", T[8], TQ, 12)
g("v_add_u32", "v31", T[8], "v31")
for r in range(4):
    g("v_mov_b32", f"v{8 + r}", "0x3f803f80")
g("v_lshrrev_b32", "v16", 1, "v0")
g("s_movk_i32", T[8], 2752)
g("v_mul_lo_u32", "v16", "v16", T[8])
g("v_and_b32", "v17", 1, "v0")
g("v_lshl_add_u32", "v16", "v17", 4, "v16")
g("s_mul_i32", T[8], TQ, 128 * 2752)
g("s_lshl_b32", T[9], "s2", 5)
g("s_add_u32", T[8], T[8], T[9])
g("s_lshl_b32", T[9], TQ, 12)
g("s_add_u32", T[9], T[9], L_W1)
if CFG["zsleep"]:
    g("s_sleep", CFG["zsleep"])
for k in range(4):
    g("s_mov_b32", "m0", T[9])
    g("buffer_load_dwordx4", "v16", SRD_W1, T[8], mods="offen lds")
    if k < 3:
        g("s_add_u32", T[8], T[8], 32 * 2752)
        g("s_add_u32", T[9], T[9], 1024)
g("v_and_b32", "v17", 15, "v0")
g("v_lshlrev_b32", "v17", 4, "v17")
g("v_lshl_add_u32", "v17", "v18", 10, "v17")
g("s_lshl_b32", T[8], "s2", 14)
g("s_lshl_b32", T[9], TQ, 8)
g("s_add_u32", T[8], T[8], T[9])
for i in range(4):
    g("buffer_load_dwordx4", vr(48 + 4 * i), "v17", SRD_W2, T[8], mods="offen")
    if i < 3:
        g("s_add_u32", T[8], T[8], 4096)
g("v_lshlrev_b32", "v17", 1, "v18")
g("s_lshl_b32", T[8], "s2", 5)
for i in range(4):
    g("buffer_load_ushort", f"v{24 + i}", "v17", SRD_B1, T[8], mods=f"offen offset:{8 * i}" if i else "offen")
g.wait(vm=0)
g("s_cbranch_execz", "L_c3")
for tt in range(4):
    for hh in range(2):
        g("ds_read_b64_tr_b16", vr(64 + 4 * tt + 2 * hh, 2), "v31",
          mods=f"offset:{L_W1 + tt * 1024 + hh * 32}")
g.label("L_c3")
for tt in range(4):
    g("v_mfma_f32_16x16x32_bf16", "v[12:15]", "v[8:11]", vr(64 + 4 * tt), "0" if tt == 0 else "v[12:15]")
for i in range(4):
    g("v_lshlrev_b32", f"v{24 + i}", 16, f"v{24 + i}")
setexec("0xffff")
g("ds_write_b32", "v22", "v12", mods=f"offset:{L_CS}")
setexec(-1)
g.wait(lgkm=0)
seg_end()
g.label("L_segD")
barrier()
for tt in range(4):
    g("ds_read_b128", vr(32 + 4 * tt), "v20", mods=f"offset:{L_HN + tt * 64}")
for q in range(4):
    g("ds_read_b128", vr(80 + 4 * q), "v19", mods=f"offset:{L_CS + 64 * q}")
for tt in range(4):
    g("v_mfma_f32_16x16x32_bf16", "v[12:15]", vr(32 + 4 * tt), vr(64 + 4 * tt), "0" if tt == 0 else "v[12:15]")
for i in range(4):
    g("v_add_f32", f"v{80 + i}", f"v{80 + i}", f"v{84 + i}")
    g("v_add_f32", f"v{88 + i}", f"v{88 + i}", f"v{92 + i}")
for i in range(4):
    g("v_add_f32", f"v{80 + i}", f"v{80 + i}", f"v{88 + i}")
setexec("0xffff")
g("ds_write_b32", "v21", "v12", mods=f"offset:{L_ZP}")
g("ds_write_b32", "v21", "v13", mods=f"offset:{L_ZP + 64}")
setexec(-1)
K1 = -2.0 * 0.7978845608028654 * 1.4426950408889634
K3 = K1 * 0.044715
g("s_mov_b32", T[8], f32hex(K3))
g("v_mov_b32", "v31", f32hex(K1))
g.wait(lgkm=0)
barrier()
seg_end()
g.label("L_segE")
for q in range(4):
    g("ds_read_b128", vr(96 + 4 * q), "v23", mods=f"offset:{L_ZP + 128 * q}")
g("ds_read_b64", "v[112:113]", "v28", mods=f"offset:{L_STAT}")
for i in range(4):
    g("v_add_f32", f"v{96 + i}", f"v{96 + i}", f"v{100 + i}")
    g("v_add_f32", f"v{104 + i}", f"v{104 + i}", f"v{108 + i}")
Z = [f"v{96 + i}" for i in range(4)]
TT_ = [f"v{100 + i}" for i in range(4)]
for i in range(4):
    g("v_add_f32", Z[i], Z[i], f"v{104 + i}")
for i in range(4):
    g("v_fma_f32", Z[i], "-v112", f"v{80 + i}", Z[i])
for i in range(4):
    g("v_mul_f32", Z[i], Z[i], "v113")
bf16r2(Z[0], Z[1], TT_[0])
bf16r2(Z[2], Z[3], TT_[1])
for i in range(4):
    g("v_add_f32", Z[i], Z[i], f"v{24 + i}")
bf16r2(Z[0], Z[1], TT_[0])
bf16r2(Z[2], Z[3], TT_[1])
for i in range(4):
    g("v_mul_f32", TT_[i], Z[i], Z[i])
for i in range(4):
    g("v_fma_f32", TT_[i], TT_[i], T[8], "v31")
for i in range(4):
    g("v_mul_f32", TT_[i], TT_[i], Z[i])
for i in range(4):
    g("v_exp_f32", TT_[i], TT_[i])
for i in range(4):
    g("v_add_f32", TT_[i], 1.0, TT_[i])
for i in range(4):
    g("v_rcp_f32", TT_[i], TT_[i])
for i in range(4):
    g("v_mul_f32", Z[i], Z[i], TT_[i])
for i in range(4):
    g("v_cvt_pk_bf16_f32", Z[i], Z[i], Z[i])
for i in range(4):
    bmask_mfma("v[12:15]", vr(48 + 4 * i), Z[i], i == 0)
g("buffer_store_dwordx4", "v[12:15]", "v29", SRD_WS, T[11], mods="offen sc1")
stamp(8)
seg_end()
g("s_branch", "L_fin")

g.label("L_segF")
g.restore(st_stat)
g("s_mov_b32", T[8], hex(WS_H))
g("v_mov_b32", "v28", 0)
g("v_lshlrev_b32", "v29", 3, "v0")
g("v_and_b32", "v30", 31, "v0")
g("v_lshlrev_b32", "v30", 6, "v30")
g("s_movk_i32", T[9], (128 + 3) * 16)
poll_tag(32, "v30", T[9], full)
if CFG["rep"]:
    poll_one("v1", T[8], 1 << 21, imm=2048)
poll_gather([32, 36, 40, 44], ["v1"] * 4, T[8], [full] * 4, imm=[0, 1024, 2048, 3072], slp=CFG["hsleep"])
stamp(7)
for k in range(8):
    g("v_cvt_pk_bf16_f32", f"v{16 + k}", f"v{32 + 2 * k}", f"v{33 + 2 * k}")
for b in range(2):
    g("ds_write_b64", "v29", vr(16 + 4 * b, 2), mods=f"offset:{L_HN + b * 1024}")
    g("ds_write_b64", "v29", vr(18 + 4 * b, 2), mods=f"offset:{L_HN + b * 1024 + 512}")
for b in range(2):
    g("v_readlane_b32", T[b], f"v{32 + 8 * b}", 0)
g.wait(lgkm=0)
barrier()
for b in range(2):
    for k in range(8):
        g("v_subrev_f32", f"v{32 + 8 * b + k}", T[b], f"v{32 + 8 * b + k}")
for b in range(2):
    base = 32 + 8 * b
    s1, s2 = f"v{8 + 2 * b}", f"v{9 + 2 * b}"
    g("v_add_f32", s1, f"v{base}", f"v{base + 1}")
    g("v_mul_f32", s2, f"v{base}", f"v{base}")
    g("v_fmac_f32", s2, f"v{base + 1}", f"v{base + 1}")
for k in range(2, 8):
    for b in range(2):
        base = 32 + 8 * b
        s1, s2 = f"v{8 + 2 * b}", f"v{9 + 2 * b}"
        g("v_add_f32", s1, s1, f"v{base + k}")
        g("v_fmac_f32", s2, f"v{base + k}", f"v{base + k}")
wave_reduce("v_add_f32", ["v8", "v9", "v10", "v11"])
g("v_mov_b32", "v12", "0x3b000000")
MU = ["v8", "v10"]
VA = ["v9", "v11"]
for b in range(2):
    g("v_mul_f32", MU[b], MU[b], "v12")
    g("v_mul_f32", VA[b], VA[b], "v12")
for b in range(2):
    g("v_fma_f32", VA[b], f"-{MU[b]}", MU[b], VA[b])
    g("v_add_f32", MU[b], T[b], MU[b])
for b in range(2):
    g("v_max_f32", VA[b], 0, VA[b])
for b in range(2):
    bf16r2(MU[b], VA[b], f"v{13 + b}")
for b in range(2):
    g("v_add_f32", VA[b], "0x3727c5ac", VA[b])
for b in range(2):
    bf16r(VA[b], VA[b])
for b in range(2):
    g("v_sqrt_f32", VA[b], VA[b])
for b in range(2):
    bf16r(VA[b], VA[b])
for b in range(2):
    g("v_rcp_f32", VA[b], VA[b])
g("s_mov_b32", T[0], 0)
g("s_brev_b32", T[1], 1)
g("s_and_b64", "exec", LIVE, f"s[{T[0][1:]}:{T[1][1:]}]")
g("ds_write_b128", "v28", "v[8:11]", mods=f"offset:{L_STAT}")
setexec(-1)
g.wait(lgkm=0)
barrier()
seg_end()
g("s_branch", "L_fin")

g.label("L_segG")
g.restore(st_y)
g("s_lshl_b32", T[8], S_WAVE, 10)
g("v_add_u32", "v16", T[8], "v1")
for k in range(4):
    g("ds_read_b128", vr(32 + 4 * k), "v16", mods=f"offset:{L_YP + 2048 * k}")
g("s_lshl_b32", T[8], S_B, 7)
g("s_lshl_b32", T[9], S_H, 2)
g("s_add_u32", T[8], T[8], T[9])
g("s_add_u32", T[8], T[8], S_SPL)
g("s_lshl_b32", T[8], T[8], 11)
g("s_add_u32", T[8], T[8], hex(WS_Y))
for r in range(4):
    g("v_add_f32", f"v{32 + r}", f"v{32 + r}", f"v{36 + r}")
    g("v_add_f32", f"v{40 + r}", f"v{40 + r}", f"v{44 + r}")
for r in range(4):
    g("v_add_f32", f"v{32 + r}", f"v{32 + r}", f"v{40 + r}")
g("buffer_store_dwordx4", "v[32:35]", "v16", SRD_WS, T[8], mods="offen sc1")
stamp(5)
seg_end()
g("s_cmp_lt_u32", "s2", 224)
g("s_cbranch_scc1", "L_fin")


def xlane_sum(base, tmp):
    for r in range(4):
        g("v_add_f32_dpp", f"v{base + r}", f"v{base + r}", f"v{base + r}", mods=f"row_ror:8 {DPPF}")
    for op in ("v_permlane16_swap_b32", "v_permlane32_swap_b32"):
        for r in range(4):
            g("v_mov_b32", f"v{tmp + r}", f"v{base + r}")
        for r in range(4):
            g(op, f"v{base + r}", f"v{tmp + r}")
        for r in range(4):
            g("v_add_f32", f"v{base + r}", f"v{base + r}", f"v{tmp + r}")


g.label("L_segH")
g.merge(st_y)
TB, TK, TX = T[10], T[11], T[12]
g("s_lshr_b32", TB, S_PI, 4)
g("s_and_b32", TK, S_PI, 15)
g("v_lshrrev_b32", "v18", 3, "v0")
g("v_and_b32", "v19", 7, "v0")
g("v_lshlrev_b32", "v19", 4, "v19")
g("v_lshl_add_u32", "v16", "v18", 11, "v19")
g("v_lshl_add_u32", "v17", "v18", 12, "v19")
g("s_lshl_b32", T[8], S_WAVE, 7)
g("v_add_u32", "v19", T[8], "v19")
g("v_and_b32", "v23", 31, "v0")
g("v_lshlrev_b32", "v25", 2, "v23")
g("v_lshrrev_b32", "v24", 5, "v0")
g("v_lshl_add_u32", "v24", "v24", 10, "v25")
g("v_and_b32", "v20", 3, "v23")
g("v_lshlrev_b32", "v20", 4, "v20")
g("v_lshrrev_b32", "v23", 2, "v23")
g("v_lshl_add_u32", "v20", "v23", 1, "v20")
g("s_lshl_b32", TX, TK, 6)
g("buffer_load_ushort", "v22", "v20", SRD_B2, TX, mods="offen")
g("s_lshl_b32", T[8], TB, 10)
g("s_add_u32", TX, TX, T[8])
g("buffer_load_ushort", "v21", "v20", SRD_X, TX, mods="offen")
g("s_lshl_b32", T[8], TB, 18)
g("s_lshl_b32", T[9], S_WAVE, 14)
g("s_add_u32", T[8], T[8], T[9])
g("s_lshl_b32", T[9], TK, 7)
g("s_add_u32", T[8], T[8], T[9])
g("s_add_u32", T[8], T[8], hex(WS_Y))
g("v_cmp_gt_u32", "vcc", NFFN, "v52")
g("s_mov_b32", T[9], 0)
g.wait_regs("v[56:63]")
st_pre = g.save()
poll_tag(56, "v53", T[9], "vcc", pre=True)
poll_tag(60, "v54", T[9], full, pre=True)
g.merge(st_pre)
g("v_mov_b32", "v44", "v60")
g("v_mov_b32", "v45", "v61")
g("v_mov_b32", "v46", "v44")
g("v_max_f32_dpp", "v46", "v46", "v46", mods=f"row_ror:8 {DPPF}")
g("v_mov_b32", "v47", "v46")
g("v_permlane16_swap_b32", "v46", "v47")
g("v_max_f32", "v46", "v46", "v47")
g("v_sub_f32", "v44", "v44", "v46")
g("v_exp_f32", "v44", "v44")
g("v_mul_f32", "v45", "v45", "v44")
g("v_add_f32_dpp", "v45", "v45", "v45", mods=f"row_ror:8 {DPPF}")
g("v_mov_b32", "v47", "v45")
g("v_permlane16_swap_b32", "v45", "v47")
g("v_add_f32", "v45", "v45", "v47")
g("v_rcp_f32", "v45", "v45")
g("v_mul_f32", "v44", "v44", "v45")
poll_gather([32], ["v16"], T[8], [full], slp=CFG["ysleep"])
for r in range(4):
    g("v_mul_f32", f"v{32 + r}", f"v{32 + r}", "v44")
xlane_sum(32, 36)
setexec("0xff")
g("ds_write_b128", "v19", "v[32:35]", mods=f"offset:{L_PART}")
setexec(-1)
for r in range(4):
    g("v_mov_b32", f"v{40 + r}", 0)
g("s_lshl_b32", T[8], S_WAVE, 15)
g("s_lshl_b32", T[9], S_PI, 7)
g("s_add_u32", T[8], T[8], T[9])
g("s_add_u32", T[8], T[8], hex(WS_F))
g.wait(lgkm=0)
barrier()
seg_end()
g("s_cmp_gt_u32", S_WAVE, 10)
g("s_cbranch_scc1", "L_fin")
g("s_cmp_lg_u32", S_WAVE, 0)
g("s_cbranch_scc1", "L_segJ")
st_j = g.save()
g.label("L_segI")
stamp(6)
for k in range(8):
    g("ds_read_b32", f"v{32 + k}", "v24", mods=f"offset:{L_PART + 128 * k}")
g("v_lshlrev_b32", "v21", 16, "v21")
g("v_lshlrev_b32", "v22", 16, "v22")
g("s_lshl_b32", T[9], S_PI, 7)
g("s_add_u32", T[9], T[9], hex(WS_H))
tree_sum([f"v{32 + k}" for k in range(8)])
g("v_mov_b32", "v33", "v32")
g("v_permlane32_swap_b32", "v32", "v33")
g("v_add_f32", "v32", "v32", "v33")
bf16r("v32", "v32")
g("v_add_f32", "v26", "v32", "v21")
bf16r("v26", "v26")
setexec("0xffffffff")
g("buffer_store_dword", "v26", "v25", SRD_WS, T[9], mods="offen sc1")
setexec(-1)
seg_end()
g.label("L_segJ")
g.merge(st_j)
g("s_lshl_b32", T[9], S_WAVE, 3)
g("v_add_u32", "v27", T[9], "v18")
g("v_cmp_gt_u32", "vcc", NFFN, "v27")
poll_gather([40], ["v17"], T[8], ["vcc"], slp=CFG["fsleep"])
xlane_sum(40, 36)
setexec("0xff")
g("ds_write_b128", "v19", "v[40:43]", mods=f"offset:{L_PART + 2048}")
setexec(-1)
g.wait(lgkm=0)
barrier()
g("s_cbranch_execz", "L_j2")
g("s_cmp_lg_u32", S_WAVE, 0)
g("s_cbranch_scc1", "L_fin")
g.label("L_j2")
g("v_lshrrev_b32", "v27", 5, "v0")
g("v_mul_u32_u24", "v27", 768, "v27")
g("v_add_u32", "v27", "v27", "v25")
for k in range(6):
    g("ds_read_b32", f"v{32 + k}", "v27", mods=f"offset:{L_PART + 2048 + 128 * k}")
g("s_mov_b32", T[0], -1)
g("s_mov_b32", T[1], 0)
g("v_cndmask_b32", "v37", 0, "v37", f"s[{T[0][1:]}:{T[1][1:]}]")
tree_sum([f"v{32 + k}" for k in range(6)])
g("v_mov_b32", "v33", "v32")
g("v_permlane32_swap_b32", "v32", "v33")
g("v_add_f32", "v32", "v32", "v33")
bf16r("v32", "v32")
g("v_add_f32", "v32", "v32", "v22")
bf16r("v32", "v32")
g("v_add_f32", "v32", "v32", "v26")
g("v_cvt_pk_bf16_f32", "v32", "v32", "v32")
setexec("0xffffffff")
g("buffer_store_short", "v32", "v20", SRD_OUT, TX, mods="offen")
setexec(-1)
stamp(9)
seg_end()
g.dry_guard = False

g.label("L_fin")
if CFG["diag"]:
    g.nop(8)
    g.wait(vm=0, lgkm=0)
    diag_store()
g.label("L_end")
g("s_endpgm")
if not CFG["dry"]:
    g.label("L_dryret")
    g("s_endpgm")

hdr = open("cdna_kernels/" + NAME + ".s.ref").read().split("\n")
head = []
for line in hdr:
    if line.startswith("; @launch"):
        head.append(f"; @launch grid=(256,1,1) block=(1024,1,1) lds={LDS_BYTES}")
    elif line.startswith(";"):
        head.append(line)
    else:
        break
src = "\n".join(head) + "\n"
src += f""".amdgcn_target "amdgcn-amd-amdhsa--gfx950"
.text
.globl {NAME}_kernel
.p2align 8
.type {NAME}_kernel,@function
{NAME}_kernel:
"""
src += g.text()
src += f""".section .rodata,"a"
.p2align 6
.amdhsa_kernel {NAME}_kernel
  .amdhsa_next_free_vgpr 128
  .amdhsa_next_free_sgpr 102
  .amdhsa_accum_offset 128
  .amdhsa_group_segment_fixed_size 0
  .amdhsa_kernarg_size 104
  .amdhsa_user_sgpr_count 2
  .amdhsa_user_sgpr_kernarg_segment_ptr 1
  .amdhsa_system_sgpr_workgroup_id_x 1
.end_amdhsa_kernel
"""
open(sys.argv[1], "w").write(src)
print("instructions:", g.ninstr)
```

```python
import sys
import struct
from asmgen import Gen

NAME = "sequential_preLN__mha_block_cached__dense_activation_gelu__decode"

CFG = dict(
    kv_mods="nt", w_mods="nt", diag=0, spin_limit=200000,
    D=2,
    DW=0,
    wo0=5,
    stpos=9,
    stuse=8,
    rchk=13,
    b1pos="K4",
    drypos="K6",
    gpos="K8",
    qbar="K11",
    qx=1,
    dry=1,
    hsh=7,
    prio=0,
    sleep=0,
    sleep1=0,
    athr=6,
    asleep=1,
    rep=1,
    wopos="3,6,9,12,15,17,19,21",
    word=9,
    fspin=2,
    pdly=2,
    gdly=2,
    nob1=0,
    nob2=0,
    noclr=0,
    nost=0,
    nowo=0,
    nokc=0,
    nend=0,
    dend=4,
    zsleep=0,
    hsleep=1,
    ysleep=1,
    fsleep=1,
)
for a in sys.argv[2:]:
    k, v = a.split("=", 1)
    if isinstance(CFG[k], int):
        v = int(v)
    CFG[k] = v

NFFN = 86
WS_ST = 0x0
WS_H = 0x8000
WS_Y = 0x10000
WS_F = 0x100000
WS_QP = 0x180000
WS_HR = 0x1d0000
WS_DIAG = 0x200000
WS_SIZE = 0x400000
NONCE = "s[40:41]"
N_LO, N_HI = "s40", "s41"
PSTR = 80
APITCH = 272
L_RED = 8192
L_PART = 0
L_QB = 20480
L_YP = 20736
L_ZP = 20736
L_CS = 21248
L_STAT = 21504
L_HN = 23552 + 16384
L_WST = 21536
L_NONCE = 21520
WPITCH = 1056
L_WO = 22528
L_W1 = 23552
LDS_BYTES = 22528 + 128 * 1056

S_WAVE, S_H, S_B, S_SPL = "s3", "s4", "s5", "s6"
SRD_K, SRD_V, SRD_WQ, SRD_WO = "s[44:47]", "s[48:51]", "s[52:55]", "s[56:59]"
SRD_X, SRD_WS, SRD_DBG, SRD_W1 = "s[60:63]", "s[64:67]", "s[68:71]", "s[72:75]"
SRD_W2, SRD_B1, SRD_B2, SRD_OUT = "s[76:79]", "s[80:83]", "s[84:87]", "s[88:91]"
S_KV, S_T, S_WO, S_M, S_BH, S_PI = "s92", "s93", "s94", "s95", "s96", "s97"
LIVE = "s[98:99]"
S_LOG2E, S_SCALE = "s42", "s43"
T = [f"s{16 + i}" for i in range(14)]
S_IT = "s29"
STAMP0 = 30
DPPF = "row_mask:0xf bank_mask:0xf"
full = (1 << 64) - 1


def vr(a, n=4):
    return f"v[{a}:{a + n - 1}]"


def f32hex(x):
    return "0x%08x" % struct.unpack("<I", struct.pack("<f", x))[0]


g = Gen()


def stamp(slot):
    if not CFG["diag"]:
        return
    lab = None
    if g.dry_guard:
        lab = g.newlabel("Lst")
        g("s_cbranch_execz", lab)
    g("s_memrealtime", "s[100:101]")
    g.wait(lgkm=0)
    g("s_mov_b32", f"s{STAMP0 + slot}", "s100")
    if lab:
        g.label(lab)


def srd(dst_base, ptr_lo, nbytes):
    g("s_mov_b32", f"s{dst_base}", f"s{ptr_lo}")
    g("s_and_b32", f"s{dst_base + 1}", f"s{ptr_lo + 1}", "0xffff")
    g("s_mov_b32", f"s{dst_base + 2}", hex(nbytes))
    g("s_mov_b32", f"s{dst_base + 3}", "0x00020000")


def setexec(m):
    if g.dry_guard:
        if m == -1:
            g("s_mov_b64", "exec", LIVE)
        else:
            g("s_and_b64", "exec", LIVE, m)
    else:
        g("s_mov_b64", "exec", m)


def barrier():
    if g.dry_guard:
        lab = g.newlabel("Lb")
        g("s_cbranch_execz", lab)
        g("s_barrier")
        g.label(lab)
    else:
        g("s_barrier")


def seg_end():
    g("s_cbranch_execz", "L_dryret")


def wave_reduce(op, regs):
    for sh in (8, 4, 2, 1):
        for r in regs:
            g(op + "_dpp", r, r, r, mods=f"row_ror:{sh} {DPPF}")
    for r in regs:
        g(op + "_dpp", r, r, r, mods="row_bcast:15 row_mask:0xa bank_mask:0xf")
    for r in regs:
        g(op + "_dpp", r, r, r, mods="row_bcast:31 row_mask:0xc bank_mask:0xf")


def bf16r(dst, src, tmp=None):
    t = tmp or dst
    g("v_cvt_pk_bf16_f32", t, src, src)
    g("v_and_b32", dst, "0xffff0000", t)


def bf16r2(a, b, tmp):
    g("v_cvt_pk_bf16_f32", tmp, a, b)
    g("v_lshlrev_b32", a, 16, tmp)
    g("v_and_b32", b, "0xffff0000", tmp)


def unpack(dlo, dhi, src):
    g("v_lshlrev_b32", dlo, 16, src)
    g("v_and_b32", dhi, "0xffff0000", src)


def tree_sum(regs, op="v_add_f32"):
    regs = list(regs)
    while len(regs) > 1:
        nxt = []
        for i in range(0, len(regs) - 1, 2):
            g(op, regs[i], regs[i], regs[i + 1])
            nxt.append(regs[i])
        if len(regs) % 2:
            nxt.append(regs[-1])
        regs = nxt
    return regs[0]


def bmask_mfma(D, A, val, first, bcast=None):
    for r in range(4):
        if bcast is None:
            g("v_and_b32", f"v{8 + r}", val, f"v{4 + r}")
        else:
            g("v_and_b32_dpp", f"v{8 + r}", val, f"v{4 + r}", mods=f"row_newbcast:{bcast} {DPPF}")
    g("v_mfma_f32_16x16x32_bf16", D, A, "v[8:11]", "0" if first else D)


def poll_one(voff, soff, lane_mask, imm=0):
    g("s_and_b64", "exec", LIVE, hex(lane_mask))
    g("s_mov_b32", S_IT, 0)
    g.flush_hazards()
    L = g.newlabel("Lp1")
    Ld = g.newlabel("Lp1done")
    g("s_cbranch_execz", Ld)
    g.label(L)
    g("buffer_load_dword", "v31", voff, SRD_WS, soff, mods=(f"offen offset:{imm + 12} sc1"))
    sv = g.dry_guard
    g.dry_guard = False
    g.wait(vm=0)
    g.dry_guard = sv
    g("v_cmp_eq_u32", "vcc", -1, "v31")
    g("s_add_u32", S_IT, S_IT, 1)
    g("s_cmp_eq_u64", "vcc", 0)
    g("s_cbranch_scc1", Ld)
    g("s_cmp_lt_u32", S_IT, CFG["spin_limit"])
    if CFG["sleep1"]:
        g("s_sleep", CFG["sleep1"])
    g("s_cbranch_scc1", L)
    g.label(Ld)
    g("s_mov_b64", "exec", LIVE)


def poll_gather(dsts, voffs, soff, masks, imm=None, adaptive=False, slp=None):
    pend = [f"s[{16 + 2 * k}:{17 + 2 * k}]" for k in range(len(dsts))]
    for k, m in enumerate(masks):
        if m == full:
            g("s_mov_b64", pend[k], LIVE)
        elif isinstance(m, str):
            g("s_and_b64", pend[k], LIVE, m)
        else:
            assert m < (1 << 31)
            g("s_and_b64", pend[k], LIVE, hex(m))
    g("s_mov_b32", S_IT, 0)
    g.flush_hazards()
    L = g.newlabel("Lpoll")
    Ld = g.newlabel("Lpolldone")
    g.label(L)
    for k, d in enumerate(dsts):
        g("s_mov_b64", "exec", pend[k])
        mods = "offen sc1"
        if imm and imm[k]:
            mods = f"offen offset:{imm[k]} sc1"
        g("buffer_load_dwordx4", vr(d), voffs[k], SRD_WS, soff, mods=mods)
    g("s_mov_b64", "exec", LIVE)
    g.wait(vm=0)
    for k, d in enumerate(dsts):
        g("s_mov_b64", "exec", pend[k])
        g("v_max3_u32", "v31", f"v{d}", f"v{d + 1}", f"v{d + 2}")
        g("v_max_u32", "v31", "v31", f"v{d + 3}")
        g("v_cmp_eq_u32", pend[k], -1, "v31")
    if len(dsts) == 1:
        g("s_or_b64", "s[100:101]", pend[0], pend[0])
    else:
        g("s_or_b64", "s[100:101]", pend[0], pend[1])
        for k in range(2, len(dsts)):
            g("s_or_b64", "s[100:101]", "s[100:101]", pend[k])
    g("s_cbranch_scc0", Ld)
    g("s_add_u32", S_IT, S_IT, 1)
    g("s_cmp_lt_u32", S_IT, CFG["spin_limit"])
    g("s_cbranch_scc0", Ld)
    if adaptive:
        g("s_bcnt1_i32_b64", "s100", "s[100:101]")
        g("s_cmp_le_u32", "s100", CFG["athr"])
        g.flush_hazards()
        g("s_cbranch_scc1", L)
        g("s_sleep", CFG["asleep"])
    elif slp:
        g("s_sleep", slp)
    g.flush_hazards()
    g("s_branch", L)
    g.label(Ld)
    g("s_mov_b64", "exec", LIVE)
    g.flush_hazards()


def poll_tag(dst, voff, soff, mask, pre=False):
    pend = "s[16:17]"
    if mask == full:
        g("s_mov_b64", pend, LIVE)
    else:
        g("s_and_b64", pend, LIVE, mask)
    g("s_mov_b32", S_IT, 0)
    g.flush_hazards()
    L = g.newlabel("Lpt")
    Ld = g.newlabel("Lptdone")
    Lc = g.newlabel("Lptchk")
    if pre:
        g("s_branch", Lc)
    g.label(L)
    g("s_mov_b64", "exec", pend)
    g("buffer_load_dwordx4", vr(dst), voff, SRD_WS, soff, mods="offen sc1")
    g("s_mov_b64", "exec", LIVE)
    g.wait(vm=0)
    g.label(Lc)
    g("s_mov_b64", "exec", pend)
    g("v_cmp_ne_u64", pend, NONCE, vr(dst + 2, 2))
    g("s_or_b64", "s[100:101]", pend, pend)
    g("s_cbranch_scc0", Ld)
    g("s_add_u32", S_IT, S_IT, 1)
    g("s_cmp_lt_u32", S_IT, CFG["spin_limit"])
    g("s_cbranch_scc0", Ld)
    g("s_sleep", 2)
    g.flush_hazards()
    g("s_branch", L)
    g.label(Ld)
    g("s_mov_b64", "exec", LIVE)
    g.flush_hazards()


def diag_store():
    if CFG["diag"] == 2:
        lab = g.newlabel("Ldd")
        g("s_cmp_lg_u32", S_WAVE, 0)
        g("s_cbranch_scc1", lab)
        g("s_cmp_eq_u32", "s2", 255)
        g("s_cselect_b32", "s7", 8, 0)
        g("s_cmp_eq_u32", "s2", 5)
        g("s_cselect_b32", "s7", 36, "s7")
        g("s_cmp_eq_u32", "s7", 0)
        g("s_cbranch_scc1", lab)
        g("v_mov_b32", "v30", 0)
        for n, i in enumerate((0, 1, 2, 3, 5, 6, 9)):
            g("s_sub_u32", "s8", f"s{STAMP0 + i}", N_LO)
            g("v_writelane_b32", "v30", "s8", n)
        g("v_lshlrev_b32", "v29", 2, "v0")
        g("s_mov_b64", "exec", "0x7f")
        g("buffer_store_dword", "v30", "v29", SRD_DBG, "s7", mods="offen")
        g.label(lab)
        return
    g("v_mov_b32", "v30", 0)
    for i in range(10):
        g("v_writelane_b32", "v30", f"s{STAMP0 + i}", i)
    g("s_lshl_b32", "s7", "s2", 4)
    g("s_add_u32", "s7", "s7", S_WAVE)
    g("s_lshl_b32", "s7", "s7", 6)
    g("s_add_u32", "s7", "s7", hex(WS_DIAG))
    g("v_lshlrev_b32", "v29", 2, "v0")
    g("s_mov_b64", "exec", "0xffff")
    g("buffer_store_dword", "v30", "v29", SRD_WS, "s7", mods="offen")


g("s_cmp_ge_u32", "s2", 256)
g("s_cbranch_scc1", "L_end")
g("s_load_dwordx16", "s[16:31]", "s[0:1]", 0)
g("s_load_dwordx8", "s[32:39]", "s[0:1]", 64)
g("s_load_dwordx2", "s[40:41]", "s[0:1]", 96)
g("v_readfirstlane_b32", S_WAVE, "v0")
g("v_and_b32", "v0", 63, "v0")
g("s_and_b32", "s7", "s2", 7)
g("s_lshr_b32", "s8", "s2", 3)
g("s_and_b32", "s9", "s8", 3)
g("s_lshl_b32", S_H, "s7", 2)
g("s_add_u32", S_H, S_H, "s9")
g("s_mov_b32", S_PI, S_H)
g("s_lshr_b32", "s13", "s8", 2)
g("s_lshr_b32", S_B, "s13", 2)
g("s_and_b32", S_SPL, "s13", 3)
g("s_lshr_b32", S_WAVE, S_WAVE, 6)
g("v_lshlrev_b32", "v1", 4, "v0")
g("v_lshrrev_b32", "v3", 4, "v0")
g("v_and_b32", "v2", 15, "v0")
g("v_lshlrev_b32", "v2", 4, "v2")
g("v_lshl_add_u32", "v2", "v3", 13, "v2")
g("v_lshlrev_b32", "v3", 1, "v3")
g("v_bfe_u32", "v8", "v0", 3, 1)
g("v_lshl_add_u32", "v3", "v8", 10, "v3")
g("s_lshl_b32", S_BH, S_B, 5)
g("s_add_u32", S_BH, S_BH, S_H)
g("s_lshl_b32", S_KV, S_BH, 20)
g("s_lshl_b32", "s7", S_SPL, 18)
g("s_add_u32", S_KV, S_KV, "s7")
g("s_lshl_b32", "s7", S_WAVE, 10)
g("s_add_u32", S_KV, S_KV, "s7")
g("s_lshl_b32", "s11", "s13", 4)
g("s_add_u32", "s11", "s11", S_WAVE)
g("s_lshl_b32", "s12", "s11", 15)
g("s_lshl_b32", "s7", S_H, 8)
g("s_add_u32", "s12", "s12", "s7")
g("s_lshl_b32", "s11", "s11", 3)
g.wait(lgkm=0)
srd(44, 18, 2 * 32 * 4096 * 128 * 2)
srd(60, 16, 2048)
srd(52, 22, 512 * 4096 * 2)
srd(64, 40, WS_SIZE)
srd(68, 38, 256)

kvm = CFG["kv_mods"]
wm = CFG["w_mods"]


def vreg(i):
    return 32 + 4 * i if i < 8 else 64 + 4 * (i - 8)


def kv_load(dst, srd_, i):
    g("s_add_u32", S_T, S_KV, i * 16384)
    g("buffer_load_dwordx4", vr(dst), "v1", srd_, S_T, mods=f"offen {kvm}".strip())


def wo_load(i):
    if CFG["nowo"]:
        g("s_mov_b32", "m0", L_WO)
        g("buffer_load_dword", "v1", SRD_X, 0, mods="offen lds")
        return
    g("s_add_u32", S_T, S_WO, i * 1024)
    g("s_mul_i32", "s101", S_WAVE, 8 * WPITCH)
    g("s_add_u32", "m0", "s101", L_WO + i * WPITCH)
    g("buffer_load_dwordx4", "v1", SRD_WO, S_T, mods=f"offen {wm} lds")


def st_load():
    g("v_lshlrev_b32", "v3", 3, "v0")
    g("s_lshl_b32", "s7", S_BH, 9)
    g("buffer_load_dwordx2", "v[32:33]", "v3", SRD_WS, "s7", mods="offen sc1")


D = CFG["D"]
stream = []
wopos = [int(x) for x in CFG["wopos"].split(",")]
base = []
for i in range(16):
    base.append((f"K{i}", None, (lambda i=i: kv_load(64 + 4 * i, SRD_K, i)), D))
for i in range(16):
    base.append((f"V{i}", "QDONE" if i < 8 else f"K{i - 8}", (lambda i=i: kv_load(vreg(i), SRD_V, i)), D))
for n, e in enumerate(base):
    stream.append(e)
    for i, p in enumerate(wopos):
        if p == n:
            stream.append((f"XO{i}", "WOK", (lambda i=i: wo_load(i)), 99))
NE = CFG["nend"]
for idx in range(len(stream) - NE, len(stream)):
    nm, pre, fn, dd = stream[idx]
    if dd < 99:
        stream[idx] = (nm, pre, fn, CFG["dend"])
freed = set()
spos = [0]
issued = set()
heavy = set()
dma_uids = set()


def pump(n=1, pace=True, until=None):
    cnt = 0
    while spos[0] < len(stream):
        if until is not None:
            if until in issued:
                return
        elif cnt >= n:
            return
        name, pre, fn, dd = stream[spos[0]]
        if pre is not None and pre not in freed:
            if until is not None:
                raise RuntimeError(f"blocked at {name} needs {pre}")
            return
        if pace:
            hv = 0
            for uid, ent in sorted(g.vm.items(), key=lambda kv: kv[1][0]):
                if uid in heavy:
                    hv += 1
                    if hv == dd:
                        g.wait(vm=ent[0])
                        break
        fn()
        if name[0] in "KVW":
            heavy.add(g.uid)
        if name[0] == "X":
            dma_uids.add(g.uid)
        issued.add(name)
        spos[0] += 1
        cnt += 1


g("s_or_b32", "s7", "s2", S_WAVE)
g("s_cmp_lg_u32", "s7", 0)
g("s_cbranch_scc1", "L_nononce")
st_skip = g.save()
g("s_memrealtime", "s[8:9]")
g("v_mov_b32", "v10", 0)
g.wait(lgkm=0)
g("s_bitset1_b32", "s9", 31)
g("v_mov_b32", "v8", "s8")
g("v_mov_b32", "v9", "s9")
g("s_mov_b64", "exec", 1)
g("buffer_store_dwordx2", "v[8:9]", "v10", SRD_DBG, 0, mods="offen sc1")
g("s_mov_b64", "exec", -1)
g.label("L_nononce")
g.merge(st_skip)
pump(1, pace=False)
g("buffer_load_dwordx4", "v[24:27]", "v1", SRD_X, 0, mods="offen")
g("buffer_load_dwordx4", "v[28:31]", "v1", SRD_X, 0, mods="offen offset:1024")
g("buffer_load_ushort", "v3", "v3", SRD_X, "s11", mods="offen")
g("buffer_load_dwordx4", "v[60:63]", "v2", SRD_WQ, "s12", mods=f"offen {wm}".strip())
pump(D - 1, pace=False)

if CFG["diag"]:
    g("s_memrealtime", "s[100:101]")
    g.wait(lgkm=0)
    g("s_mov_b32", "s15", "s100")

g("s_cmp_gt_u32", S_WAVE, 7)
g("s_cbranch_scc1", "L_noclear")
st_skip = g.save()
for r in range(4):
    g("v_mov_b32", f"v{8 + r}", -1)
g("s_cmp_lt_u32", S_WAVE, 2)
g("s_cbranch_scc1", "L_clrY")
g("s_cmp_lt_u32", S_WAVE, 6)
g("s_cbranch_scc1", "L_clrF")
g("s_mov_b64", "exec", "0xff")
g("s_cmp_eq_u32", S_WAVE, 6)
g("s_cbranch_scc1", "L_clrH")
g("ds_write_b128", "v1", "v[8:11]", mods=f"offset:{L_WST}")
g("s_branch", "L_clrdone")
g.label("L_clrH")
g("s_cmp_lt_u32", "s2", 224)
g("s_cbranch_scc1", "L_clrdone")
g("s_lshl_b32", "s7", S_PI, 7)
g("s_add_u32", "s7", "s7", hex(WS_H))
g("s_branch", "L_clrst")
g.label("L_clrF")
g("s_cmp_ge_u32", "s2", NFFN)
g("s_cbranch_scc1", "L_clrdone")
g("s_lshl_b32", "s7", "s2", 12)
g("s_lshl_b32", "s8", S_WAVE, 10)
g("s_add_u32", "s7", "s7", "s8")
g("s_add_u32", "s7", "s7", hex(WS_F - 2048))
g("s_branch", "L_clrst")
g.label("L_clrY")
g("s_lshl_b32", "s7", S_B, 7)
g("s_lshl_b32", "s8", S_H, 2)
g("s_add_u32", "s7", "s7", "s8")
g("s_add_u32", "s7", "s7", S_SPL)
g("s_lshl_b32", "s7", "s7", 11)
g("s_lshl_b32", "s8", S_WAVE, 10)
g("s_add_u32", "s7", "s7", "s8")
g("s_add_u32", "s7", "s7", hex(WS_Y))
g.label("L_clrst")
g("buffer_store_dwordx4", "v[8:11]", "v1", SRD_WS, "s7", mods="offen sc1")
g.label("L_clrdone")
g("s_mov_b64", "exec", -1)
g.nop(2)
g.label("L_noclear")
g.merge(st_skip)
uids_before_clear_end = set(g.vm.keys())
g("v_mov_b32", "v22", 0)
g("v_mov_b32", "v23", 0)

srd(48, 20, 2 * 32 * 4096 * 128 * 2)
srd(56, 24, 4096 * 512 * 2)
srd(72, 28, 512 * 1376 * 2)
srd(76, 32, 1376 * 512 * 2)
srd(80, 30, 1376 * 2)
srd(84, 34, 512 * 2)
srd(88, 36, 2048)
if CFG["diag"]:
    g("s_mov_b32", f"s{STAMP0}", "s15")
    for i in range(1, 10):
        g("s_mov_b32", f"s{STAMP0 + i}", 0)
g("s_mov_b64", LIVE, -1)
if CFG["prio"]:
    for lvl in (1, 2, 3):
        lab = g.newlabel("Lprio")
        g("s_cmp_lt_u32", S_WAVE, 4 * lvl if CFG["prio"] == 1 else {1: 8, 2: 12, 3: 99}[lvl])
        g("s_cbranch_scc1", lab)
        g("s_setprio", lvl)
        g.label(lab)
g("s_mov_b32", S_LOG2E, "0x3fb8aa3b")
g("s_mov_b32", S_SCALE, "0x3db504f3")
g("s_lshl_b32", S_WO, S_H, 17)
g("s_lshl_b32", "s7", S_WAVE, 13)
g("s_add_u32", S_WO, S_WO, "s7")
freed.add("WOK")
for r in (16, 17, 18, 19, 20, 21, 52, 53, 54):
    g("v_mov_b32", f"v{r}", 0)
g("v_and_b32", "v12", 1, "v0")
g("v_lshlrev_b32", "v12", 4, "v12")
g("v_mov_b32", "v13", "0xffff")
g("v_lshlrev_b32", "v13", "v12", "v13")
g("v_bfe_u32", "v12", "v0", 1, 2)
for r in range(4):
    g("v_cmp_eq_u32", "vcc", r, "v12")
    g("v_cndmask_b32", f"v{4 + r}", 0, "v13", "vcc")

for b in range(2):
    for k in range(4):
        unpack(f"v{32 + 8 * b + 2 * k}", f"v{33 + 8 * b + 2 * k}", f"v{24 + 4 * b + k}")
for b in range(2):
    base = 32 + 8 * b
    g("v_add_f32", f"v{8 + b}", f"v{base}", f"v{base + 1}")
    g("v_add_f32", f"v{10 + b}", f"v{base + 2}", f"v{base + 3}")
    g("v_add_f32", f"v{12 + b}", f"v{base + 4}", f"v{base + 5}")
    g("v_add_f32", f"v{14 + b}", f"v{base + 6}", f"v{base + 7}")
for b in range(2):
    g("v_add_f32", f"v{8 + b}", f"v{8 + b}", f"v{10 + b}")
    g("v_add_f32", f"v{12 + b}", f"v{12 + b}", f"v{14 + b}")
for b in range(2):
    g("v_add_f32", f"v{8 + b}", f"v{8 + b}", f"v{12 + b}")
wave_reduce("v_add_f32", ["v8", "v9"])
g("v_readlane_b32", "s7", "v8", 63)
g("v_readlane_b32", "s8", "v9", 63)
pump(1)
g("s_cmp_lg_u32", S_WAVE, 8)
g("s_cbranch_scc1", "L_nn1")
st_skip = g.save()
g("buffer_load_dwordx2", "v[22:23]", "v20", SRD_DBG, 0, mods="offen sc1")
g.label("L_nn1")
g.merge(st_skip)
g("v_mov_b32", "v12", "0x3b000000")
g("v_mul_f32", "v16", "s7", "v12")
g("v_mul_f32", "v17", "s8", "v12")
for b in range(2):
    for k in range(8):
        g("v_sub_f32", f"v{32 + 8 * b + k}", f"v{32 + 8 * b + k}", f"v{16 + b}")
for b in range(2):
    g("v_mul_f32", f"v{8 + b}", f"v{32 + 8 * b}", f"v{32 + 8 * b}")
for k in range(1, 8):
    for b in range(2):
        g("v_fmac_f32", f"v{8 + b}", f"v{32 + 8 * b + k}", f"v{32 + 8 * b + k}")
wave_reduce("v_add_f32", ["v8", "v9"])
g("v_readlane_b32", "s7", "v8", 63)
g("v_readlane_b32", "s8", "v9", 63)
pump(1)
g("v_mul_f32", "v18", "s7", "v12")
g("v_mul_f32", "v19", "s8", "v12")
g("s_mov_b32", "s8", "0xff00ff00")
g("s_mov_b32", "s9", "0xff00ff00")
g("v_cndmask_b32", "v13", "v16", "v17", "s[8:9]")
g("v_cndmask_b32", "v14", "v18", "v19", "s[8:9]")
bf16r2("v13", "v14", "v15")
g("v_add_f32", "v14", "0x3727c5ac", "v14")
bf16r("v14", "v14")
g("v_sqrt_f32", "v14", "v14")
bf16r("v14", "v14")
g("v_rcp_f32", "v14", "v14")
g("v_lshlrev_b32", "v3", 16, "v3")
g("v_sub_f32", "v3", "v3", "v13")
bf16r("v3", "v3")
g("v_mul_f32", "v3", "v3", "v14")
g("v_cvt_pk_bf16_f32", "v16", "v3", "v3")
bmask_mfma("v[12:15]", "v[60:63]", "v16", True)
g("v_lshrrev_b32", "v16", 4, "v0")
g("v_and_b32", "v17", 7, "v0")
g("v_lshl_add_u32", "v16", "v16", 5, "v17")
g("v_bfe_u32", "v17", "v0", 3, 1)
g("v_lshl_add_u32", "v16", "v17", 7, "v16")
g("v_mul_u32_u24", "v16", PSTR, "v16")
g("s_lshl_b32", "s7", S_WAVE, 2)
g("v_add_u32", "v16", "s7", "v16")
for r in range(4):
    g("ds_write_b32", "v16", f"v{12 + r}", mods=f"offset:{L_PART + r * 8 * PSTR}")
pump(until=CFG["b1pos"])
pump(CFG["qx"], pace=False)
pend_clear = [v[0] for k, v in g.vm.items() if k in uids_before_clear_end]
if pend_clear:
    g.wait(vm=min(pend_clear))
g("s_cmp_lg_u32", S_WAVE, 8)
g("s_cbranch_scc1", "L_clrok")
st_skip = g.save()
g("v_cmp_ne_u32", "vcc", 0, "v23")
g("s_cmp_lg_u64", "vcc", 0)
g("s_cbranch_scc1", "L_nonceok")
st_ok = g.save()
g("s_mov_b32", S_IT, 0)
g.label("L_noncespin")
g("v_mov_b32", "v20", 0)
g("buffer_load_dwordx2", "v[22:23]", "v20", SRD_DBG, 0, mods="offen sc1")
g.wait(vm=0)
g("v_cmp_ne_u32", "vcc", 0, "v23")
g("s_cmp_lg_u64", "vcc", 0)
g("s_cbranch_scc1", "L_nonceok")
g("s_add_u32", S_IT, S_IT, 1)
g("s_cmp_lt_u32", S_IT, CFG["spin_limit"])
g("s_sleep", CFG["fspin"])
g("s_cbranch_scc1", "L_noncespin")
g.label("L_nonceok")
g.merge(st_ok)
g("v_mov_b32", "v20", 0)
g("s_mov_b64", "exec", 1)
g("ds_write_b64", "v20", "v[22:23]", mods=f"offset:{L_NONCE}")
g("s_mov_b64", "exec", -1)
g.label("L_clrok")
g.merge(st_skip)
g.wait(lgkm=0)
if not CFG["nob1"]:
    g("s_barrier")
g("v_mov_b32", "v20", 0)
g("ds_read_b64", "v[22:23]", "v20", mods=f"offset:{L_NONCE}")
g("v_readfirstlane_b32", N_LO, "v22")
g("v_readfirstlane_b32", N_HI, "v23")
g("v_and_b32", "v16", 7, "v0")
g("s_lshl_b32", "s7", S_WAVE, 3)
g("v_add_u32", "v17", "s7", "v16")
g("v_mul_u32_u24", "v16", 2 * PSTR, "v17")
g("v_lshrrev_b32", "v18", 3, "v0")
g("v_lshl_add_u32", "v16", "v18", 3, "v16")
g("ds_read_b64", "v[8:9]", "v16", mods=f"offset:{L_PART}")
g("ds_read_b64", "v[12:13]", "v16", mods=f"offset:{L_PART + PSTR}")
g("v_lshlrev_b32", "v17", 4, "v17")
g("s_lshl_b32", "s7", S_H, 14)
g("s_lshl_b32", "s8", S_B, 13)
g("s_add_u32", "s7", "s7", "s8")
g("s_lshl_b32", "s8", S_SPL, 11)
g("s_add_u32", "s7", "s7", "s8")
g("s_add_u32", "s7", "s7", hex(WS_QP))
g("v_add_f32", "v8", "v8", "v9")
g("v_add_f32", "v9", "v12", "v13")
for r in (8, 9):
    g("v_add_f32_dpp", f"v{r}", f"v{r}", f"v{r}", mods=f"row_ror:8 {DPPF}")
for op in ("v_permlane16_swap_b32", "v_permlane32_swap_b32"):
    g("v_mov_b32", "v12", "v8")
    g("v_mov_b32", "v13", "v9")
    g(op, "v8", "v12")
    g(op, "v9", "v13")
    g("v_add_f32", "v8", "v8", "v12")
    g("v_add_f32", "v9", "v9", "v13")
g("v_mov_b32", "v10", "v22")
g("v_mov_b32", "v11", "v23")
g("s_mov_b64", "exec", "0xff")
g("buffer_store_dwordx4", "v[8:11]", "v17", SRD_WS, "s7", mods="offen sc1")
g("s_mov_b64", "exec", -1)
freed.add("QDONE")

pump(until=CFG["drypos"])
SEGS = ["A", "B", "C", "D", "E", "F", "H", "I", "J"]
if CFG["dry"]:
    pump(1, pace=False)
    g.flush_hazards()
    g("s_mov_b64", LIVE, 0)
    g("s_mov_b64", "exec", 0)
    for n, sg in enumerate(SEGS):
        g("s_cmp_eq_u32", S_WAVE, n + 4)
        g("s_cbranch_scc1", f"L_seg{sg}")
    g.label("L_dryret")
    g("s_mov_b64", LIVE, -1)
    g("s_mov_b64", "exec", -1)
    g.wait(lgkm=0)
    g.nop(10)

def q_load():
    g("s_lshl_b32", "s7", S_H, 14)
    g("s_lshl_b32", "s8", S_B, 10)
    g("s_add_u32", "s7", "s7", "s8")
    g("s_lshl_b32", "s8", S_WAVE, 6)
    g("s_add_u32", "s7", "s7", "s8")
    g("s_add_u32", "s7", "s7", hex(WS_QP))
    g("buffer_load_dwordx4", "v[16:19]", "v12", SRD_WS, "s7", mods="offen sc1")


pump(until=CFG["gpos"])
g("v_bfe_u32", "v12", "v0", 2, 3)
g("v_and_b32", "v13", 3, "v0")
g("v_lshlrev_b32", "v13", 4, "v13")
g("v_lshl_add_u32", "v12", "v12", 11, "v13")
q_load()
pump(CFG["gdly"])
g("v_cmp_ne_u64", "vcc", NONCE, "v[18:19]")
g("s_cmp_eq_u64", "vcc", 0)
g("s_cbranch_scc1", "L_qok")
if CFG["nob2"]:
    g("s_branch", "L_qok")
st_ok = g.save()
g("s_mov_b32", S_IT, 0)
g.label("L_qspin")
q_load()
g.wait(vm=0)
g("v_cmp_ne_u64", "vcc", NONCE, "v[18:19]")
g("s_cmp_eq_u64", "vcc", 0)
g("s_cbranch_scc1", "L_qok")
g("s_add_u32", S_IT, S_IT, 1)
g("s_cmp_lt_u32", S_IT, CFG["spin_limit"])
g("s_sleep", CFG["fspin"])
g("s_cbranch_scc1", "L_qspin")
g.label("L_qok")
g.merge(st_ok)
for sh in (4, 8):
    for r in (16, 17):
        g("v_add_f32_dpp", f"v{r}", f"v{r}", f"v{r}", mods=f"row_ror:{sh} {DPPF}")
g("v_mov_b32", "v18", "v16")
g("v_mov_b32", "v19", "v17")
g("v_permlane16_swap_b32", "v16", "v18")
g("v_permlane16_swap_b32", "v17", "v19")
g("v_add_f32", "v16", "v16", "v18")
g("v_add_f32", "v17", "v17", "v19")
g("v_cvt_pk_bf16_f32", "v16", "v16", "v17")
g("v_lshrrev_b32", "v13", 2, "v13")
g("s_lshl_b32", "s7", S_WAVE, 4)
g("v_add_u32", "v13", "s7", "v13")
g("s_mov_b64", "exec", 15)
g("ds_write_b32", "v13", "v16", mods=f"offset:{L_QB}")
g("s_mov_b64", "exec", -1)
pump(until=CFG["qbar"])
pump(CFG["qx"], pace=False)
g.wait(lgkm=0)
if not CFG["nob2"]:
    g("s_barrier")
g("v_and_b32", "v12", 15, "v0")
g("v_lshlrev_b32", "v12", 4, "v12")
g("ds_read_b128", "v[8:11]", "v12", mods=f"offset:{L_QB}")
stamp(1)

for G in range(4):
    tgt = 4 * G + 3 + D
    nm = f"K{tgt}" if tgt < 16 else f"V{tgt - 16}"
    pump(until=nm)
    for step in range(4 if not CFG["nokc"] else 1):
        for u in range(4):
            i = 4 * G + u
            g("v_dot2_f32_bf16", f"v{16 + i}", f"v{64 + 4 * i + step}", f"v{8 + step}",
              "0" if step == 0 else f"v{16 + i}")
    for u in range(4):
        freed.add(f"K{4 * G + u}")
    pump(1)
    for sh in ((8, 4, 2, 1) if not CFG["nokc"] else ()):
        for u in range(4):
            i = 4 * G + u
            g("v_add_f32_dpp", f"v{16 + i}", f"v{16 + i}", f"v{16 + i}", mods=f"row_ror:{sh} {DPPF}")
    for u in (0, 2):
        i = 4 * G + u
        bf16r2(f"v{16 + i}", f"v{17 + i}", f"v{12 + u}")
    for u in range(4):
        i = 4 * G + u
        g("v_mul_f32", f"v{16 + i}", S_SCALE, f"v{16 + i}")
    for u in (0, 2):
        i = 4 * G + u
        bf16r2(f"v{16 + i}", f"v{17 + i}", f"v{12 + u}")

pump(1)
g("v_max3_f32", "v12", "v16", "v17", "v18")
g("v_max3_f32", "v13", "v19", "v20", "v21")
g("v_max3_f32", "v14", "v22", "v23", "v24")
g("v_max3_f32", "v15", "v25", "v26", "v27")
g("v_max3_f32", "v12", "v12", "v28", "v29")
g("v_max3_f32", "v13", "v13", "v30", "v31")
g("v_max3_f32", "v12", "v12", "v13", "v14")
g("v_max_f32", "v12", "v12", "v15")
for k in range(4):
    g("v_readlane_b32", f"s{8 + k}", "v12", 16 * k)
g("v_mov_b32", "v12", "s8")
g("v_max_f32", "v12", "s9", "v12")
g("v_max_f32", "v12", "s10", "v12")
g("v_max_f32", "v12", "s11", "v12")
g("v_mul_f32", "v12", S_LOG2E, "v12")
for i in range(16):
    g("v_fma_f32", f"v{16 + i}", f"v{16 + i}", S_LOG2E, "-v12")
for i in range(16):
    g("v_exp_f32", f"v{16 + i}", f"v{16 + i}")
pump(1)
g("v_readfirstlane_b32", S_M, "v12")
g("v_add_f32", "v8", "v16", "v17")
g("v_add_f32", "v9", "v18", "v19")
g("v_add_f32", "v10", "v20", "v21")
g("v_add_f32", "v11", "v22", "v23")
g("v_add_f32", "v13", "v24", "v25")
g("v_add_f32", "v14", "v26", "v27")
g("v_add_f32", "v8", "v8", "v28")
g("v_add_f32", "v9", "v9", "v29")
g("v_add_f32", "v10", "v10", "v30")
g("v_add_f32", "v11", "v11", "v31")
tree_sum(["v8", "v9", "v10", "v11", "v13", "v14"])
for k in range(4):
    g("v_readlane_b32", f"s{8 + k}", "v8", 16 * k)
g("v_mov_b32", "v13", "s8")
g("v_add_f32", "v13", "s9", "v13")
g("v_add_f32", "v13", "s10", "v13")
g("v_add_f32", "v13", "s11", "v13")
g("s_lshl_b32", "s8", S_WAVE, 3)
g("v_mov_b32", "v8", "s8")
g("s_mov_b64", "exec", 1)
g("ds_write_b64", "v8", "v[12:13]", mods=f"offset:{L_WST}")
g("s_mov_b64", "exec", -1)
for i in range(16):
    g("v_cvt_pk_bf16_f32", f"v{16 + i}", f"v{16 + i}", f"v{16 + i}")
stamp(2)


def factor():
    g("v_and_b32", "v3", 15, "v0")
    g("v_lshlrev_b32", "v3", 3, "v3")
    g("s_mov_b32", S_IT, 0)
    g.flush_hazards()
    g.label("L_stspin")
    g("ds_read_b64", "v[32:33]", "v3", mods=f"offset:{L_WST}")
    g.wait(lgkm=0)
    g("v_max_u32", "v34", "v32", "v33")
    g("v_cmp_eq_u32", "vcc", -1, "v34")
    g("s_add_u32", S_IT, S_IT, 1)
    g("s_cmp_eq_u64", "vcc", 0)
    g("s_cbranch_scc1", "L_stok")
    g("s_cmp_lt_u32", S_IT, CFG["spin_limit"])
    g("s_sleep", 1)
    g("s_cbranch_scc1", "L_stspin")
    g.label("L_stok")
    g("v_mov_b32", "v40", "v32")
    for sh in (8, 4, 2, 1):
        g("v_max_f32_dpp", "v40", "v40", "v40", mods=f"row_ror:{sh} {DPPF}")
    g("v_sub_f32", "v41", "v32", "v40")
    g("v_exp_f32", "v41", "v41")
    g("v_sub_f32", "v35", S_M, "v40")
    g("v_mul_f32", "v41", "v41", "v33")
    g("v_exp_f32", "v35", "v35")
    for sh in (8, 4, 2, 1):
        g("v_add_f32_dpp", "v41", "v41", "v41", mods=f"row_ror:{sh} {DPPF}")
    g("s_cmp_lg_u32", S_WAVE, 0)
    g("s_cbranch_scc1", "L_nostat")
    st_skip = g.save()
    g("v_mov_b32", "v42", N_LO)
    g("v_mov_b32", "v43", N_HI)
    g("s_lshl_b32", "s7", S_B, 7)
    g("s_lshl_b32", "s8", S_H, 2)
    g("s_add_u32", "s7", "s7", "s8")
    g("s_add_u32", "s7", "s7", S_SPL)
    g("s_lshl_b32", "s7", "s7", 4)
    g("v_mov_b32", "v34", 0)
    g("s_mov_b64", "exec", 1)
    g("buffer_store_dwordx4", "v[40:43]", "v34", SRD_WS, "s7", mods="offen sc1")
    g("s_mov_b64", "exec", -1)
    g.label("L_nostat")
    g.merge(st_skip)
    g("v_lshrrev_b32", "v39", 4, "v0")
    g("v_bfe_u32", "v37", "v0", 2, 1)
    g("v_lshlrev_b32", "v36", 6, "v39")
    g("v_lshl_add_u32", "v36", "v37", 4, "v36")
    g("v_and_b32", "v37", 3, "v0")
    g("v_lshl_add_u32", "v36", "v37", 1, "v36")
    g("s_mul_i32", "s7", S_WAVE, APITCH)
    g("v_add_u32", "v36", "s7", "v36")
    g("v_and_b32", "v37", 15, "v0")
    g("v_mul_u32_u24", "v37", APITCH, "v37")
    g("v_lshl_add_u32", "v37", "v39", 4, "v37")
    g("v_and_b32", "v38", 7, "v0")
    g("v_lshlrev_b32", "v38", 4, "v38")
    g("v_bfe_u32", "v34", "v0", 4, 1)
    g("v_lshl_add_u32", "v38", "v34", 3, "v38")
    g("v_bfe_u32", "v34", "v0", 3, 1)
    g("v_lshl_add_u32", "v38", "v34", 2, "v38")
    g("s_lshl_b32", S_WO, S_B, 7)
    g("s_lshl_b32", "s8", S_H, 2)
    g("s_add_u32", S_WO, S_WO, "s8")
    g("s_add_u32", S_WO, S_WO, S_SPL)
    g("s_lshl_b32", S_WO, S_WO, 11)
    g("s_lshl_b32", "s8", S_WAVE, 7)
    g("s_add_u32", S_WO, S_WO, "s8")
    g("s_add_u32", S_WO, S_WO, hex(WS_Y))
    assert all(f"XO{k}" in issued for k in range(8))
    g("s_mov_b32", "s12", "0xffff0000")
    g("s_mov_b32", "s13", 0)
    g("s_mov_b32", "s14", "0x00ff00ff")
    g("s_mov_b32", "s15", "0x00ff00ff")


names = [e[0] for e in stream]
for i in range(16):
    tgt = i + D
    while tgt < 16 and tgt + 1 < 16 + 8:
        nxt = tgt + 1
        if nxt < 16 and stream[names.index(f"V{nxt}")][3] >= nxt - i and stream[names.index(f"V{nxt}")][3] > D + CFG["DW"]:
            tgt = nxt
        else:
            break
    if tgt < 16:
        pump(until=f"V{tgt}")
    else:
        pump(100)
    bmask_mfma("v[12:15]", vr(vreg(i)), f"v{16 + i}", i == 0)
    freed.add(f"PV{i}")
    if i == CFG["word"]:
        assert all(f"XO{k}" in issued for k in range(8))
        assert not any(len(v[1]) == 0 and k in dma_uids for k, v in g.vm.items()), "wo DMA not known complete"
        g("v_lshrrev_b32", "v3", 2, "v0")
        g("v_mul_u32_u24", "v3", WPITCH, "v3")
        g("v_and_b32", "v8", 3, "v0")
        g("v_lshl_add_u32", "v3", "v8", 3, "v3")
        g("s_lshl_b32", "s7", S_WAVE, 6)
        g("v_add_u32", "v3", "s7", "v3")
        pump(CFG["qx"], pace=False)
        if not CFG["nob2"]:
            g("s_barrier")
        for t in range(4):
            if t:
                g("v_add_u32", "v3", 32 * WPITCH, "v3")
            for nt in range(2):
                for hh in range(2):
                    g("ds_read_b64_tr_b16", vr(96 + 16 * nt + 4 * t + 2 * hh, 2), "v3",
                      mods=f"offset:{L_WO + hh * 16 * WPITCH + nt * 32}")
    if i == CFG["stuse"]:
        factor()
    if i == CFG["rchk"]:
        g("s_cmp_lt_u32", "s2", 224)
        g("s_cbranch_scc1", "L_norchk")
        st_skip = g.save()
        g("v_lshrrev_b32", "v52", 3, "v0")
        g("s_lshl_b32", "s7", S_WAVE, 3)
        g("v_add_u32", "v52", "s7", "v52")
        g("v_and_b32", "v53", 7, "v52")
        g("v_bfe_u32", "v54", "v52", 3, 2)
        g("v_lshl_add_u32", "v53", "v53", 2, "v54")
        g("v_lshrrev_b32", "v54", 5, "v52")
        g("v_lshl_add_u32", "v53", "v53", 2, "v54")
        g("v_lshlrev_b32", "v53", 4, "v53")
        g("v_lshlrev_b32", "v54", 4, "v52")
        g("s_lshr_b32", "s7", S_PI, 4)
        g("s_lshl_b32", "s7", "s7", 11)
        g("v_add_u32", "v54", "s7", "v54")
        g("buffer_load_dwordx4", "v[56:59]", "v53", SRD_WS, 0, mods="offen sc1")
        g("buffer_load_dwordx4", "v[60:63]", "v54", SRD_WS, 0, mods="offen sc1")
        g.label("L_norchk")
        g.merge(st_skip)
pump(100)
assert spos[0] == len(stream)
stamp(3)

g.dry_guard = True
g.label("L_segA")
for r in range(4):
    g("v_mul_f32", f"v{12 + r}", f"v{12 + r}", "v35")
g("v_cvt_pk_bf16_f32", "v12", "v12", "v13")
g("v_cvt_pk_bf16_f32", "v14", "v14", "v15")
setexec("s[14:15]")
g("ds_write_b16", "v36", "v12", mods=f"offset:{L_PART + 0}")
g("ds_write_b16_d16_hi", "v36", "v12", mods=f"offset:{L_PART + 32}")
g("ds_write_b16", "v36", "v14", mods=f"offset:{L_PART + 8}")
g("ds_write_b16_d16_hi", "v36", "v14", mods=f"offset:{L_PART + 40}")
setexec(-1)
g.wait(lgkm=0)
barrier()
stamp(4)
for t in range(4):
    g("ds_read_b128", vr(64 + 4 * t), "v37", mods=f"offset:{L_PART + 64 * t}")
seg_end()
g.label("L_segB")
for t in range(4):
    for nt in range(2):
        Dn = "v[12:15]" if nt == 0 else "v[8:11]"
        g("v_mfma_f32_16x16x32_bf16", Dn, vr(64 + 4 * t), vr(96 + 16 * nt + 4 * t), "0" if t == 0 else Dn)
g("v_add_f32", "v12", "v12", "v13")
g("v_add_f32", "v14", "v14", "v15")
g("v_add_f32", "v8", "v8", "v9")
g("v_add_f32", "v10", "v10", "v11")
g("v_add_f32", "v12", "v12", "v14")
g("v_add_f32", "v8", "v8", "v10")
for op in ("v_permlane16_swap_b32", "v_permlane32_swap_b32"):
    g("v_mov_b32", "v13", "v12")
    g("v_mov_b32", "v9", "v8")
    g(op, "v12", "v13")
    g(op, "v8", "v9")
    g("v_add_f32", "v12", "v12", "v13")
    g("v_add_f32", "v8", "v8", "v9")
g("v_cndmask_b32", "v12", "v12", "v8", "s[12:13]")
g("s_mov_b32", "exec_hi", 0)
g("s_mov_b32", "exec_lo", f"s{LIVE[2:LIVE.index(':')]}")
g("buffer_store_dword", "v12", "v38", SRD_WS, S_WO, mods="offen sc1")
setexec(-1)
stamp(5)
seg_end()
st_y = g.save()
g("s_cmp_ge_u32", "s2", 224)
g("s_cbranch_scc1", "L_segH")
g("s_cmp_ge_u32", "s2", NFFN)
g("s_cbranch_scc1", "L_fin")
g("s_cmp_lt_u32", S_WAVE, 4)
g("s_cbranch_scc1", "L_fin")
g("s_cmp_gt_u32", S_WAVE, 9)
g("s_cbranch_scc1", "L_fin")
g("s_cmp_ge_u32", S_WAVE, 8)
g("s_cbranch_scc1", "L_segF")
st_stat = g.save()

g.label("L_segC")
TQ = T[12]
g("s_and_b32", TQ, S_WAVE, 3)
g("v_lshrrev_b32", "v18", 4, "v0")
g("v_and_b32", "v20", 1, "v0")
g("v_lshlrev_b32", "v20", 10, "v20")
g("v_lshl_add_u32", "v20", "v18", 4, "v20")
g("s_lshl_b32", T[8], TQ, 8)
g("v_add_u32", "v20", T[8], "v20")
g("v_and_b32", "v21", 3, "v0")
g("v_lshlrev_b32", "v21", 4, "v21")
g("v_bfe_u32", "v22", "v0", 2, 2)
g("v_lshl_add_u32", "v21", "v22", 2, "v21")
g("s_lshl_b32", T[8], TQ, 6)
g("v_add_u32", "v22", T[8], "v21")
g("s_lshl_b32", T[8], TQ, 7)
g("v_add_u32", "v21", T[8], "v21")
g("v_bfe_u32", "v23", "v0", 3, 1)
g("v_lshlrev_b32", "v28", 3, "v23")
g("v_lshlrev_b32", "v23", 6, "v23")
g("v_lshl_add_u32", "v23", "v18", 4, "v23")
g("v_lshlrev_b32", "v19", 4, "v18")
g("v_bfe_u32", "v29", "v0", 3, 1)
g("v_lshlrev_b32", "v29", 11, "v29")
g("v_lshl_add_u32", "v29", "v18", 7, "v29")
g("v_and_b32", "v30", 7, "v0")
g("v_lshl_add_u32", "v29", "v30", 4, "v29")
g("s_lshl_b32", T[11], "s2", 12)
g("s_lshl_b32", T[9], TQ, 9)
g("s_add_u32", T[11], T[11], T[9])
g("s_add_u32", T[11], T[11], hex(WS_F))
g("v_bfe_u32", "v31", "v0", 2, 2)
g("v_lshlrev_b32", "v31", 8, "v31")
g("v_lshl_add_u32", "v31", "v18", 6, "v31")
g("v_and_b32", "v17", 3, "v0")
g("v_lshl_add_u32", "v31", "v17", 3, "v31")
g("s_lshl_b32", T[8], TQ, 12)
g("v_add_u32", "v31", T[8], "v31")
for r in range(4):
    g("v_mov_b32", f"v{8 + r}", "0x3f803f80")
g("v_lshrrev_b32", "v16", 1, "v0")
g("s_movk_i32", T[8], 2752)
g("v_mul_lo_u32", "v16", "v16", T[8])
g("v_and_b32", "v17", 1, "v0")
g("v_lshl_add_u32", "v16", "v17", 4, "v16")
g("s_mul_i32", T[8], TQ, 128 * 2752)
g("s_lshl_b32", T[9], "s2", 5)
g("s_add_u32", T[8], T[8], T[9])
g("s_lshl_b32", T[9], TQ, 12)
g("s_add_u32", T[9], T[9], L_W1)
if CFG["zsleep"]:
    g("s_sleep", CFG["zsleep"])
for k in range(4):
    g("s_mov_b32", "m0", T[9])
    g("buffer_load_dwordx4", "v16", SRD_W1, T[8], mods="offen lds")
    if k < 3:
        g("s_add_u32", T[8], T[8], 32 * 2752)
        g("s_add_u32", T[9], T[9], 1024)
g("v_and_b32", "v17", 15, "v0")
g("v_lshlrev_b32", "v17", 4, "v17")
g("v_lshl_add_u32", "v17", "v18", 10, "v17")
g("s_lshl_b32", T[8], "s2", 14)
g("s_lshl_b32", T[9], TQ, 8)
g("s_add_u32", T[8], T[8], T[9])
for i in range(4):
    g("buffer_load_dwordx4", vr(48 + 4 * i), "v17", SRD_W2, T[8], mods="offen")
    if i < 3:
        g("s_add_u32", T[8], T[8], 4096)
g("v_lshlrev_b32", "v17", 1, "v18")
g("s_lshl_b32", T[8], "s2", 5)
for i in range(4):
    g("buffer_load_ushort", f"v{24 + i}", "v17", SRD_B1, T[8], mods=f"offen offset:{8 * i}" if i else "offen")
g.wait(vm=0)
g("s_cbranch_execz", "L_c3")
for tt in range(4):
    for hh in range(2):
        g("ds_read_b64_tr_b16", vr(64 + 4 * tt + 2 * hh, 2), "v31",
          mods=f"offset:{L_W1 + tt * 1024 + hh * 32}")
g.label("L_c3")
for tt in range(4):
    g("v_mfma_f32_16x16x32_bf16", "v[12:15]", "v[8:11]", vr(64 + 4 * tt), "0" if tt == 0 else "v[12:15]")
for i in range(4):
    g("v_lshlrev_b32", f"v{24 + i}", 16, f"v{24 + i}")
setexec("0xffff")
g("ds_write_b32", "v22", "v12", mods=f"offset:{L_CS}")
setexec(-1)
g.wait(lgkm=0)
seg_end()
g.label("L_segD")
barrier()
for tt in range(4):
    g("ds_read_b128", vr(32 + 4 * tt), "v20", mods=f"offset:{L_HN + tt * 64}")
for q in range(4):
    g("ds_read_b128", vr(80 + 4 * q), "v19", mods=f"offset:{L_CS + 64 * q}")
for tt in range(4):
    g("v_mfma_f32_16x16x32_bf16", "v[12:15]", vr(32 + 4 * tt), vr(64 + 4 * tt), "0" if tt == 0 else "v[12:15]")
for i in range(4):
    g("v_add_f32", f"v{80 + i}", f"v{80 + i}", f"v{84 + i}")
    g("v_add_f32", f"v{88 + i}", f"v{88 + i}", f"v{92 + i}")
for i in range(4):
    g("v_add_f32", f"v{80 + i}", f"v{80 + i}", f"v{88 + i}")
setexec("0xffff")
g("ds_write_b32", "v21", "v12", mods=f"offset:{L_ZP}")
g("ds_write_b32", "v21", "v13", mods=f"offset:{L_ZP + 64}")
setexec(-1)
K1 = -2.0 * 0.7978845608028654 * 1.4426950408889634
K3 = K1 * 0.044715
g("s_mov_b32", T[8], f32hex(K3))
g("v_mov_b32", "v31", f32hex(K1))
g.wait(lgkm=0)
barrier()
seg_end()
g.label("L_segE")
for q in range(4):
    g("ds_read_b128", vr(96 + 4 * q), "v23", mods=f"offset:{L_ZP + 128 * q}")
g("ds_read_b64", "v[112:113]", "v28", mods=f"offset:{L_STAT}")
for i in range(4):
    g("v_add_f32", f"v{96 + i}", f"v{96 + i}", f"v{100 + i}")
    g("v_add_f32", f"v{104 + i}", f"v{104 + i}", f"v{108 + i}")
Z = [f"v{96 + i}" for i in range(4)]
TT_ = [f"v{100 + i}" for i in range(4)]
for i in range(4):
    g("v_add_f32", Z[i], Z[i], f"v{104 + i}")
for i in range(4):
    g("v_fma_f32", Z[i], "-v112", f"v{80 + i}", Z[i])
for i in range(4):
    g("v_mul_f32", Z[i], Z[i], "v113")
bf16r2(Z[0], Z[1], TT_[0])
bf16r2(Z[2], Z[3], TT_[1])
for i in range(4):
    g("v_add_f32", Z[i], Z[i], f"v{24 + i}")
bf16r2(Z[0], Z[1], TT_[0])
bf16r2(Z[2], Z[3], TT_[1])
for i in range(4):
    g("v_mul_f32", TT_[i], Z[i], Z[i])
for i in range(4):
    g("v_fma_f32", TT_[i], TT_[i], T[8], "v31")
for i in range(4):
    g("v_mul_f32", TT_[i], TT_[i], Z[i])
for i in range(4):
    g("v_exp_f32", TT_[i], TT_[i])
for i in range(4):
    g("v_add_f32", TT_[i], 1.0, TT_[i])
for i in range(4):
    g("v_rcp_f32", TT_[i], TT_[i])
for i in range(4):
    g("v_mul_f32", Z[i], Z[i], TT_[i])
for i in range(4):
    g("v_cvt_pk_bf16_f32", Z[i], Z[i], Z[i])
for i in range(4):
    bmask_mfma("v[12:15]", vr(48 + 4 * i), Z[i], i == 0)
g("buffer_store_dwordx4", "v[12:15]", "v29", SRD_WS, T[11], mods="offen sc1")
stamp(8)
seg_end()
g("s_branch", "L_fin")

g.label("L_segF")
g.restore(st_stat)
TBB = T[12]
g("s_and_b32", TBB, S_WAVE, 1)
g("s_lshl_b32", T[8], TBB, 11)
g("s_add_u32", T[8], T[8], hex(WS_H))
g("s_lshl_b32", T[9], TBB, 3)
g("v_mov_b32", "v28", T[9])
g("v_lshlrev_b32", "v29", 3, "v0")
g("s_lshl_b32", T[9], TBB, 10)
g("v_add_u32", "v29", T[9], "v29")
g("v_and_b32", "v30", 15, "v0")
g("v_lshlrev_b32", "v30", 6, "v30")
g("s_add_u32", T[9], T[9], (128 + 3) * 16)
poll_tag(32, "v30", T[9], full)
if CFG["rep"]:
    poll_one("v1", T[8], 1 << 21, imm=1024)
poll_gather([32, 36], ["v1"] * 2, T[8], [full] * 2, imm=[0, 1024], slp=CFG["hsleep"])
stamp(7)
for k in range(4):
    g("v_cvt_pk_bf16_f32", f"v{16 + k}", f"v{32 + 2 * k}", f"v{33 + 2 * k}")
g("ds_write_b64", "v29", "v[16:17]", mods=f"offset:{L_HN}")
g("ds_write_b64", "v29", "v[18:19]", mods=f"offset:{L_HN + 512}")
g("v_readlane_b32", T[0], "v32", 0)
g.wait(lgkm=0)
barrier()
for k in range(8):
    g("v_subrev_f32", f"v{32 + k}", T[0], f"v{32 + k}")
g("v_add_f32", "v8", "v32", "v33")
g("v_mul_f32", "v9", "v32", "v32")
g("v_add_f32", "v10", "v34", "v35")
g("v_mul_f32", "v11", "v33", "v33")
g("v_add_f32", "v12", "v36", "v37")
g("v_fmac_f32", "v9", "v34", "v34")
g("v_add_f32", "v13", "v38", "v39")
g("v_fmac_f32", "v11", "v35", "v35")
g("v_add_f32", "v8", "v8", "v10")
g("v_fmac_f32", "v9", "v36", "v36")
g("v_add_f32", "v12", "v12", "v13")
g("v_fmac_f32", "v11", "v37", "v37")
g("v_add_f32", "v8", "v8", "v12")
g("v_fmac_f32", "v9", "v38", "v38")
g("v_fmac_f32", "v11", "v39", "v39")
g("v_mov_b32", "v12", "0x3b000000")
g("v_add_f32", "v9", "v9", "v11")
wave_reduce("v_add_f32", ["v8", "v9"])
g("v_mul_f32", "v8", "v8", "v12")
g("v_mul_f32", "v9", "v9", "v12")
g("v_fma_f32", "v9", "-v8", "v8", "v9")
g("v_add_f32", "v8", T[0], "v8")
g("v_max_f32", "v9", 0, "v9")
bf16r2("v8", "v9", "v13")
g("v_add_f32", "v9", "0x3727c5ac", "v9")
bf16r("v9", "v9")
g("v_sqrt_f32", "v9", "v9")
bf16r("v9", "v9")
g("v_rcp_f32", "v9", "v9")
g("s_mov_b32", T[0], 0)
g("s_brev_b32", T[1], 1)
g("s_and_b64", "exec", LIVE, f"s[{T[0][1:]}:{T[1][1:]}]")
g("ds_write_b64", "v28", "v[8:9]", mods=f"offset:{L_STAT}")
setexec(-1)
g.wait(lgkm=0)
barrier()
seg_end()
g("s_branch", "L_fin")


def xlane_sum(base, tmp):
    for r in range(4):
        g("v_add_f32_dpp", f"v{base + r}", f"v{base + r}", f"v{base + r}", mods=f"row_ror:8 {DPPF}")
    for op in ("v_permlane16_swap_b32", "v_permlane32_swap_b32"):
        for r in range(4):
            g("v_mov_b32", f"v{tmp + r}", f"v{base + r}")
        for r in range(4):
            g(op, f"v{base + r}", f"v{tmp + r}")
        for r in range(4):
            g("v_add_f32", f"v{base + r}", f"v{base + r}", f"v{tmp + r}")


g.label("L_segH")
g.restore(st_y)
TB, TK, TX = T[10], T[11], T[12]
g("s_lshr_b32", TB, S_PI, 4)
g("s_and_b32", TK, S_PI, 15)
g("v_lshrrev_b32", "v18", 3, "v0")
g("v_and_b32", "v19", 7, "v0")
g("v_lshlrev_b32", "v19", 4, "v19")
g("v_lshl_add_u32", "v16", "v18", 11, "v19")
g("v_lshl_add_u32", "v17", "v18", 12, "v19")
g("s_lshl_b32", T[8], S_WAVE, 7)
g("v_add_u32", "v19", T[8], "v19")
g("v_and_b32", "v23", 31, "v0")
g("v_lshlrev_b32", "v25", 2, "v23")
g("v_lshrrev_b32", "v24", 5, "v0")
g("v_lshl_add_u32", "v24", "v24", 10, "v25")
g("v_and_b32", "v20", 3, "v23")
g("v_lshlrev_b32", "v20", 4, "v20")
g("v_lshrrev_b32", "v23", 2, "v23")
g("v_lshl_add_u32", "v20", "v23", 1, "v20")
g("s_lshl_b32", TX, TK, 6)
g("buffer_load_ushort", "v22", "v20", SRD_B2, TX, mods="offen")
g("s_lshl_b32", T[8], TB, 10)
g("s_add_u32", TX, TX, T[8])
g("buffer_load_ushort", "v21", "v20", SRD_X, TX, mods="offen")
g("s_lshl_b32", T[8], TB, 18)
g("s_lshl_b32", T[9], S_WAVE, 14)
g("s_add_u32", T[8], T[8], T[9])
g("s_lshl_b32", T[9], TK, 7)
g("s_add_u32", T[8], T[8], T[9])
g("s_add_u32", T[8], T[8], hex(WS_Y))
g("v_cmp_gt_u32", "vcc", NFFN, "v52")
g("s_mov_b32", T[9], 0)
g.wait_regs("v[56:63]")
st_pre = g.save()
poll_tag(56, "v53", T[9], "vcc", pre=True)
poll_tag(60, "v54", T[9], full, pre=True)
g.merge(st_pre)
g("v_mov_b32", "v44", "v60")
g("v_mov_b32", "v45", "v61")
g("v_mov_b32", "v46", "v44")
g("v_max_f32_dpp", "v46", "v46", "v46", mods=f"row_ror:8 {DPPF}")
g("v_mov_b32", "v47", "v46")
g("v_permlane16_swap_b32", "v46", "v47")
g("v_max_f32", "v46", "v46", "v47")
g("v_sub_f32", "v44", "v44", "v46")
g("v_exp_f32", "v44", "v44")
g("v_mul_f32", "v45", "v45", "v44")
g("v_add_f32_dpp", "v45", "v45", "v45", mods=f"row_ror:8 {DPPF}")
g("v_mov_b32", "v47", "v45")
g("v_permlane16_swap_b32", "v45", "v47")
g("v_add_f32", "v45", "v45", "v47")
g("v_rcp_f32", "v45", "v45")
g("v_mul_f32", "v44", "v44", "v45")
poll_gather([32], ["v16"], T[8], [full], slp=CFG["ysleep"])
for r in range(4):
    g("v_mul_f32", f"v{32 + r}", f"v{32 + r}", "v44")
xlane_sum(32, 36)
setexec("0xff")
g("ds_write_b128", "v19", "v[32:35]", mods=f"offset:{L_RED}")
setexec(-1)
for r in range(4):
    g("v_mov_b32", f"v{40 + r}", 0)
g("s_lshl_b32", T[8], S_WAVE, 15)
g("s_lshl_b32", T[9], S_PI, 7)
g("s_add_u32", T[8], T[8], T[9])
g("s_add_u32", T[8], T[8], hex(WS_F))
g.wait(lgkm=0)
barrier()
seg_end()
g("s_cmp_gt_u32", S_WAVE, 10)
g("s_cbranch_scc1", "L_fin")
g("s_cmp_lg_u32", S_WAVE, 0)
g("s_cbranch_scc1", "L_segJ")
st_j = g.save()
g.label("L_segI")
stamp(6)
for k in range(8):
    g("ds_read_b32", f"v{32 + k}", "v24", mods=f"offset:{L_RED + 128 * k}")
g("v_lshlrev_b32", "v21", 16, "v21")
g("v_lshlrev_b32", "v22", 16, "v22")
g("s_lshl_b32", T[9], S_PI, 7)
g("s_add_u32", T[9], T[9], hex(WS_H))
tree_sum([f"v{32 + k}" for k in range(8)])
g("v_mov_b32", "v33", "v32")
g("v_permlane32_swap_b32", "v32", "v33")
g("v_add_f32", "v32", "v32", "v33")
bf16r("v32", "v32")
g("v_add_f32", "v26", "v32", "v21")
bf16r("v26", "v26")
setexec("0xffffffff")
g("buffer_store_dword", "v26", "v25", SRD_WS, T[9], mods="offen sc1")
setexec(-1)
seg_end()
g.label("L_segJ")
g.merge(st_j)
g("s_lshl_b32", T[9], S_WAVE, 3)
g("v_add_u32", "v27", T[9], "v18")
g("v_cmp_gt_u32", "vcc", NFFN, "v27")
poll_gather([40], ["v17"], T[8], ["vcc"], slp=CFG["fsleep"])
xlane_sum(40, 36)
setexec("0xff")
g("ds_write_b128", "v19", "v[40:43]", mods=f"offset:{L_RED + 2048}")
setexec(-1)
g.wait(lgkm=0)
barrier()
g("s_cbranch_execz", "L_j2")
g("s_cmp_lg_u32", S_WAVE, 0)
g("s_cbranch_scc1", "L_fin")
g.label("L_j2")
g("v_lshrrev_b32", "v27", 5, "v0")
g("v_mul_u32_u24", "v27", 768, "v27")
g("v_add_u32", "v27", "v27", "v25")
for k in range(6):
    g("ds_read_b32", f"v{32 + k}", "v27", mods=f"offset:{L_RED + 2048 + 128 * k}")
g("s_mov_b32", T[0], -1)
g("s_mov_b32", T[1], 0)
g("v_cndmask_b32", "v37", 0, "v37", f"s[{T[0][1:]}:{T[1][1:]}]")
tree_sum([f"v{32 + k}" for k in range(6)])
g("v_mov_b32", "v33", "v32")
g("v_permlane32_swap_b32", "v32", "v33")
g("v_add_f32", "v32", "v32", "v33")
bf16r("v32", "v32")
g("v_add_f32", "v32", "v32", "v22")
bf16r("v32", "v32")
g("v_add_f32", "v32", "v32", "v26")
g("v_cvt_pk_bf16_f32", "v32", "v32", "v32")
setexec("0xffffffff")
g("buffer_store_short", "v32", "v20", SRD_OUT, TX, mods="offen")
setexec(-1)
stamp(9)
seg_end()
g.dry_guard = False

g.label("L_fin")
if CFG["diag"]:
    g.nop(8)
    g.wait(vm=0, lgkm=0)
    diag_store()
g.label("L_end")
g("s_endpgm")
if not CFG["dry"]:
    g.label("L_dryret")
    g("s_endpgm")

hdr = open("cdna_kernels/" + NAME + ".s.ref").read().split("\n")
head = []
for line in hdr:
    if line.startswith("; @launch"):
        head.append(f"; @launch grid=(256,1,1) block=(1024,1,1) lds={LDS_BYTES}")
    elif line.startswith(";"):
        head.append(line)
    else:
        break
src = "\n".join(head) + "\n"
src += f""".amdgcn_target "amdgcn-amd-amdhsa--gfx950"
.text
.globl {NAME}_kernel
.p2align 8
.type {NAME}_kernel,@function
{NAME}_kernel:
"""
src += g.text()
src += f""".section .rodata,"a"
.p2align 6
.amdhsa_kernel {NAME}_kernel
  .amdhsa_next_free_vgpr 128
  .amdhsa_next_free_sgpr 102
  .amdhsa_accum_offset 128
  .amdhsa_group_segment_fixed_size 0
  .amdhsa_kernarg_size 104
  .amdhsa_user_sgpr_count 2
  .amdhsa_user_sgpr_kernarg_segment_ptr 1
  .amdhsa_system_sgpr_workgroup_id_x 1
.end_amdhsa_kernel
"""
open(sys.argv[1], "w").write(src)
print("instructions:", g.ninstr)
```

```python
import sys
import struct
from asmgen import Gen

NAME = "sequential_preLN__mha_block_cached__dense_activation_gelu__decode"

CFG = dict(
    kv_mods="nt", w_mods="nt", diag=0, spin_limit=200000,
    D=2,
    DW=0,
    wo0=5,
    stpos=9,
    stuse=8,
    rchk=13,
    b1pos="K4",
    drypos="K8",
    gpos="K9",
    qbar="K13",
    qx=1,
    dry=1,
    hsh=7,
    prio=0,
    sleep=0,
    sleep1=0,
    athr=6,
    asleep=1,
    rep=1,
    wopos="3,6,9,12,15,17,19,21",
    word=9,
    fspin=2,
    pdly=2,
    gdly=2,
    nob1=0,
    nob2=0,
    noclr=0,
    nost=0,
    nowo=0,
    nokc=0,
    nend=0,
    dend=4,
    zsleep=0,
    hsleep=1,
    ysleep=1,
    fsleep=1,
)
for a in sys.argv[2:]:
    k, v = a.split("=", 1)
    if isinstance(CFG[k], int):
        v = int(v)
    CFG[k] = v

NFFN = 86
WS_ST = 0x0
WS_H = 0x8000
WS_Y = 0x10000
WS_F = 0x100000
WS_QP = 0x180000
WS_HR = 0x1d0000
WS_DIAG = 0x200000
WS_SIZE = 0x400000
NONCE = "s[40:41]"
N_LO, N_HI = "s40", "s41"
PSTR = 80
APITCH = 272
L_RED = 8192
L_PART = 0
L_QB = 20480
L_YP = 20736
L_ZP = 20736
L_CS = 21248
L_STAT = 21504
L_HN = 23552 + 16384
L_WST = 21536
L_NONCE = 21520
WPITCH = 1056
L_WO = 22528
L_W1 = 23552
LDS_BYTES = 22528 + 128 * 1056

S_WAVE, S_H, S_B, S_SPL = "s3", "s4", "s5", "s6"
SRD_K, SRD_V, SRD_WQ, SRD_WO = "s[44:47]", "s[48:51]", "s[52:55]", "s[56:59]"
SRD_X, SRD_WS, SRD_DBG, SRD_W1 = "s[60:63]", "s[64:67]", "s[68:71]", "s[72:75]"
SRD_W2, SRD_B1, SRD_B2, SRD_OUT = "s[76:79]", "s[80:83]", "s[84:87]", "s[88:91]"
S_KV, S_T, S_WO, S_M, S_BH, S_PI = "s92", "s93", "s94", "s95", "s96", "s97"
LIVE = "s[98:99]"
S_LOG2E, S_SCALE = "s42", "s43"
T = [f"s{16 + i}" for i in range(14)]
S_IT = "s29"
STAMP0 = 30
DPPF = "row_mask:0xf bank_mask:0xf"
full = (1 << 64) - 1


def vr(a, n=4):
    return f"v[{a}:{a + n - 1}]"


def f32hex(x):
    return "0x%08x" % struct.unpack("<I", struct.pack("<f", x))[0]


g = Gen()


def stamp(slot):
    if not CFG["diag"]:
        return
    lab = None
    if g.dry_guard:
        lab = g.newlabel("Lst")
        g("s_cbranch_execz", lab)
    g("s_memrealtime", "s[100:101]")
    g.wait(lgkm=0)
    g("s_mov_b32", f"s{STAMP0 + slot}", "s100")
    if lab:
        g.label(lab)


def srd(dst_base, ptr_lo, nbytes):
    g("s_mov_b32", f"s{dst_base}", f"s{ptr_lo}")
    g("s_and_b32", f"s{dst_base + 1}", f"s{ptr_lo + 1}", "0xffff")
    g("s_mov_b32", f"s{dst_base + 2}", hex(nbytes))
    g("s_mov_b32", f"s{dst_base + 3}", "0x00020000")


def setexec(m):
    if g.dry_guard:
        if m == -1:
            g("s_mov_b64", "exec", LIVE)
        else:
            g("s_and_b64", "exec", LIVE, m)
    else:
        g("s_mov_b64", "exec", m)


def barrier():
    if g.dry_guard:
        lab = g.newlabel("Lb")
        g("s_cbranch_execz", lab)
        g("s_barrier")
        g.label(lab)
    else:
        g("s_barrier")


def seg_end():
    g("s_cbranch_execz", "L_dryret")


def wave_reduce(op, regs):
    for sh in (8, 4, 2, 1):
        for r in regs:
            g(op + "_dpp", r, r, r, mods=f"row_ror:{sh} {DPPF}")
    for r in regs:
        g(op + "_dpp", r, r, r, mods="row_bcast:15 row_mask:0xa bank_mask:0xf")
    for r in regs:
        g(op + "_dpp", r, r, r, mods="row_bcast:31 row_mask:0xc bank_mask:0xf")


def bf16r(dst, src, tmp=None):
    t = tmp or dst
    g("v_cvt_pk_bf16_f32", t, src, src)
    g("v_and_b32", dst, "0xffff0000", t)


def bf16r2(a, b, tmp):
    g("v_cvt_pk_bf16_f32", tmp, a, b)
    g("v_lshlrev_b32", a, 16, tmp)
    g("v_and_b32", b, "0xffff0000", tmp)


def unpack(dlo, dhi, src):
    g("v_lshlrev_b32", dlo, 16, src)
    g("v_and_b32", dhi, "0xffff0000", src)


def tree_sum(regs, op="v_add_f32"):
    regs = list(regs)
    while len(regs) > 1:
        nxt = []
        for i in range(0, len(regs) - 1, 2):
            g(op, regs[i], regs[i], regs[i + 1])
            nxt.append(regs[i])
        if len(regs) % 2:
            nxt.append(regs[-1])
        regs = nxt
    return regs[0]


def bmask_mfma(D, A, val, first, bcast=None):
    for r in range(4):
        if bcast is None:
            g("v_and_b32", f"v{8 + r}", val, f"v{4 + r}")
        else:
            g("v_and_b32_dpp", f"v{8 + r}", val, f"v{4 + r}", mods=f"row_newbcast:{bcast} {DPPF}")
    g("v_mfma_f32_16x16x32_bf16", D, A, "v[8:11]", "0" if first else D)


def poll_one(voff, soff, lane_mask, imm=0):
    g("s_and_b64", "exec", LIVE, hex(lane_mask))
    g("s_mov_b32", S_IT, 0)
    g.flush_hazards()
    L = g.newlabel("Lp1")
    Ld = g.newlabel("Lp1done")
    g("s_cbranch_execz", Ld)
    g.label(L)
    g("buffer_load_dword", "v31", voff, SRD_WS, soff, mods=(f"offen offset:{imm + 12} sc1"))
    sv = g.dry_guard
    g.dry_guard = False
    g.wait(vm=0)
    g.dry_guard = sv
    g("v_cmp_eq_u32", "vcc", -1, "v31")
    g("s_add_u32", S_IT, S_IT, 1)
    g("s_cmp_eq_u64", "vcc", 0)
    g("s_cbranch_scc1", Ld)
    g("s_cmp_lt_u32", S_IT, CFG["spin_limit"])
    if CFG["sleep1"]:
        g("s_sleep", CFG["sleep1"])
    g("s_cbranch_scc1", L)
    g.label(Ld)
    g("s_mov_b64", "exec", LIVE)


def poll_gather(dsts, voffs, soff, masks, imm=None, adaptive=False, slp=None):
    pend = [f"s[{16 + 2 * k}:{17 + 2 * k}]" for k in range(len(dsts))]
    for k, m in enumerate(masks):
        if m == full:
            g("s_mov_b64", pend[k], LIVE)
        elif isinstance(m, str):
            g("s_and_b64", pend[k], LIVE, m)
        else:
            assert m < (1 << 31)
            g("s_and_b64", pend[k], LIVE, hex(m))
    g("s_mov_b32", S_IT, 0)
    g.flush_hazards()
    L = g.newlabel("Lpoll")
    Ld = g.newlabel("Lpolldone")
    g.label(L)
    for k, d in enumerate(dsts):
        g("s_mov_b64", "exec", pend[k])
        mods = "offen sc1"
        if imm and imm[k]:
            mods = f"offen offset:{imm[k]} sc1"
        g("buffer_load_dwordx4", vr(d), voffs[k], SRD_WS, soff, mods=mods)
    g("s_mov_b64", "exec", LIVE)
    g.wait(vm=0)
    for k, d in enumerate(dsts):
        g("s_mov_b64", "exec", pend[k])
        g("v_max3_u32", "v31", f"v{d}", f"v{d + 1}", f"v{d + 2}")
        g("v_max_u32", "v31", "v31", f"v{d + 3}")
        g("v_cmp_eq_u32", pend[k], -1, "v31")
    if len(dsts) == 1:
        g("s_or_b64", "s[100:101]", pend[0], pend[0])
    else:
        g("s_or_b64", "s[100:101]", pend[0], pend[1])
        for k in range(2, len(dsts)):
            g("s_or_b64", "s[100:101]", "s[100:101]", pend[k])
    g("s_cbranch_scc0", Ld)
    g("s_add_u32", S_IT, S_IT, 1)
    g("s_cmp_lt_u32", S_IT, CFG["spin_limit"])
    g("s_cbranch_scc0", Ld)
    if adaptive:
        g("s_bcnt1_i32_b64", "s100", "s[100:101]")
        g("s_cmp_le_u32", "s100", CFG["athr"])
        g.flush_hazards()
        g("s_cbranch_scc1", L)
        g("s_sleep", CFG["asleep"])
    elif slp:
        g("s_sleep", slp)
    g.flush_hazards()
    g("s_branch", L)
    g.label(Ld)
    g("s_mov_b64", "exec", LIVE)
    g.flush_hazards()


def poll_tag(dst, voff, soff, mask, pre=False):
    pend = "s[16:17]"
    if mask == full:
        g("s_mov_b64", pend, LIVE)
    else:
        g("s_and_b64", pend, LIVE, mask)
    g("s_mov_b32", S_IT, 0)
    g.flush_hazards()
    L = g.newlabel("Lpt")
    Ld = g.newlabel("Lptdone")
    Lc = g.newlabel("Lptchk")
    if pre:
        g("s_branch", Lc)
    g.label(L)
    g("s_mov_b64", "exec", pend)
    g("buffer_load_dwordx4", vr(dst), voff, SRD_WS, soff, mods="offen sc1")
    g("s_mov_b64", "exec", LIVE)
    g.wait(vm=0)
    g.label(Lc)
    g("s_mov_b64", "exec", pend)
    g("v_cmp_ne_u64", pend, NONCE, vr(dst + 2, 2))
    g("s_or_b64", "s[100:101]", pend, pend)
    g("s_cbranch_scc0", Ld)
    g("s_add_u32", S_IT, S_IT, 1)
    g("s_cmp_lt_u32", S_IT, CFG["spin_limit"])
    g("s_cbranch_scc0", Ld)
    g("s_sleep", 2)
    g.flush_hazards()
    g("s_branch", L)
    g.label(Ld)
    g("s_mov_b64", "exec", LIVE)
    g.flush_hazards()


def diag_store():
    if CFG["diag"] == 2:
        lab = g.newlabel("Ldd")
        g("s_cmp_lg_u32", S_WAVE, 0)
        g("s_cbranch_scc1", lab)
        g("s_cmp_eq_u32", "s2", 255)
        g("s_cselect_b32", "s7", 8, 0)
        g("s_cmp_eq_u32", "s2", 5)
        g("s_cselect_b32", "s7", 36, "s7")
        g("s_cmp_eq_u32", "s7", 0)
        g("s_cbranch_scc1", lab)
        g("v_mov_b32", "v30", 0)
        for n, i in enumerate((0, 1, 2, 3, 5, 6, 9)):
            g("s_sub_u32", "s8", f"s{STAMP0 + i}", N_LO)
            g("v_writelane_b32", "v30", "s8", n)
        g("v_lshlrev_b32", "v29", 2, "v0")
        g("s_mov_b64", "exec", "0x7f")
        g("buffer_store_dword", "v30", "v29", SRD_DBG, "s7", mods="offen")
        g.label(lab)
        return
    g("v_mov_b32", "v30", 0)
    for i in range(10):
        g("v_writelane_b32", "v30", f"s{STAMP0 + i}", i)
    g("s_lshl_b32", "s7", "s2", 4)
    g("s_add_u32", "s7", "s7", S_WAVE)
    g("s_lshl_b32", "s7", "s7", 6)
    g("s_add_u32", "s7", "s7", hex(WS_DIAG))
    g("v_lshlrev_b32", "v29", 2, "v0")
    g("s_mov_b64", "exec", "0xffff")
    g("buffer_store_dword", "v30", "v29", SRD_WS, "s7", mods="offen")


g("s_cmp_ge_u32", "s2", 256)
g("s_cbranch_scc1", "L_end")
g("s_load_dwordx16", "s[16:31]", "s[0:1]", 0)
g("s_load_dwordx8", "s[32:39]", "s[0:1]", 64)
g("s_load_dwordx2", "s[40:41]", "s[0:1]", 96)
g("v_readfirstlane_b32", S_WAVE, "v0")
g("v_and_b32", "v0", 63, "v0")
g("s_and_b32", "s7", "s2", 7)
g("s_lshr_b32", "s8", "s2", 3)
g("s_and_b32", "s9", "s8", 3)
g("s_lshl_b32", S_H, "s7", 2)
g("s_add_u32", S_H, S_H, "s9")
g("s_mov_b32", S_PI, S_H)
g("s_lshr_b32", "s13", "s8", 2)
g("s_lshr_b32", S_B, "s13", 2)
g("s_and_b32", S_SPL, "s13", 3)
g("s_lshr_b32", S_WAVE, S_WAVE, 6)
g("v_lshlrev_b32", "v1", 4, "v0")
g("v_lshrrev_b32", "v3", 4, "v0")
g("v_and_b32", "v2", 15, "v0")
g("v_lshlrev_b32", "v2", 4, "v2")
g("v_lshl_add_u32", "v2", "v3", 13, "v2")
g("v_lshlrev_b32", "v3", 1, "v3")
g("v_bfe_u32", "v8", "v0", 3, 1)
g("v_lshl_add_u32", "v3", "v8", 10, "v3")
g("s_lshl_b32", S_BH, S_B, 5)
g("s_add_u32", S_BH, S_BH, S_H)
g("s_lshl_b32", S_KV, S_BH, 20)
g("s_lshl_b32", "s7", S_SPL, 18)
g("s_add_u32", S_KV, S_KV, "s7")
g("s_lshl_b32", "s7", S_WAVE, 10)
g("s_add_u32", S_KV, S_KV, "s7")
g("s_lshl_b32", "s11", "s13", 4)
g("s_add_u32", "s11", "s11", S_WAVE)
g("s_lshl_b32", "s12", "s11", 15)
g("s_lshl_b32", "s7", S_H, 8)
g("s_add_u32", "s12", "s12", "s7")
g("s_lshl_b32", "s11", "s11", 3)
g.wait(lgkm=0)
srd(44, 18, 2 * 32 * 4096 * 128 * 2)
srd(60, 16, 2048)
srd(52, 22, 512 * 4096 * 2)
srd(64, 40, WS_SIZE)
srd(68, 38, 256)

kvm = CFG["kv_mods"]
wm = CFG["w_mods"]


def vreg(i):
    return 32 + 4 * i if i < 8 else 64 + 4 * (i - 8)


def kv_load(dst, srd_, i):
    g("s_add_u32", S_T, S_KV, i * 16384)
    g("buffer_load_dwordx4", vr(dst), "v1", srd_, S_T, mods=f"offen {kvm}".strip())


def wo_load(i):
    if CFG["nowo"]:
        g("s_mov_b32", "m0", L_WO)
        g("buffer_load_dword", "v1", SRD_X, 0, mods="offen lds")
        return
    g("s_add_u32", S_T, S_WO, i * 1024)
    g("s_mul_i32", "s101", S_WAVE, 8 * WPITCH)
    g("s_add_u32", "m0", "s101", L_WO + i * WPITCH)
    g("buffer_load_dwordx4", "v1", SRD_WO, S_T, mods=f"offen {wm} lds")


def st_load():
    g("v_lshlrev_b32", "v3", 3, "v0")
    g("s_lshl_b32", "s7", S_BH, 9)
    g("buffer_load_dwordx2", "v[32:33]", "v3", SRD_WS, "s7", mods="offen sc1")


D = CFG["D"]
stream = []
wopos = [int(x) for x in CFG["wopos"].split(",")]
base = []
for i in range(16):
    base.append((f"K{i}", None, (lambda i=i: kv_load(64 + 4 * i, SRD_K, i)), D))
for i in range(16):
    base.append((f"V{i}", "QDONE" if i < 8 else f"K{i - 8}", (lambda i=i: kv_load(vreg(i), SRD_V, i)), D))
for n, e in enumerate(base):
    stream.append(e)
    for i, p in enumerate(wopos):
        if p == n:
            stream.append((f"XO{i}", "WOK", (lambda i=i: wo_load(i)), 99))
NE = CFG["nend"]
for idx in range(len(stream) - NE, len(stream)):
    nm, pre, fn, dd = stream[idx]
    if dd < 99:
        stream[idx] = (nm, pre, fn, CFG["dend"])
freed = set()
spos = [0]
issued = set()
heavy = set()
dma_uids = set()


def pump(n=1, pace=True, until=None):
    cnt = 0
    while spos[0] < len(stream):
        if until is not None:
            if until in issued:
                return
        elif cnt >= n:
            return
        name, pre, fn, dd = stream[spos[0]]
        if pre is not None and pre not in freed:
            if until is not None:
                raise RuntimeError(f"blocked at {name} needs {pre}")
            return
        if pace:
            hv = 0
            for uid, ent in sorted(g.vm.items(), key=lambda kv: kv[1][0]):
                if uid in heavy:
                    hv += 1
                    if hv == dd:
                        g.wait(vm=ent[0])
                        break
        fn()
        if name[0] in "KVW":
            heavy.add(g.uid)
        if name[0] == "X":
            dma_uids.add(g.uid)
        issued.add(name)
        spos[0] += 1
        cnt += 1


g("s_or_b32", "s7", "s2", S_WAVE)
g("s_cmp_lg_u32", "s7", 0)
g("s_cbranch_scc1", "L_nononce")
st_skip = g.save()
g("s_memrealtime", "s[8:9]")
g("v_mov_b32", "v10", 0)
g.wait(lgkm=0)
g("s_bitset1_b32", "s9", 31)
g("v_mov_b32", "v8", "s8")
g("v_mov_b32", "v9", "s9")
g("s_mov_b64", "exec", 1)
g("buffer_store_dwordx2", "v[8:9]", "v10", SRD_DBG, 0, mods="offen sc1")
g("s_mov_b64", "exec", -1)
g.label("L_nononce")
g.merge(st_skip)
pump(1, pace=False)
g("buffer_load_dwordx4", "v[24:27]", "v1", SRD_X, 0, mods="offen")
g("buffer_load_dwordx4", "v[28:31]", "v1", SRD_X, 0, mods="offen offset:1024")
g("buffer_load_ushort", "v3", "v3", SRD_X, "s11", mods="offen")
g("buffer_load_dwordx4", "v[60:63]", "v2", SRD_WQ, "s12", mods=f"offen {wm}".strip())
pump(D - 1, pace=False)

if CFG["diag"]:
    g("s_memrealtime", "s[100:101]")
    g.wait(lgkm=0)
    g("s_mov_b32", "s15", "s100")

g("s_cmp_lg_u32", S_WAVE, 1)
g("s_cbranch_scc1", "L_noclear")
st_skip = g.save()
for r in range(4):
    g("v_mov_b32", f"v{8 + r}", -1)
g("s_lshl_b32", "s7", S_B, 7)
g("s_lshl_b32", "s8", S_H, 2)
g("s_add_u32", "s7", "s7", "s8")
g("s_add_u32", "s7", "s7", S_SPL)
g("s_lshl_b32", "s7", "s7", 11)
g("s_add_u32", "s7", "s7", hex(WS_Y))
g("buffer_store_dwordx4", "v[8:11]", "v1", SRD_WS, "s7", mods="offen sc1")
g("buffer_store_dwordx4", "v[8:11]", "v1", SRD_WS, "s7", mods="offen offset:1024 sc1")
g("s_mov_b64", "exec", "0xff")
g("ds_write_b128", "v1", "v[8:11]", mods=f"offset:{L_WST}")
g("s_cmp_lt_u32", "s2", 224)
g("s_cbranch_scc1", "L_noclrh")
g("s_lshl_b32", "s7", S_PI, 7)
g("s_add_u32", "s7", "s7", hex(WS_H))
g("buffer_store_dwordx4", "v[8:11]", "v1", SRD_WS, "s7", mods="offen sc1")
g.label("L_noclrh")
g("s_mov_b64", "exec", -1)
g("s_cmp_ge_u32", "s2", NFFN)
g("s_cbranch_scc1", "L_noclear")
st_skip2 = g.save()
g("s_lshl_b32", "s7", "s2", 12)
g("s_add_u32", "s7", "s7", hex(WS_F))
for k in range(4):
    g("buffer_store_dwordx4", "v[8:11]", "v1", SRD_WS, "s7",
      mods=f"offen offset:{k * 1024} sc1" if k else "offen sc1")
g.label("L_noclear")
g.merge(st_skip)
g.merge(st_skip2)
uids_before_clear_end = set(g.vm.keys())
g("v_mov_b32", "v22", 0)
g("v_mov_b32", "v23", 0)

srd(48, 20, 2 * 32 * 4096 * 128 * 2)
srd(56, 24, 4096 * 512 * 2)
srd(72, 28, 512 * 1376 * 2)
srd(76, 32, 1376 * 512 * 2)
srd(80, 30, 1376 * 2)
srd(84, 34, 512 * 2)
srd(88, 36, 2048)
if CFG["diag"]:
    g("s_mov_b32", f"s{STAMP0}", "s15")
    for i in range(1, 10):
        g("s_mov_b32", f"s{STAMP0 + i}", 0)
g("s_mov_b64", LIVE, -1)
if CFG["prio"]:
    for lvl in (1, 2, 3):
        lab = g.newlabel("Lprio")
        g("s_cmp_lt_u32", S_WAVE, 4 * lvl if CFG["prio"] == 1 else {1: 8, 2: 12, 3: 99}[lvl])
        g("s_cbranch_scc1", lab)
        g("s_setprio", lvl)
        g.label(lab)
g("s_mov_b32", S_LOG2E, "0x3fb8aa3b")
g("s_mov_b32", S_SCALE, "0x3db504f3")
g("s_lshl_b32", S_WO, S_H, 17)
g("s_lshl_b32", "s7", S_WAVE, 13)
g("s_add_u32", S_WO, S_WO, "s7")
freed.add("WOK")
for r in (16, 17, 18, 19, 20, 21, 52, 53, 54):
    g("v_mov_b32", f"v{r}", 0)
g("v_and_b32", "v12", 1, "v0")
g("v_lshlrev_b32", "v12", 4, "v12")
g("v_mov_b32", "v13", "0xffff")
g("v_lshlrev_b32", "v13", "v12", "v13")
g("v_bfe_u32", "v12", "v0", 1, 2)
for r in range(4):
    g("v_cmp_eq_u32", "vcc", r, "v12")
    g("v_cndmask_b32", f"v{4 + r}", 0, "v13", "vcc")

for b in range(2):
    for k in range(4):
        unpack(f"v{32 + 8 * b + 2 * k}", f"v{33 + 8 * b + 2 * k}", f"v{24 + 4 * b + k}")
for b in range(2):
    base = 32 + 8 * b
    g("v_add_f32", f"v{8 + b}", f"v{base}", f"v{base + 1}")
    g("v_add_f32", f"v{10 + b}", f"v{base + 2}", f"v{base + 3}")
    g("v_add_f32", f"v{12 + b}", f"v{base + 4}", f"v{base + 5}")
    g("v_add_f32", f"v{14 + b}", f"v{base + 6}", f"v{base + 7}")
for b in range(2):
    g("v_add_f32", f"v{8 + b}", f"v{8 + b}", f"v{10 + b}")
    g("v_add_f32", f"v{12 + b}", f"v{12 + b}", f"v{14 + b}")
for b in range(2):
    g("v_add_f32", f"v{8 + b}", f"v{8 + b}", f"v{12 + b}")
wave_reduce("v_add_f32", ["v8", "v9"])
g("v_readlane_b32", "s7", "v8", 63)
g("v_readlane_b32", "s8", "v9", 63)
pump(1)
g("s_cmp_lg_u32", S_WAVE, 1)
g("s_cbranch_scc1", "L_nn1")
st_skip = g.save()
g("buffer_load_dwordx2", "v[22:23]", "v20", SRD_DBG, 0, mods="offen sc1")
g.label("L_nn1")
g.merge(st_skip)
g("v_mov_b32", "v12", "0x3b000000")
g("v_mul_f32", "v16", "s7", "v12")
g("v_mul_f32", "v17", "s8", "v12")
for b in range(2):
    for k in range(8):
        g("v_sub_f32", f"v{32 + 8 * b + k}", f"v{32 + 8 * b + k}", f"v{16 + b}")
for b in range(2):
    g("v_mul_f32", f"v{8 + b}", f"v{32 + 8 * b}", f"v{32 + 8 * b}")
for k in range(1, 8):
    for b in range(2):
        g("v_fmac_f32", f"v{8 + b}", f"v{32 + 8 * b + k}", f"v{32 + 8 * b + k}")
wave_reduce("v_add_f32", ["v8", "v9"])
g("v_readlane_b32", "s7", "v8", 63)
g("v_readlane_b32", "s8", "v9", 63)
pump(1)
g("v_mul_f32", "v18", "s7", "v12")
g("v_mul_f32", "v19", "s8", "v12")
g("s_mov_b32", "s8", "0xff00ff00")
g("s_mov_b32", "s9", "0xff00ff00")
g("v_cndmask_b32", "v13", "v16", "v17", "s[8:9]")
g("v_cndmask_b32", "v14", "v18", "v19", "s[8:9]")
bf16r2("v13", "v14", "v15")
g("v_add_f32", "v14", "0x3727c5ac", "v14")
bf16r("v14", "v14")
g("v_sqrt_f32", "v14", "v14")
bf16r("v14", "v14")
g("v_rcp_f32", "v14", "v14")
g("v_lshlrev_b32", "v3", 16, "v3")
g("v_sub_f32", "v3", "v3", "v13")
bf16r("v3", "v3")
g("v_mul_f32", "v3", "v3", "v14")
g("v_cvt_pk_bf16_f32", "v16", "v3", "v3")
bmask_mfma("v[12:15]", "v[60:63]", "v16", True)
g("v_lshrrev_b32", "v16", 4, "v0")
g("v_and_b32", "v17", 7, "v0")
g("v_lshl_add_u32", "v16", "v16", 5, "v17")
g("v_bfe_u32", "v17", "v0", 3, 1)
g("v_lshl_add_u32", "v16", "v17", 7, "v16")
g("v_mul_u32_u24", "v16", PSTR, "v16")
g("s_lshl_b32", "s7", S_WAVE, 2)
g("v_add_u32", "v16", "s7", "v16")
for r in range(4):
    g("ds_write_b32", "v16", f"v{12 + r}", mods=f"offset:{L_PART + r * 8 * PSTR}")
pump(until=CFG["b1pos"])
pump(CFG["qx"], pace=False)
g("s_cmp_lg_u32", S_WAVE, 1)
g("s_cbranch_scc1", "L_clrok")
st_skip = g.save()
pend_clear = [v[0] for k, v in g.vm.items() if k in uids_before_clear_end]
if pend_clear:
    g.wait(vm=min(pend_clear))
g("v_cmp_ne_u32", "vcc", 0, "v23")
g("s_cmp_lg_u64", "vcc", 0)
g("s_cbranch_scc1", "L_nonceok")
st_ok = g.save()
g("s_mov_b32", S_IT, 0)
g.label("L_noncespin")
g("v_mov_b32", "v20", 0)
g("buffer_load_dwordx2", "v[22:23]", "v20", SRD_DBG, 0, mods="offen sc1")
g.wait(vm=0)
g("v_cmp_ne_u32", "vcc", 0, "v23")
g("s_cmp_lg_u64", "vcc", 0)
g("s_cbranch_scc1", "L_nonceok")
g("s_add_u32", S_IT, S_IT, 1)
g("s_cmp_lt_u32", S_IT, CFG["spin_limit"])
g("s_sleep", CFG["fspin"])
g("s_cbranch_scc1", "L_noncespin")
g.label("L_nonceok")
g.merge(st_ok)
g("v_mov_b32", "v20", 0)
g("s_mov_b64", "exec", 1)
g("ds_write_b64", "v20", "v[22:23]", mods=f"offset:{L_NONCE}")
g("s_mov_b64", "exec", -1)
g.label("L_clrok")
g.merge(st_skip)
g.wait(lgkm=0)
if not CFG["nob1"]:
    g("s_barrier")
g("v_mov_b32", "v20", 0)
g("ds_read_b64", "v[22:23]", "v20", mods=f"offset:{L_NONCE}")
g("v_readfirstlane_b32", N_LO, "v22")
g("v_readfirstlane_b32", N_HI, "v23")
g("s_cmp_lg_u32", S_WAVE, 2)
g("s_cbranch_scc1", "L_nopub")
st_skip = g.save()
g("v_mul_u32_u24", "v16", 4 * PSTR, "v0")
for half in range(2):
    for oo in range(2):
        for k in range(4):
            g("ds_read_b128", vr(32 + 16 * oo + 4 * k), "v16",
              mods=f"offset:{L_PART + (2 * half + oo) * PSTR + 16 * k}")
    for oo in range(2):
        tree_sum([f"v{32 + 16 * oo + k}" for k in range(16)])
        g("v_mov_b32", f"v{8 + 4 * half + oo}", f"v{32 + 16 * oo}")
    g("v_mov_b32", f"v{10 + 4 * half}", "v22")
    g("v_mov_b32", f"v{11 + 4 * half}", "v23")
g("s_lshl_b32", "s7", S_H, 14)
g("s_lshl_b32", "s8", S_B, 13)
g("s_add_u32", "s7", "s7", "s8")
g("s_lshl_b32", "s8", S_SPL, 11)
g("s_add_u32", "s7", "s7", "s8")
g("s_add_u32", "s7", "s7", hex(WS_QP))
g("buffer_store_dwordx4", "v[8:11]", "v1", SRD_WS, "s7", mods="offen sc1")
g("buffer_store_dwordx4", "v[12:15]", "v1", SRD_WS, "s7", mods="offen offset:1024 sc1")
g.label("L_nopub")
g.merge(st_skip)

pump(until=CFG["drypos"])
SEGS = ["A", "B", "C", "D", "E", "F", "H", "I", "J"]
if CFG["dry"]:
    pump(1, pace=False)
    g.flush_hazards()
    g("s_mov_b64", LIVE, 0)
    g("s_mov_b64", "exec", 0)
    for n, sg in enumerate(SEGS):
        g("s_cmp_eq_u32", S_WAVE, n + 4)
        g("s_cbranch_scc1", f"L_seg{sg}")
    g.label("L_dryret")
    g("s_mov_b64", LIVE, -1)
    g("s_mov_b64", "exec", -1)
    g.wait(lgkm=0)
    g.nop(10)

GW = 3 if not CFG["nob2"] else 99


def q_loads():
    g("s_lshl_b32", "s7", S_H, 14)
    g("s_lshl_b32", "s8", S_B, 9)
    g("s_add_u32", "s7", "s7", "s8")
    g("s_add_u32", "s7", "s7", hex(WS_QP))
    for u in range(4):
        for part in range(2):
            g("buffer_load_dwordx4", vr(32 + 8 * u + 4 * part), "v12", SRD_WS, "s7",
              mods=f"offen offset:{part * 1024} sc1" if part else "offen sc1")
        if u < 3:
            g("s_add_u32", "s7", "s7", 4096)


def q_check():
    for k in range(8):
        g("v_xor_b32", f"v{16 + k}", N_LO, f"v{34 + 4 * k}")
        g("v_xor_b32", f"v{24 + k}", N_HI, f"v{35 + 4 * k}")
    for k in range(0, 16, 4):
        g("v_or3_b32", f"v{16 + k}", f"v{16 + k}", f"v{17 + k}", f"v{18 + k}")
    for k in range(0, 16, 4):
        g("v_or_b32", f"v{16 + k}", f"v{16 + k}", f"v{19 + k}")
    g("v_or3_b32", "v16", "v16", "v20", "v24")
    g("v_or_b32", "v16", "v16", "v28")
    g("v_cmp_ne_u32", "vcc", 0, "v16")
    g("s_cmp_eq_u64", "vcc", 0)


pump(until=CFG["gpos"])
g("s_cmp_lg_u32", S_WAVE, GW)
g("s_cbranch_scc1", "L_g1")
st_skip = g.save()
g("v_lshrrev_b32", "v12", 5, "v0")
g("v_and_b32", "v13", 31, "v0")
g("v_lshlrev_b32", "v13", 4, "v13")
g("v_lshl_add_u32", "v12", "v12", 11, "v13")
q_loads()
g.label("L_g1")
g.merge(st_skip)
pump(CFG["gdly"])
g("s_cmp_lg_u32", S_WAVE, GW)
g("s_cbranch_scc1", "L_nogather")
st_skip = g.save()
q_check()
g("s_cbranch_scc1", "L_qok")
st_ok = g.save()
g("s_mov_b32", S_IT, 0)
g.label("L_qspin")
q_loads()
g.wait(vm=0)
q_check()
g("s_cbranch_scc1", "L_qok")
g("s_add_u32", S_IT, S_IT, 1)
g("s_cmp_lt_u32", S_IT, CFG["spin_limit"])
g("s_sleep", CFG["fspin"])
g("s_cbranch_scc1", "L_qspin")
g.label("L_qok")
g.merge(st_ok)
CI = [0, 1, 4, 5]
for r in range(4):
    g("v_add_f32", f"v{16 + r}", f"v{32 + CI[r]}", f"v{40 + CI[r]}")
    g("v_add_f32", f"v{20 + r}", f"v{48 + CI[r]}", f"v{56 + CI[r]}")
for r in range(4):
    g("v_add_f32", f"v{16 + r}", f"v{16 + r}", f"v{20 + r}")
for r in range(4):
    g("v_mov_b32", f"v{20 + r}", f"v{16 + r}")
for r in range(4):
    g("v_permlane32_swap_b32", f"v{16 + r}", f"v{20 + r}")
for r in range(4):
    g("v_add_f32", f"v{16 + r}", f"v{16 + r}", f"v{20 + r}")
g("v_cvt_pk_bf16_f32", "v14", "v16", "v17")
g("v_cvt_pk_bf16_f32", "v15", "v18", "v19")
g("v_lshrrev_b32", "v13", 1, "v13")
g("ds_write_b64", "v13", "v[14:15]", mods=f"offset:{L_QB}")
g.label("L_nogather")
g.merge(st_skip)
freed.add("QDONE")
pump(until=CFG["qbar"])
pump(CFG["qx"], pace=False)
g.wait(lgkm=0)
if not CFG["nob2"]:
    g("s_barrier")
g("v_and_b32", "v12", 15, "v0")
g("v_lshlrev_b32", "v12", 4, "v12")
g("ds_read_b128", "v[8:11]", "v12", mods=f"offset:{L_QB}")
stamp(1)

for G in range(4):
    tgt = 4 * G + 3 + D
    nm = f"K{tgt}" if tgt < 16 else f"V{tgt - 16}"
    pump(until=nm)
    for step in range(4 if not CFG["nokc"] else 1):
        for u in range(4):
            i = 4 * G + u
            g("v_dot2_f32_bf16", f"v{16 + i}", f"v{64 + 4 * i + step}", f"v{8 + step}",
              "0" if step == 0 else f"v{16 + i}")
    for u in range(4):
        freed.add(f"K{4 * G + u}")
    pump(1)
    for sh in ((8, 4, 2, 1) if not CFG["nokc"] else ()):
        for u in range(4):
            i = 4 * G + u
            g("v_add_f32_dpp", f"v{16 + i}", f"v{16 + i}", f"v{16 + i}", mods=f"row_ror:{sh} {DPPF}")
    for u in (0, 2):
        i = 4 * G + u
        bf16r2(f"v{16 + i}", f"v{17 + i}", f"v{12 + u}")
    for u in range(4):
        i = 4 * G + u
        g("v_mul_f32", f"v{16 + i}", S_SCALE, f"v{16 + i}")
    for u in (0, 2):
        i = 4 * G + u
        bf16r2(f"v{16 + i}", f"v{17 + i}", f"v{12 + u}")

pump(1)
g("v_max3_f32", "v12", "v16", "v17", "v18")
g("v_max3_f32", "v13", "v19", "v20", "v21")
g("v_max3_f32", "v14", "v22", "v23", "v24")
g("v_max3_f32", "v15", "v25", "v26", "v27")
g("v_max3_f32", "v12", "v12", "v28", "v29")
g("v_max3_f32", "v13", "v13", "v30", "v31")
g("v_max3_f32", "v12", "v12", "v13", "v14")
g("v_max_f32", "v12", "v12", "v15")
for k in range(4):
    g("v_readlane_b32", f"s{8 + k}", "v12", 16 * k)
g("v_mov_b32", "v12", "s8")
g("v_max_f32", "v12", "s9", "v12")
g("v_max_f32", "v12", "s10", "v12")
g("v_max_f32", "v12", "s11", "v12")
g("v_mul_f32", "v12", S_LOG2E, "v12")
for i in range(16):
    g("v_fma_f32", f"v{16 + i}", f"v{16 + i}", S_LOG2E, "-v12")
for i in range(16):
    g("v_exp_f32", f"v{16 + i}", f"v{16 + i}")
pump(1)
g("v_readfirstlane_b32", S_M, "v12")
g("v_add_f32", "v8", "v16", "v17")
g("v_add_f32", "v9", "v18", "v19")
g("v_add_f32", "v10", "v20", "v21")
g("v_add_f32", "v11", "v22", "v23")
g("v_add_f32", "v13", "v24", "v25")
g("v_add_f32", "v14", "v26", "v27")
g("v_add_f32", "v8", "v8", "v28")
g("v_add_f32", "v9", "v9", "v29")
g("v_add_f32", "v10", "v10", "v30")
g("v_add_f32", "v11", "v11", "v31")
tree_sum(["v8", "v9", "v10", "v11", "v13", "v14"])
for k in range(4):
    g("v_readlane_b32", f"s{8 + k}", "v8", 16 * k)
g("v_mov_b32", "v13", "s8")
g("v_add_f32", "v13", "s9", "v13")
g("v_add_f32", "v13", "s10", "v13")
g("v_add_f32", "v13", "s11", "v13")
g("s_lshl_b32", "s8", S_WAVE, 3)
g("v_mov_b32", "v8", "s8")
g("s_mov_b64", "exec", 1)
g("ds_write_b64", "v8", "v[12:13]", mods=f"offset:{L_WST}")
g("s_mov_b64", "exec", -1)
for i in range(16):
    g("v_cvt_pk_bf16_f32", f"v{16 + i}", f"v{16 + i}", f"v{16 + i}")
stamp(2)


def factor():
    g("v_and_b32", "v3", 15, "v0")
    g("v_lshlrev_b32", "v3", 3, "v3")
    g("s_mov_b32", S_IT, 0)
    g.flush_hazards()
    g.label("L_stspin")
    g("ds_read_b64", "v[32:33]", "v3", mods=f"offset:{L_WST}")
    g.wait(lgkm=0)
    g("v_max_u32", "v34", "v32", "v33")
    g("v_cmp_eq_u32", "vcc", -1, "v34")
    g("s_add_u32", S_IT, S_IT, 1)
    g("s_cmp_eq_u64", "vcc", 0)
    g("s_cbranch_scc1", "L_stok")
    g("s_cmp_lt_u32", S_IT, CFG["spin_limit"])
    g("s_sleep", 1)
    g("s_cbranch_scc1", "L_stspin")
    g.label("L_stok")
    g("v_mov_b32", "v40", "v32")
    for sh in (8, 4, 2, 1):
        g("v_max_f32_dpp", "v40", "v40", "v40", mods=f"row_ror:{sh} {DPPF}")
    g("v_sub_f32", "v41", "v32", "v40")
    g("v_exp_f32", "v41", "v41")
    g("v_sub_f32", "v35", S_M, "v40")
    g("v_mul_f32", "v41", "v41", "v33")
    g("v_exp_f32", "v35", "v35")
    for sh in (8, 4, 2, 1):
        g("v_add_f32_dpp", "v41", "v41", "v41", mods=f"row_ror:{sh} {DPPF}")
    g("s_cmp_lg_u32", S_WAVE, 0)
    g("s_cbranch_scc1", "L_nostat")
    st_skip = g.save()
    g("v_mov_b32", "v42", N_LO)
    g("v_mov_b32", "v43", N_HI)
    g("s_lshl_b32", "s7", S_B, 7)
    g("s_lshl_b32", "s8", S_H, 2)
    g("s_add_u32", "s7", "s7", "s8")
    g("s_add_u32", "s7", "s7", S_SPL)
    g("s_lshl_b32", "s7", "s7", 4)
    g("v_mov_b32", "v34", 0)
    g("s_mov_b64", "exec", 1)
    g("buffer_store_dwordx4", "v[40:43]", "v34", SRD_WS, "s7", mods="offen sc1")
    g("s_mov_b64", "exec", -1)
    g.label("L_nostat")
    g.merge(st_skip)
    g("v_lshrrev_b32", "v39", 4, "v0")
    g("v_bfe_u32", "v37", "v0", 2, 1)
    g("v_lshlrev_b32", "v36", 6, "v39")
    g("v_lshl_add_u32", "v36", "v37", 4, "v36")
    g("v_and_b32", "v37", 3, "v0")
    g("v_lshl_add_u32", "v36", "v37", 1, "v36")
    g("s_mul_i32", "s7", S_WAVE, APITCH)
    g("v_add_u32", "v36", "s7", "v36")
    g("v_and_b32", "v37", 15, "v0")
    g("v_mul_u32_u24", "v37", APITCH, "v37")
    g("v_lshl_add_u32", "v37", "v39", 4, "v37")
    g("v_and_b32", "v38", 7, "v0")
    g("v_lshlrev_b32", "v38", 4, "v38")
    g("v_bfe_u32", "v34", "v0", 4, 1)
    g("v_lshl_add_u32", "v38", "v34", 3, "v38")
    g("v_bfe_u32", "v34", "v0", 3, 1)
    g("v_lshl_add_u32", "v38", "v34", 2, "v38")
    g("s_lshl_b32", S_WO, S_B, 7)
    g("s_lshl_b32", "s8", S_H, 2)
    g("s_add_u32", S_WO, S_WO, "s8")
    g("s_add_u32", S_WO, S_WO, S_SPL)
    g("s_lshl_b32", S_WO, S_WO, 11)
    g("s_lshl_b32", "s8", S_WAVE, 7)
    g("s_add_u32", S_WO, S_WO, "s8")
    g("s_add_u32", S_WO, S_WO, hex(WS_Y))
    assert all(f"XO{k}" in issued for k in range(8))
    g("s_mov_b32", "s12", "0xffff0000")
    g("s_mov_b32", "s13", 0)
    g("s_mov_b32", "s14", "0x00ff00ff")
    g("s_mov_b32", "s15", "0x00ff00ff")


names = [e[0] for e in stream]
for i in range(16):
    tgt = i + D
    while tgt < 16 and tgt + 1 < 16 + 8:
        nxt = tgt + 1
        if nxt < 16 and stream[names.index(f"V{nxt}")][3] >= nxt - i and stream[names.index(f"V{nxt}")][3] > D + CFG["DW"]:
            tgt = nxt
        else:
            break
    if tgt < 16:
        pump(until=f"V{tgt}")
    else:
        pump(100)
    bmask_mfma("v[12:15]", vr(vreg(i)), f"v{16 + i}", i == 0)
    freed.add(f"PV{i}")
    if i == CFG["word"]:
        assert all(f"XO{k}" in issued for k in range(8))
        assert not any(len(v[1]) == 0 and k in dma_uids for k, v in g.vm.items()), "wo DMA not known complete"
        g("v_lshrrev_b32", "v3", 2, "v0")
        g("v_mul_u32_u24", "v3", WPITCH, "v3")
        g("v_and_b32", "v8", 3, "v0")
        g("v_lshl_add_u32", "v3", "v8", 3, "v3")
        g("s_lshl_b32", "s7", S_WAVE, 6)
        g("v_add_u32", "v3", "s7", "v3")
        pump(CFG["qx"], pace=False)
        if not CFG["nob2"]:
            g("s_barrier")
        for t in range(4):
            if t:
                g("v_add_u32", "v3", 32 * WPITCH, "v3")
            for nt in range(2):
                for hh in range(2):
                    g("ds_read_b64_tr_b16", vr(96 + 16 * nt + 4 * t + 2 * hh, 2), "v3",
                      mods=f"offset:{L_WO + hh * 16 * WPITCH + nt * 32}")
    if i == CFG["stuse"]:
        factor()
    if i == CFG["rchk"]:
        g("s_cmp_lt_u32", "s2", 224)
        g("s_cbranch_scc1", "L_norchk")
        st_skip = g.save()
        g("v_lshrrev_b32", "v52", 3, "v0")
        g("s_lshl_b32", "s7", S_WAVE, 3)
        g("v_add_u32", "v52", "s7", "v52")
        g("v_and_b32", "v53", 7, "v52")
        g("v_bfe_u32", "v54", "v52", 3, 2)
        g("v_lshl_add_u32", "v53", "v53", 2, "v54")
        g("v_lshrrev_b32", "v54", 5, "v52")
        g("v_lshl_add_u32", "v53", "v53", 2, "v54")
        g("v_lshlrev_b32", "v53", 4, "v53")
        g("v_lshlrev_b32", "v54", 4, "v52")
        g("s_lshr_b32", "s7", S_PI, 4)
        g("s_lshl_b32", "s7", "s7", 11)
        g("v_add_u32", "v54", "s7", "v54")
        g("buffer_load_dwordx4", "v[56:59]", "v53", SRD_WS, 0, mods="offen sc1")
        g("buffer_load_dwordx4", "v[60:63]", "v54", SRD_WS, 0, mods="offen sc1")
        g.label("L_norchk")
        g.merge(st_skip)
pump(100)
assert spos[0] == len(stream)
stamp(3)

g.dry_guard = True
g.label("L_segA")
for r in range(4):
    g("v_mul_f32", f"v{12 + r}", f"v{12 + r}", "v35")
g("v_cvt_pk_bf16_f32", "v12", "v12", "v13")
g("v_cvt_pk_bf16_f32", "v14", "v14", "v15")
setexec("s[14:15]")
g("ds_write_b16", "v36", "v12", mods=f"offset:{L_PART + 0}")
g("ds_write_b16_d16_hi", "v36", "v12", mods=f"offset:{L_PART + 32}")
g("ds_write_b16", "v36", "v14", mods=f"offset:{L_PART + 8}")
g("ds_write_b16_d16_hi", "v36", "v14", mods=f"offset:{L_PART + 40}")
setexec(-1)
g.wait(lgkm=0)
barrier()
stamp(4)
for t in range(4):
    g("ds_read_b128", vr(64 + 4 * t), "v37", mods=f"offset:{L_PART + 64 * t}")
seg_end()
g.label("L_segB")
for t in range(4):
    for nt in range(2):
        Dn = "v[12:15]" if nt == 0 else "v[8:11]"
        g("v_mfma_f32_16x16x32_bf16", Dn, vr(64 + 4 * t), vr(96 + 16 * nt + 4 * t), "0" if t == 0 else Dn)
g("v_add_f32", "v12", "v12", "v13")
g("v_add_f32", "v14", "v14", "v15")
g("v_add_f32", "v8", "v8", "v9")
g("v_add_f32", "v10", "v10", "v11")
g("v_add_f32", "v12", "v12", "v14")
g("v_add_f32", "v8", "v8", "v10")
for op in ("v_permlane16_swap_b32", "v_permlane32_swap_b32"):
    g("v_mov_b32", "v13", "v12")
    g("v_mov_b32", "v9", "v8")
    g(op, "v12", "v13")
    g(op, "v8", "v9")
    g("v_add_f32", "v12", "v12", "v13")
    g("v_add_f32", "v8", "v8", "v9")
g("v_cndmask_b32", "v12", "v12", "v8", "s[12:13]")
g("s_mov_b32", "exec_hi", 0)
g("s_mov_b32", "exec_lo", f"s{LIVE[2:LIVE.index(':')]}")
g("buffer_store_dword", "v12", "v38", SRD_WS, S_WO, mods="offen sc1")
setexec(-1)
stamp(5)
seg_end()
st_y = g.save()
g("s_cmp_ge_u32", "s2", 224)
g("s_cbranch_scc1", "L_segH")
g("s_cmp_ge_u32", "s2", NFFN)
g("s_cbranch_scc1", "L_fin")
g("s_cmp_lt_u32", S_WAVE, 4)
g("s_cbranch_scc1", "L_fin")
g("s_cmp_gt_u32", S_WAVE, 8)
g("s_cbranch_scc1", "L_fin")
g("s_cmp_eq_u32", S_WAVE, 8)
g("s_cbranch_scc1", "L_segF")
st_stat = g.save()

g.label("L_segC")
TQ = T[12]
g("s_and_b32", TQ, S_WAVE, 3)
g("v_lshrrev_b32", "v18", 4, "v0")
g("v_and_b32", "v20", 1, "v0")
g("v_lshlrev_b32", "v20", 10, "v20")
g("v_lshl_add_u32", "v20", "v18", 4, "v20")
g("s_lshl_b32", T[8], TQ, 8)
g("v_add_u32", "v20", T[8], "v20")
g("v_and_b32", "v21", 3, "v0")
g("v_lshlrev_b32", "v21", 4, "v21")
g("v_bfe_u32", "v22", "v0", 2, 2)
g("v_lshl_add_u32", "v21", "v22", 2, "v21")
g("s_lshl_b32", T[8], TQ, 6)
g("v_add_u32", "v22", T[8], "v21")
g("s_lshl_b32", T[8], TQ, 7)
g("v_add_u32", "v21", T[8], "v21")
g("v_bfe_u32", "v23", "v0", 3, 1)
g("v_lshlrev_b32", "v28", 3, "v23")
g("v_lshlrev_b32", "v23", 6, "v23")
g("v_lshl_add_u32", "v23", "v18", 4, "v23")
g("v_lshlrev_b32", "v19", 4, "v18")
g("v_bfe_u32", "v29", "v0", 3, 1)
g("v_lshlrev_b32", "v29", 11, "v29")
g("v_lshl_add_u32", "v29", "v18", 7, "v29")
g("v_and_b32", "v30", 7, "v0")
g("v_lshl_add_u32", "v29", "v30", 4, "v29")
g("s_lshl_b32", T[11], "s2", 12)
g("s_lshl_b32", T[9], TQ, 9)
g("s_add_u32", T[11], T[11], T[9])
g("s_add_u32", T[11], T[11], hex(WS_F))
g("v_bfe_u32", "v31", "v0", 2, 2)
g("v_lshlrev_b32", "v31", 8, "v31")
g("v_lshl_add_u32", "v31", "v18", 6, "v31")
g("v_and_b32", "v17", 3, "v0")
g("v_lshl_add_u32", "v31", "v17", 3, "v31")
g("s_lshl_b32", T[8], TQ, 12)
g("v_add_u32", "v31", T[8], "v31")
for r in range(4):
    g("v_mov_b32", f"v{8 + r}", "0x3f803f80")
g("v_lshrrev_b32", "v16", 1, "v0")
g("s_movk_i32", T[8], 2752)
g("v_mul_lo_u32", "v16", "v16", T[8])
g("v_and_b32", "v17", 1, "v0")
g("v_lshl_add_u32", "v16", "v17", 4, "v16")
g("s_mul_i32", T[8], TQ, 128 * 2752)
g("s_lshl_b32", T[9], "s2", 5)
g("s_add_u32", T[8], T[8], T[9])
g("s_lshl_b32", T[9], TQ, 12)
g("s_add_u32", T[9], T[9], L_W1)
if CFG["zsleep"]:
    g("s_sleep", CFG["zsleep"])
for k in range(4):
    g("s_mov_b32", "m0", T[9])
    g("buffer_load_dwordx4", "v16", SRD_W1, T[8], mods="offen lds")
    if k < 3:
        g("s_add_u32", T[8], T[8], 32 * 2752)
        g("s_add_u32", T[9], T[9], 1024)
g("v_and_b32", "v17", 15, "v0")
g("v_lshlrev_b32", "v17", 4, "v17")
g("v_lshl_add_u32", "v17", "v18", 10, "v17")
g("s_lshl_b32", T[8], "s2", 14)
g("s_lshl_b32", T[9], TQ, 8)
g("s_add_u32", T[8], T[8], T[9])
for i in range(4):
    g("buffer_load_dwordx4", vr(48 + 4 * i), "v17", SRD_W2, T[8], mods="offen")
    if i < 3:
        g("s_add_u32", T[8], T[8], 4096)
g("v_lshlrev_b32", "v17", 1, "v18")
g("s_lshl_b32", T[8], "s2", 5)
for i in range(4):
    g("buffer_load_ushort", f"v{24 + i}", "v17", SRD_B1, T[8], mods=f"offen offset:{8 * i}" if i else "offen")
g.wait(vm=0)
g("s_cbranch_execz", "L_c3")
for tt in range(4):
    for hh in range(2):
        g("ds_read_b64_tr_b16", vr(64 + 4 * tt + 2 * hh, 2), "v31",
          mods=f"offset:{L_W1 + tt * 1024 + hh * 32}")
g.label("L_c3")
for tt in range(4):
    g("v_mfma_f32_16x16x32_bf16", "v[12:15]", "v[8:11]", vr(64 + 4 * tt), "0" if tt == 0 else "v[12:15]")
for i in range(4):
    g("v_lshlrev_b32", f"v{24 + i}", 16, f"v{24 + i}")
setexec("0xffff")
g("ds_write_b32", "v22", "v12", mods=f"offset:{L_CS}")
setexec(-1)
g.wait(lgkm=0)
seg_end()
g.label("L_segD")
barrier()
for tt in range(4):
    g("ds_read_b128", vr(32 + 4 * tt), "v20", mods=f"offset:{L_HN + tt * 64}")
for q in range(4):
    g("ds_read_b128", vr(80 + 4 * q), "v19", mods=f"offset:{L_CS + 64 * q}")
for tt in range(4):
    g("v_mfma_f32_16x16x32_bf16", "v[12:15]", vr(32 + 4 * tt), vr(64 + 4 * tt), "0" if tt == 0 else "v[12:15]")
for i in range(4):
    g("v_add_f32", f"v{80 + i}", f"v{80 + i}", f"v{84 + i}")
    g("v_add_f32", f"v{88 + i}", f"v{88 + i}", f"v{92 + i}")
for i in range(4):
    g("v_add_f32", f"v{80 + i}", f"v{80 + i}", f"v{88 + i}")
setexec("0xffff")
g("ds_write_b32", "v21", "v12", mods=f"offset:{L_ZP}")
g("ds_write_b32", "v21", "v13", mods=f"offset:{L_ZP + 64}")
setexec(-1)
K1 = -2.0 * 0.7978845608028654 * 1.4426950408889634
K3 = K1 * 0.044715
g("s_mov_b32", T[8], f32hex(K3))
g("v_mov_b32", "v31", f32hex(K1))
g.wait(lgkm=0)
barrier()
seg_end()
g.label("L_segE")
for q in range(4):
    g("ds_read_b128", vr(96 + 4 * q), "v23", mods=f"offset:{L_ZP + 128 * q}")
g("ds_read_b64", "v[112:113]", "v28", mods=f"offset:{L_STAT}")
for i in range(4):
    g("v_add_f32", f"v{96 + i}", f"v{96 + i}", f"v{100 + i}")
    g("v_add_f32", f"v{104 + i}", f"v{104 + i}", f"v{108 + i}")
Z = [f"v{96 + i}" for i in range(4)]
TT_ = [f"v{100 + i}" for i in range(4)]
for i in range(4):
    g("v_add_f32", Z[i], Z[i], f"v{104 + i}")
for i in range(4):
    g("v_fma_f32", Z[i], "-v112", f"v{80 + i}", Z[i])
for i in range(4):
    g("v_mul_f32", Z[i], Z[i], "v113")
bf16r2(Z[0], Z[1], TT_[0])
bf16r2(Z[2], Z[3], TT_[1])
for i in range(4):
    g("v_add_f32", Z[i], Z[i], f"v{24 + i}")
bf16r2(Z[0], Z[1], TT_[0])
bf16r2(Z[2], Z[3], TT_[1])
for i in range(4):
    g("v_mul_f32", TT_[i], Z[i], Z[i])
for i in range(4):
    g("v_fma_f32", TT_[i], TT_[i], T[8], "v31")
for i in range(4):
    g("v_mul_f32", TT_[i], TT_[i], Z[i])
for i in range(4):
    g("v_exp_f32", TT_[i], TT_[i])
for i in range(4):
    g("v_add_f32", TT_[i], 1.0, TT_[i])
for i in range(4):
    g("v_rcp_f32", TT_[i], TT_[i])
for i in range(4):
    g("v_mul_f32", Z[i], Z[i], TT_[i])
for i in range(4):
    g("v_cvt_pk_bf16_f32", Z[i], Z[i], Z[i])
for i in range(4):
    bmask_mfma("v[12:15]", vr(48 + 4 * i), Z[i], i == 0)
g("buffer_store_dwordx4", "v[12:15]", "v29", SRD_WS, T[11], mods="offen sc1")
stamp(8)
seg_end()
g("s_branch", "L_fin")

g.label("L_segF")
g.restore(st_stat)
g("s_mov_b32", T[8], hex(WS_H))
g("v_mov_b32", "v28", 0)
g("v_lshlrev_b32", "v29", 3, "v0")
g("v_and_b32", "v30", 31, "v0")
g("v_lshlrev_b32", "v30", 6, "v30")
g("s_movk_i32", T[9], (128 + 3) * 16)
poll_tag(32, "v30", T[9], full)
if CFG["rep"]:
    poll_one("v1", T[8], 1 << 21, imm=2048)
poll_gather([32, 36, 40, 44], ["v1"] * 4, T[8], [full] * 4, imm=[0, 1024, 2048, 3072], slp=CFG["hsleep"])
stamp(7)
for k in range(8):
    g("v_cvt_pk_bf16_f32", f"v{16 + k}", f"v{32 + 2 * k}", f"v{33 + 2 * k}")
for b in range(2):
    g("ds_write_b64", "v29", vr(16 + 4 * b, 2), mods=f"offset:{L_HN + b * 1024}")
    g("ds_write_b64", "v29", vr(18 + 4 * b, 2), mods=f"offset:{L_HN + b * 1024 + 512}")
for b in range(2):
    g("v_readlane_b32", T[b], f"v{32 + 8 * b}", 0)
g.wait(lgkm=0)
barrier()
for b in range(2):
    for k in range(8):
        g("v_subrev_f32", f"v{32 + 8 * b + k}", T[b], f"v{32 + 8 * b + k}")
for b in range(2):
    base = 32 + 8 * b
    s1, s2 = f"v{8 + 2 * b}", f"v{9 + 2 * b}"
    g("v_add_f32", s1, f"v{base}", f"v{base + 1}")
    g("v_mul_f32", s2, f"v{base}", f"v{base}")
    g("v_fmac_f32", s2, f"v{base + 1}", f"v{base + 1}")
for k in range(2, 8):
    for b in range(2):
        base = 32 + 8 * b
        s1, s2 = f"v{8 + 2 * b}", f"v{9 + 2 * b}"
        g("v_add_f32", s1, s1, f"v{base + k}")
        g("v_fmac_f32", s2, f"v{base + k}", f"v{base + k}")
wave_reduce("v_add_f32", ["v8", "v9", "v10", "v11"])
g("v_mov_b32", "v12", "0x3b000000")
MU = ["v8", "v10"]
VA = ["v9", "v11"]
for b in range(2):
    g("v_mul_f32", MU[b], MU[b], "v12")
    g("v_mul_f32", VA[b], VA[b], "v12")
for b in range(2):
    g("v_fma_f32", VA[b], f"-{MU[b]}", MU[b], VA[b])
    g("v_add_f32", MU[b], T[b], MU[b])
for b in range(2):
    g("v_max_f32", VA[b], 0, VA[b])
for b in range(2):
    bf16r2(MU[b], VA[b], f"v{13 + b}")
for b in range(2):
    g("v_add_f32", VA[b], "0x3727c5ac", VA[b])
for b in range(2):
    bf16r(VA[b], VA[b])
for b in range(2):
    g("v_sqrt_f32", VA[b], VA[b])
for b in range(2):
    bf16r(VA[b], VA[b])
for b in range(2):
    g("v_rcp_f32", VA[b], VA[b])
g("s_mov_b32", T[0], 0)
g("s_brev_b32", T[1], 1)
g("s_and_b64", "exec", LIVE, f"s[{T[0][1:]}:{T[1][1:]}]")
g("ds_write_b128", "v28", "v[8:11]", mods=f"offset:{L_STAT}")
setexec(-1)
g.wait(lgkm=0)
barrier()
seg_end()
g("s_branch", "L_fin")


def xlane_sum(base, tmp):
    for r in range(4):
        g("v_add_f32_dpp", f"v{base + r}", f"v{base + r}", f"v{base + r}", mods=f"row_ror:8 {DPPF}")
    for op in ("v_permlane16_swap_b32", "v_permlane32_swap_b32"):
        for r in range(4):
            g("v_mov_b32", f"v{tmp + r}", f"v{base + r}")
        for r in range(4):
            g(op, f"v{base + r}", f"v{tmp + r}")
        for r in range(4):
            g("v_add_f32", f"v{base + r}", f"v{base + r}", f"v{tmp + r}")


g.label("L_segH")
g.restore(st_y)
TB, TK, TX = T[10], T[11], T[12]
g("s_lshr_b32", TB, S_PI, 4)
g("s_and_b32", TK, S_PI, 15)
g("v_lshrrev_b32", "v18", 3, "v0")
g("v_and_b32", "v19", 7, "v0")
g("v_lshlrev_b32", "v19", 4, "v19")
g("v_lshl_add_u32", "v16", "v18", 11, "v19")
g("v_lshl_add_u32", "v17", "v18", 12, "v19")
g("s_lshl_b32", T[8], S_WAVE, 7)
g("v_add_u32", "v19", T[8], "v19")
g("v_and_b32", "v23", 31, "v0")
g("v_lshlrev_b32", "v25", 2, "v23")
g("v_lshrrev_b32", "v24", 5, "v0")
g("v_lshl_add_u32", "v24", "v24", 10, "v25")
g("v_and_b32", "v20", 3, "v23")
g("v_lshlrev_b32", "v20", 4, "v20")
g("v_lshrrev_b32", "v23", 2, "v23")
g("v_lshl_add_u32", "v20", "v23", 1, "v20")
g("s_lshl_b32", TX, TK, 6)
g("buffer_load_ushort", "v22", "v20", SRD_B2, TX, mods="offen")
g("s_lshl_b32", T[8], TB, 10)
g("s_add_u32", TX, TX, T[8])
g("buffer_load_ushort", "v21", "v20", SRD_X, TX, mods="offen")
g("s_lshl_b32", T[8], TB, 18)
g("s_lshl_b32", T[9], S_WAVE, 14)
g("s_add_u32", T[8], T[8], T[9])
g("s_lshl_b32", T[9], TK, 7)
g("s_add_u32", T[8], T[8], T[9])
g("s_add_u32", T[8], T[8], hex(WS_Y))
g("v_cmp_gt_u32", "vcc", NFFN, "v52")
g("s_mov_b32", T[9], 0)
g.wait_regs("v[56:63]")
st_pre = g.save()
poll_tag(56, "v53", T[9], "vcc", pre=True)
poll_tag(60, "v54", T[9], full, pre=True)
g.merge(st_pre)
g("v_mov_b32", "v44", "v60")
g("v_mov_b32", "v45", "v61")
g("v_mov_b32", "v46", "v44")
g("v_max_f32_dpp", "v46", "v46", "v46", mods=f"row_ror:8 {DPPF}")
g("v_mov_b32", "v47", "v46")
g("v_permlane16_swap_b32", "v46", "v47")
g("v_max_f32", "v46", "v46", "v47")
g("v_sub_f32", "v44", "v44", "v46")
g("v_exp_f32", "v44", "v44")
g("v_mul_f32", "v45", "v45", "v44")
g("v_add_f32_dpp", "v45", "v45", "v45", mods=f"row_ror:8 {DPPF}")
g("v_mov_b32", "v47", "v45")
g("v_permlane16_swap_b32", "v45", "v47")
g("v_add_f32", "v45", "v45", "v47")
g("v_rcp_f32", "v45", "v45")
g("v_mul_f32", "v44", "v44", "v45")
poll_gather([32], ["v16"], T[8], [full], slp=CFG["ysleep"])
for r in range(4):
    g("v_mul_f32", f"v{32 + r}", f"v{32 + r}", "v44")
xlane_sum(32, 36)
setexec("0xff")
g("ds_write_b128", "v19", "v[32:35]", mods=f"offset:{L_RED}")
setexec(-1)
for r in range(4):
    g("v_mov_b32", f"v{40 + r}", 0)
g("s_lshl_b32", T[8], S_WAVE, 15)
g("s_lshl_b32", T[9], S_PI, 7)
g("s_add_u32", T[8], T[8], T[9])
g("s_add_u32", T[8], T[8], hex(WS_F))
g.wait(lgkm=0)
barrier()
seg_end()
g("s_cmp_gt_u32", S_WAVE, 10)
g("s_cbranch_scc1", "L_fin")
g("s_cmp_lg_u32", S_WAVE, 0)
g("s_cbranch_scc1", "L_segJ")
st_j = g.save()
g.label("L_segI")
stamp(6)
for k in range(8):
    g("ds_read_b32", f"v{32 + k}", "v24", mods=f"offset:{L_RED + 128 * k}")
g("v_lshlrev_b32", "v21", 16, "v21")
g("v_lshlrev_b32", "v22", 16, "v22")
g("s_lshl_b32", T[9], S_PI, 7)
g("s_add_u32", T[9], T[9], hex(WS_H))
tree_sum([f"v{32 + k}" for k in range(8)])
g("v_mov_b32", "v33", "v32")
g("v_permlane32_swap_b32", "v32", "v33")
g("v_add_f32", "v32", "v32", "v33")
bf16r("v32", "v32")
g("v_add_f32", "v26", "v32", "v21")
bf16r("v26", "v26")
setexec("0xffffffff")
g("buffer_store_dword", "v26", "v25", SRD_WS, T[9], mods="offen sc1")
setexec(-1)
seg_end()
g.label("L_segJ")
g.merge(st_j)
g("s_lshl_b32", T[9], S_WAVE, 3)
g("v_add_u32", "v27", T[9], "v18")
g("v_cmp_gt_u32", "vcc", NFFN, "v27")
poll_gather([40], ["v17"], T[8], ["vcc"], slp=CFG["fsleep"])
xlane_sum(40, 36)
setexec("0xff")
g("ds_write_b128", "v19", "v[40:43]", mods=f"offset:{L_RED + 2048}")
setexec(-1)
g.wait(lgkm=0)
barrier()
g("s_cbranch_execz", "L_j2")
g("s_cmp_lg_u32", S_WAVE, 0)
g("s_cbranch_scc1", "L_fin")
g.label("L_j2")
g("v_lshrrev_b32", "v27", 5, "v0")
g("v_mul_u32_u24", "v27", 768, "v27")
g("v_add_u32", "v27", "v27", "v25")
for k in range(6):
    g("ds_read_b32", f"v{32 + k}", "v27", mods=f"offset:{L_RED + 2048 + 128 * k}")
g("s_mov_b32", T[0], -1)
g("s_mov_b32", T[1], 0)
g("v_cndmask_b32", "v37", 0, "v37", f"s[{T[0][1:]}:{T[1][1:]}]")
tree_sum([f"v{32 + k}" for k in range(6)])
g("v_mov_b32", "v33", "v32")
g("v_permlane32_swap_b32", "v32", "v33")
g("v_add_f32", "v32", "v32", "v33")
bf16r("v32", "v32")
g("v_add_f32", "v32", "v32", "v22")
bf16r("v32", "v32")
g("v_add_f32", "v32", "v32", "v26")
g("v_cvt_pk_bf16_f32", "v32", "v32", "v32")
setexec("0xffffffff")
g("buffer_store_short", "v32", "v20", SRD_OUT, TX, mods="offen")
setexec(-1)
stamp(9)
seg_end()
g.dry_guard = False

g.label("L_fin")
if CFG["diag"]:
    g.nop(8)
    g.wait(vm=0, lgkm=0)
    diag_store()
g.label("L_end")
g("s_endpgm")
if not CFG["dry"]:
    g.label("L_dryret")
    g("s_endpgm")

hdr = open("cdna_kernels/" + NAME + ".s.ref").read().split("\n")
head = []
for line in hdr:
    if line.startswith("; @launch"):
        head.append(f"; @launch grid=(256,1,1) block=(1024,1,1) lds={LDS_BYTES}")
    elif line.startswith(";"):
        head.append(line)
    else:
        break
src = "\n".join(head) + "\n"
src += f""".amdgcn_target "amdgcn-amd-amdhsa--gfx950"
.text
.globl {NAME}_kernel
.p2align 8
.type {NAME}_kernel,@function
{NAME}_kernel:
"""
src += g.text()
src += f""".section .rodata,"a"
.p2align 6
.amdhsa_kernel {NAME}_kernel
  .amdhsa_next_free_vgpr 128
  .amdhsa_next_free_sgpr 102
  .amdhsa_accum_offset 128
  .amdhsa_group_segment_fixed_size 0
  .amdhsa_kernarg_size 104
  .amdhsa_user_sgpr_count 2
  .amdhsa_user_sgpr_kernarg_segment_ptr 1
  .amdhsa_system_sgpr_workgroup_id_x 1
.end_amdhsa_kernel
"""
open(sys.argv[1], "w").write(src)
print("instructions:", g.ninstr)
```

```python
import sys
import struct
from asmgen import Gen

NAME = "sequential_preLN__mha_block_cached__dense_activation_gelu__decode"

CFG = dict(
    kv_mods="nt", w_mods="nt", diag=0, spin_limit=200000,
    D=2,
    DW=0,
    wo0=5,
    stpos=9,
    stuse=10,
    rchk=14,
    b1pos="K4",
    drypos="K8",
    gpos="K12",
    qbar="K15",
    qx=1,
    dry=1,
    hsh=7,
    prio=0,
    sleep=0,
    sleep1=0,
    athr=6,
    asleep=1,
    rep=1,
    dry2=1,
    wopos="3,6,9,12,15,18,21,24",
    word=13,
    fspin=2,
    pdly=2,
    gdly=3,
    nob1=0,
    nob2=0,
    noclr=0,
    nost=0,
    nowo=0,
    nokc=0,
    nend=0,
    dend=4,
    zsleep=0,
    hsleep=1,
    ysleep=1,
    fsleep=1,
)
for a in sys.argv[2:]:
    k, v = a.split("=", 1)
    if isinstance(CFG[k], int):
        v = int(v)
    CFG[k] = v

NFFN = 86
WS_ST = 0x0
WS_H = 0x8000
WS_Y = 0x10000
WS_F = 0x100000
WS_QP = 0x180000
WS_HR = 0x1d0000
WS_DIAG = 0x200000
WS_SIZE = 0x400000
NONCE = "s[40:41]"
N_LO, N_HI = "s40", "s41"
PSTR = 80
APITCH = 272
L_RED = 8192
L_PART = 0
L_QB = 20480
L_YP = 20736
L_ZP = 20736
L_CS = 21248
L_STAT = 21504
L_HN = 23552 + 16384
L_WST = 21536
L_NONCE = 21520
WPITCH = 1056
L_WO = 22528
L_W1 = 23552
LDS_BYTES = 22528 + 128 * 1056

S_WAVE, S_H, S_B, S_SPL = "s3", "s4", "s5", "s6"
SRD_K, SRD_V, SRD_WQ, SRD_WO = "s[44:47]", "s[48:51]", "s[52:55]", "s[56:59]"
SRD_X, SRD_WS, SRD_DBG, SRD_W1 = "s[60:63]", "s[64:67]", "s[68:71]", "s[72:75]"
SRD_W2, SRD_B1, SRD_B2, SRD_OUT = "s[76:79]", "s[80:83]", "s[84:87]", "s[88:91]"
S_KV, S_T, S_WO, S_M, S_BH, S_PI = "s92", "s93", "s94", "s95", "s96", "s97"
LIVE = "s[98:99]"
S_LOG2E, S_SCALE = "s42", "s43"
T = [f"s{16 + i}" for i in range(14)]
S_IT = "s29"
S_Y = "s27"
STAMP0 = 30
DPPF = "row_mask:0xf bank_mask:0xf"
full = (1 << 64) - 1


def vr(a, n=4):
    return f"v[{a}:{a + n - 1}]"


def f32hex(x):
    return "0x%08x" % struct.unpack("<I", struct.pack("<f", x))[0]


g = Gen()


def stamp(slot):
    if not CFG["diag"]:
        return
    lab = None
    if g.dry_guard:
        lab = g.newlabel("Lst")
        g("s_cbranch_execz", lab)
    g("s_memrealtime", "s[100:101]")
    g.wait(lgkm=0)
    g("s_mov_b32", f"s{STAMP0 + slot}", "s100")
    if lab:
        g.label(lab)


def srd(dst_base, ptr_lo, nbytes):
    g("s_mov_b32", f"s{dst_base}", f"s{ptr_lo}")
    g("s_and_b32", f"s{dst_base + 1}", f"s{ptr_lo + 1}", "0xffff")
    g("s_mov_b32", f"s{dst_base + 2}", hex(nbytes))
    g("s_mov_b32", f"s{dst_base + 3}", "0x00020000")


def setexec(m):
    if g.dry_guard:
        if m == -1:
            g("s_mov_b64", "exec", LIVE)
        else:
            g("s_and_b64", "exec", LIVE, m)
    else:
        g("s_mov_b64", "exec", m)


def barrier():
    if g.dry_guard:
        lab = g.newlabel("Lb")
        g("s_cbranch_execz", lab)
        g("s_barrier")
        g.label(lab)
    else:
        g("s_barrier")


def seg_end():
    g("s_cbranch_execz", "L_dryret")


def wave_reduce(op, regs):
    for sh in (8, 4, 2, 1):
        for r in regs:
            g(op + "_dpp", r, r, r, mods=f"row_ror:{sh} {DPPF}")
    for r in regs:
        g(op + "_dpp", r, r, r, mods="row_bcast:15 row_mask:0xa bank_mask:0xf")
    for r in regs:
        g(op + "_dpp", r, r, r, mods="row_bcast:31 row_mask:0xc bank_mask:0xf")


def bf16r(dst, src, tmp=None):
    t = tmp or dst
    g("v_cvt_pk_bf16_f32", t, src, src)
    g("v_and_b32", dst, "0xffff0000", t)


def bf16r2(a, b, tmp):
    g("v_cvt_pk_bf16_f32", tmp, a, b)
    g("v_lshlrev_b32", a, 16, tmp)
    g("v_and_b32", b, "0xffff0000", tmp)


def unpack(dlo, dhi, src):
    g("v_lshlrev_b32", dlo, 16, src)
    g("v_and_b32", dhi, "0xffff0000", src)


def tree_sum(regs, op="v_add_f32"):
    regs = list(regs)
    while len(regs) > 1:
        nxt = []
        for i in range(0, len(regs) - 1, 2):
            g(op, regs[i], regs[i], regs[i + 1])
            nxt.append(regs[i])
        if len(regs) % 2:
            nxt.append(regs[-1])
        regs = nxt
    return regs[0]


def bmask_mfma(D, A, val, first, bcast=None):
    for r in range(4):
        if bcast is None:
            g("v_and_b32", f"v{8 + r}", val, f"v{4 + r}")
        else:
            g("v_and_b32_dpp", f"v{8 + r}", val, f"v{4 + r}", mods=f"row_newbcast:{bcast} {DPPF}")
    g("v_mfma_f32_16x16x32_bf16", D, A, "v[8:11]", "0" if first else D)


def poll_one(voff, soff, lane_mask, imm=0):
    g("s_and_b64", "exec", LIVE, hex(lane_mask))
    g("s_mov_b32", S_IT, 0)
    g.flush_hazards()
    L = g.newlabel("Lp1")
    Ld = g.newlabel("Lp1done")
    g("s_cbranch_execz", Ld)
    g.label(L)
    g("buffer_load_dword", "v31", voff, SRD_WS, soff, mods=(f"offen offset:{imm + 12} sc1"))
    sv = g.dry_guard
    g.dry_guard = False
    g.wait(vm=0)
    g.dry_guard = sv
    g("v_cmp_eq_u32", "vcc", -1, "v31")
    g("s_add_u32", S_IT, S_IT, 1)
    g("s_cmp_eq_u64", "vcc", 0)
    g("s_cbranch_scc1", Ld)
    g("s_cmp_lt_u32", S_IT, CFG["spin_limit"])
    if CFG["sleep1"]:
        g("s_sleep", CFG["sleep1"])
    g("s_cbranch_scc1", L)
    g.label(Ld)
    g("s_mov_b64", "exec", LIVE)


def poll_gather(dsts, voffs, soff, masks, imm=None, adaptive=False, slp=None):
    pend = [f"s[{16 + 2 * k}:{17 + 2 * k}]" for k in range(len(dsts))]
    for k, m in enumerate(masks):
        if m == full:
            g("s_mov_b64", pend[k], LIVE)
        elif isinstance(m, str):
            g("s_and_b64", pend[k], LIVE, m)
        else:
            assert m < (1 << 31)
            g("s_and_b64", pend[k], LIVE, hex(m))
    g("s_mov_b32", S_IT, 0)
    g.flush_hazards()
    L = g.newlabel("Lpoll")
    Ld = g.newlabel("Lpolldone")
    g.label(L)
    for k, d in enumerate(dsts):
        g("s_mov_b64", "exec", pend[k])
        mods = "offen sc1"
        if imm and imm[k]:
            mods = f"offen offset:{imm[k]} sc1"
        g("buffer_load_dwordx4", vr(d), voffs[k], SRD_WS, soff, mods=mods)
    g("s_mov_b64", "exec", LIVE)
    g.wait(vm=0)
    for k, d in enumerate(dsts):
        g("s_mov_b64", "exec", pend[k])
        g("v_max3_u32", "v31", f"v{d}", f"v{d + 1}", f"v{d + 2}")
        g("v_max_u32", "v31", "v31", f"v{d + 3}")
        g("v_cmp_eq_u32", pend[k], -1, "v31")
    if len(dsts) == 1:
        g("s_or_b64", "s[100:101]", pend[0], pend[0])
    else:
        g("s_or_b64", "s[100:101]", pend[0], pend[1])
        for k in range(2, len(dsts)):
            g("s_or_b64", "s[100:101]", "s[100:101]", pend[k])
    g("s_cbranch_scc0", Ld)
    g("s_add_u32", S_IT, S_IT, 1)
    g("s_cmp_lt_u32", S_IT, CFG["spin_limit"])
    g("s_cbranch_scc0", Ld)
    if adaptive:
        g("s_bcnt1_i32_b64", "s100", "s[100:101]")
        g("s_cmp_le_u32", "s100", CFG["athr"])
        g.flush_hazards()
        g("s_cbranch_scc1", L)
        g("s_sleep", CFG["asleep"])
    elif slp:
        g("s_sleep", slp)
    g.flush_hazards()
    g("s_branch", L)
    g.label(Ld)
    g("s_mov_b64", "exec", LIVE)
    g.flush_hazards()


def poll_tag(dst, voff, soff, mask, pre=False):
    pend = "s[16:17]"
    if mask == full:
        g("s_mov_b64", pend, LIVE)
    else:
        g("s_and_b64", pend, LIVE, mask)
    g("s_mov_b32", S_IT, 0)
    g.flush_hazards()
    L = g.newlabel("Lpt")
    Ld = g.newlabel("Lptdone")
    Lc = g.newlabel("Lptchk")
    if pre:
        g("s_branch", Lc)
    g.label(L)
    g("s_mov_b64", "exec", pend)
    g("buffer_load_dwordx4", vr(dst), voff, SRD_WS, soff, mods="offen sc1")
    g("s_mov_b64", "exec", LIVE)
    g.wait(vm=0)
    g.label(Lc)
    g("s_mov_b64", "exec", pend)
    g("v_cmp_ne_u64", pend, NONCE, vr(dst + 2, 2))
    g("s_or_b64", "s[100:101]", pend, pend)
    g("s_cbranch_scc0", Ld)
    g("s_add_u32", S_IT, S_IT, 1)
    g("s_cmp_lt_u32", S_IT, CFG["spin_limit"])
    g("s_cbranch_scc0", Ld)
    g("s_sleep", 2)
    g.flush_hazards()
    g("s_branch", L)
    g.label(Ld)
    g("s_mov_b64", "exec", LIVE)
    g.flush_hazards()


def diag_store():
    if CFG["diag"] == 2:
        lab = g.newlabel("Ldd")
        g("s_cmp_lg_u32", S_WAVE, 0)
        g("s_cbranch_scc1", lab)
        g("s_cmp_eq_u32", "s2", 255)
        g("s_cselect_b32", "s7", 8, 0)
        g("s_cmp_eq_u32", "s2", 5)
        g("s_cselect_b32", "s7", 36, "s7")
        g("s_cmp_eq_u32", "s7", 0)
        g("s_cbranch_scc1", lab)
        g("v_mov_b32", "v30", 0)
        for n, i in enumerate((0, 1, 2, 3, 5, 6, 9)):
            g("s_sub_u32", "s8", f"s{STAMP0 + i}", N_LO)
            g("v_writelane_b32", "v30", "s8", n)
        g("v_lshlrev_b32", "v29", 2, "v0")
        g("s_mov_b64", "exec", "0x7f")
        g("buffer_store_dword", "v30", "v29", SRD_DBG, "s7", mods="offen")
        g.label(lab)
        return
    g("v_mov_b32", "v30", 0)
    for i in range(10):
        g("v_writelane_b32", "v30", f"s{STAMP0 + i}", i)
    g("s_lshl_b32", "s7", "s2", 4)
    g("s_add_u32", "s7", "s7", S_WAVE)
    g("s_lshl_b32", "s7", "s7", 6)
    g("s_add_u32", "s7", "s7", hex(WS_DIAG))
    g("v_lshlrev_b32", "v29", 2, "v0")
    g("s_mov_b64", "exec", "0xffff")
    g("buffer_store_dword", "v30", "v29", SRD_WS, "s7", mods="offen")


g("s_cmp_ge_u32", "s2", 256)
g("s_cbranch_scc1", "L_end")
g("s_load_dwordx16", "s[16:31]", "s[0:1]", 0)
g("s_load_dwordx8", "s[32:39]", "s[0:1]", 64)
g("s_load_dwordx2", "s[40:41]", "s[0:1]", 96)
g("v_readfirstlane_b32", S_WAVE, "v0")
g("v_and_b32", "v0", 63, "v0")
g("s_and_b32", "s7", "s2", 7)
g("s_lshr_b32", "s8", "s2", 3)
g("s_and_b32", "s9", "s8", 3)
g("s_lshl_b32", S_H, "s7", 2)
g("s_add_u32", S_H, S_H, "s9")
g("s_mov_b32", S_PI, S_H)
g("s_lshr_b32", "s13", "s8", 2)
g("s_lshr_b32", S_B, "s13", 2)
g("s_and_b32", S_SPL, "s13", 3)
g("s_lshr_b32", S_WAVE, S_WAVE, 6)
g("v_lshlrev_b32", "v1", 4, "v0")
g("v_lshrrev_b32", "v3", 4, "v0")
g("v_and_b32", "v2", 15, "v0")
g("v_lshlrev_b32", "v2", 4, "v2")
g("v_lshl_add_u32", "v2", "v3", 13, "v2")
g("v_lshlrev_b32", "v3", 1, "v3")
g("v_bfe_u32", "v8", "v0", 3, 1)
g("v_lshl_add_u32", "v3", "v8", 10, "v3")
g("s_lshl_b32", S_BH, S_B, 5)
g("s_add_u32", S_BH, S_BH, S_H)
g("s_lshl_b32", S_KV, S_BH, 20)
g("s_lshl_b32", "s7", S_SPL, 18)
g("s_add_u32", S_KV, S_KV, "s7")
g("s_lshl_b32", "s7", S_WAVE, 10)
g("s_add_u32", S_KV, S_KV, "s7")
g("s_lshl_b32", "s11", "s13", 4)
g("s_add_u32", "s11", "s11", S_WAVE)
g("s_lshl_b32", "s12", "s11", 15)
g("s_lshl_b32", "s7", S_H, 8)
g("s_add_u32", "s12", "s12", "s7")
g("s_lshl_b32", "s11", "s11", 3)
g.wait(lgkm=0)
srd(44, 18, 2 * 32 * 4096 * 128 * 2)
srd(60, 16, 2048)
srd(52, 22, 512 * 4096 * 2)
srd(64, 40, WS_SIZE)
srd(68, 38, 256)

kvm = CFG["kv_mods"]
wm = CFG["w_mods"]


def vreg(i):
    return 32 + 4 * i if i < 8 else 64 + 4 * (i - 8)


def kv_load(dst, srd_, i):
    g("s_add_u32", S_T, S_KV, i * 16384)
    g("buffer_load_dwordx4", vr(dst), "v1", srd_, S_T, mods=f"offen {kvm}".strip())


def wo_load(i):
    if CFG["nowo"]:
        g("s_mov_b32", "m0", L_WO)
        g("buffer_load_dword", "v1", SRD_X, 0, mods="offen lds")
        return
    g("s_add_u32", S_T, S_WO, i * 1024)
    g("s_mul_i32", "s101", S_WAVE, 8 * WPITCH)
    g("s_add_u32", "m0", "s101", L_WO + i * WPITCH)
    g("buffer_load_dwordx4", "v1", SRD_WO, S_T, mods=f"offen {wm} lds")


def st_load():
    g("v_lshlrev_b32", "v3", 3, "v0")
    g("s_lshl_b32", "s7", S_BH, 9)
    g("buffer_load_dwordx2", "v[32:33]", "v3", SRD_WS, "s7", mods="offen sc1")


D = CFG["D"]
stream = []
wopos = [int(x) for x in CFG["wopos"].split(",")]
base = []
for i in range(16):
    base.append((f"K{i}", None, (lambda i=i: kv_load(64 + 4 * i, SRD_K, i)), D))
for i in range(16):
    base.append((f"V{i}", "QDONE" if i < 8 else f"K{i - 8}", (lambda i=i: kv_load(vreg(i), SRD_V, i)), D))
for n, e in enumerate(base):
    stream.append(e)
    for i, p in enumerate(wopos):
        if p == n:
            stream.append((f"XO{i}", "WOK", (lambda i=i: wo_load(i)), 99))
NE = CFG["nend"]
for idx in range(len(stream) - NE, len(stream)):
    nm, pre, fn, dd = stream[idx]
    if dd < 99:
        stream[idx] = (nm, pre, fn, CFG["dend"])
freed = set()
spos = [0]
issued = set()
heavy = set()
dma_uids = set()


def pump(n=1, pace=True, until=None):
    cnt = 0
    while spos[0] < len(stream):
        if until is not None:
            if until in issued:
                return
        elif cnt >= n:
            return
        name, pre, fn, dd = stream[spos[0]]
        if pre is not None and pre not in freed:
            if until is not None:
                raise RuntimeError(f"blocked at {name} needs {pre}")
            return
        if pace:
            hv = 0
            for uid, ent in sorted(g.vm.items(), key=lambda kv: kv[1][0]):
                if uid in heavy:
                    hv += 1
                    if hv == dd:
                        g.wait(vm=ent[0])
                        break
        fn()
        if name[0] in "KVW":
            heavy.add(g.uid)
        if name[0] == "X":
            dma_uids.add(g.uid)
        issued.add(name)
        spos[0] += 1
        cnt += 1


g("s_or_b32", "s7", "s2", S_WAVE)
g("s_cmp_lg_u32", "s7", 0)
g("s_cbranch_scc1", "L_nononce")
st_skip = g.save()
g("s_memrealtime", "s[8:9]")
g("v_mov_b32", "v10", 0)
g.wait(lgkm=0)
g("s_bitset1_b32", "s9", 31)
g("v_mov_b32", "v8", "s8")
g("v_mov_b32", "v9", "s9")
g("s_mov_b64", "exec", 1)
g("buffer_store_dwordx2", "v[8:9]", "v10", SRD_DBG, 0, mods="offen sc1")
g("s_mov_b64", "exec", -1)
g.label("L_nononce")
g.merge(st_skip)
pump(1, pace=False)
g("buffer_load_dwordx4", "v[24:27]", "v1", SRD_X, 0, mods="offen")
g("buffer_load_dwordx4", "v[28:31]", "v1", SRD_X, 0, mods="offen offset:1024")
g("buffer_load_ushort", "v3", "v3", SRD_X, "s11", mods="offen")
g("buffer_load_dwordx4", "v[60:63]", "v2", SRD_WQ, "s12", mods=f"offen {wm}".strip())
pump(D - 1, pace=False)

if CFG["diag"]:
    g("s_memrealtime", "s[100:101]")
    g.wait(lgkm=0)
    g("s_mov_b32", "s15", "s100")

g("s_cmp_lg_u32", S_WAVE, 1)
g("s_cbranch_scc1", "L_noclear")
st_skip = g.save()
for r in range(4):
    g("v_mov_b32", f"v{8 + r}", -1)
g("s_lshl_b32", "s7", S_B, 7)
g("s_lshl_b32", "s8", S_H, 2)
g("s_add_u32", "s7", "s7", "s8")
g("s_add_u32", "s7", "s7", S_SPL)
g("s_lshl_b32", "s7", "s7", 11)
g("s_add_u32", "s7", "s7", hex(WS_Y))
g("buffer_store_dwordx4", "v[8:11]", "v1", SRD_WS, "s7", mods="offen sc1")
g("buffer_store_dwordx4", "v[8:11]", "v1", SRD_WS, "s7", mods="offen offset:1024 sc1")
g("s_mov_b64", "exec", "0xff")
g("ds_write_b128", "v1", "v[8:11]", mods=f"offset:{L_WST}")
g("s_cmp_lt_u32", "s2", 224)
g("s_cbranch_scc1", "L_noclrh")
g("s_lshl_b32", "s7", S_PI, 7)
g("s_add_u32", "s7", "s7", hex(WS_H))
g("buffer_store_dwordx4", "v[8:11]", "v1", SRD_WS, "s7", mods="offen sc1")
g.label("L_noclrh")
g("s_mov_b64", "exec", -1)
g("s_cmp_ge_u32", "s2", NFFN)
g("s_cbranch_scc1", "L_noclear")
st_skip2 = g.save()
g("s_lshl_b32", "s7", "s2", 12)
g("s_add_u32", "s7", "s7", hex(WS_F))
for k in range(4):
    g("buffer_store_dwordx4", "v[8:11]", "v1", SRD_WS, "s7",
      mods=f"offen offset:{k * 1024} sc1" if k else "offen sc1")
g.label("L_noclear")
g.merge(st_skip)
g.merge(st_skip2)
uids_before_clear_end = set(g.vm.keys())
g("v_mov_b32", "v22", 0)
g("v_mov_b32", "v23", 0)

srd(48, 20, 2 * 32 * 4096 * 128 * 2)
srd(56, 24, 4096 * 512 * 2)
srd(72, 28, 512 * 1376 * 2)
srd(76, 32, 1376 * 512 * 2)
srd(80, 30, 1376 * 2)
srd(84, 34, 512 * 2)
srd(88, 36, 2048)
if CFG["diag"]:
    g("s_mov_b32", f"s{STAMP0}", "s15")
    for i in range(1, 10):
        g("s_mov_b32", f"s{STAMP0 + i}", 0)
g("s_mov_b64", LIVE, -1)
if CFG["prio"]:
    for lvl in (1, 2, 3):
        lab = g.newlabel("Lprio")
        g("s_cmp_lt_u32", S_WAVE, 4 * lvl if CFG["prio"] == 1 else {1: 8, 2: 12, 3: 99}[lvl])
        g("s_cbranch_scc1", lab)
        g("s_setprio", lvl)
        g.label(lab)
g("s_mov_b32", S_LOG2E, "0x3fb8aa3b")
g("s_mov_b32", S_SCALE, "0x3db504f3")
g("s_lshl_b32", S_WO, S_H, 17)
g("s_lshl_b32", "s7", S_WAVE, 13)
g("s_add_u32", S_WO, S_WO, "s7")
freed.add("WOK")
for r in (16, 17, 18, 19, 20, 21, 52, 53, 54):
    g("v_mov_b32", f"v{r}", 0)
g("v_and_b32", "v12", 1, "v0")
g("v_lshlrev_b32", "v12", 4, "v12")
g("v_mov_b32", "v13", "0xffff")
g("v_lshlrev_b32", "v13", "v12", "v13")
g("v_bfe_u32", "v12", "v0", 1, 2)
for r in range(4):
    g("v_cmp_eq_u32", "vcc", r, "v12")
    g("v_cndmask_b32", f"v{4 + r}", 0, "v13", "vcc")

for b in range(2):
    for k in range(4):
        unpack(f"v{32 + 8 * b + 2 * k}", f"v{33 + 8 * b + 2 * k}", f"v{24 + 4 * b + k}")
for b in range(2):
    base = 32 + 8 * b
    g("v_add_f32", f"v{8 + b}", f"v{base}", f"v{base + 1}")
    g("v_add_f32", f"v{10 + b}", f"v{base + 2}", f"v{base + 3}")
    g("v_add_f32", f"v{12 + b}", f"v{base + 4}", f"v{base + 5}")
    g("v_add_f32", f"v{14 + b}", f"v{base + 6}", f"v{base + 7}")
for b in range(2):
    g("v_add_f32", f"v{8 + b}", f"v{8 + b}", f"v{10 + b}")
    g("v_add_f32", f"v{12 + b}", f"v{12 + b}", f"v{14 + b}")
for b in range(2):
    g("v_add_f32", f"v{8 + b}", f"v{8 + b}", f"v{12 + b}")
wave_reduce("v_add_f32", ["v8", "v9"])
g("v_readlane_b32", "s7", "v8", 63)
g("v_readlane_b32", "s8", "v9", 63)
pump(1)
g("s_cmp_lg_u32", S_WAVE, 1)
g("s_cbranch_scc1", "L_nn1")
st_skip = g.save()
g("buffer_load_dwordx2", "v[22:23]", "v20", SRD_DBG, 0, mods="offen sc1")
g.label("L_nn1")
g.merge(st_skip)
g("v_mov_b32", "v12", "0x3b000000")
g("v_mul_f32", "v16", "s7", "v12")
g("v_mul_f32", "v17", "s8", "v12")
for b in range(2):
    for k in range(8):
        g("v_sub_f32", f"v{32 + 8 * b + k}", f"v{32 + 8 * b + k}", f"v{16 + b}")
for b in range(2):
    g("v_mul_f32", f"v{8 + b}", f"v{32 + 8 * b}", f"v{32 + 8 * b}")
for k in range(1, 8):
    for b in range(2):
        g("v_fmac_f32", f"v{8 + b}", f"v{32 + 8 * b + k}", f"v{32 + 8 * b + k}")
wave_reduce("v_add_f32", ["v8", "v9"])
g("v_readlane_b32", "s7", "v8", 63)
g("v_readlane_b32", "s8", "v9", 63)
pump(1)
g("v_mul_f32", "v18", "s7", "v12")
g("v_mul_f32", "v19", "s8", "v12")
g("s_mov_b32", "s8", "0xff00ff00")
g("s_mov_b32", "s9", "0xff00ff00")
g("v_cndmask_b32", "v13", "v16", "v17", "s[8:9]")
g("v_cndmask_b32", "v14", "v18", "v19", "s[8:9]")
bf16r2("v13", "v14", "v15")
g("v_add_f32", "v14", "0x3727c5ac", "v14")
bf16r("v14", "v14")
g("v_sqrt_f32", "v14", "v14")
bf16r("v14", "v14")
g("v_rcp_f32", "v14", "v14")
g("v_lshlrev_b32", "v3", 16, "v3")
g("v_sub_f32", "v3", "v3", "v13")
bf16r("v3", "v3")
g("v_mul_f32", "v3", "v3", "v14")
g("v_cvt_pk_bf16_f32", "v16", "v3", "v3")
bmask_mfma("v[12:15]", "v[60:63]", "v16", True)
g("v_lshrrev_b32", "v16", 4, "v0")
g("v_and_b32", "v17", 7, "v0")
g("v_lshl_add_u32", "v16", "v16", 5, "v17")
g("v_bfe_u32", "v17", "v0", 3, 1)
g("v_lshl_add_u32", "v16", "v17", 7, "v16")
g("v_mul_u32_u24", "v16", PSTR, "v16")
g("s_lshl_b32", "s7", S_WAVE, 2)
g("v_add_u32", "v16", "s7", "v16")
for r in range(4):
    g("ds_write_b32", "v16", f"v{12 + r}", mods=f"offset:{L_PART + r * 8 * PSTR}")
pump(until=CFG["b1pos"])
pump(CFG["qx"], pace=False)
g("s_cmp_lg_u32", S_WAVE, 1)
g("s_cbranch_scc1", "L_clrok")
st_skip = g.save()
pend_clear = [v[0] for k, v in g.vm.items() if k in uids_before_clear_end]
if pend_clear:
    g.wait(vm=min(pend_clear))
g("v_cmp_ne_u32", "vcc", 0, "v23")
g("s_cmp_lg_u64", "vcc", 0)
g("s_cbranch_scc1", "L_nonceok")
st_ok = g.save()
g("s_mov_b32", S_IT, 0)
g.label("L_noncespin")
g("v_mov_b32", "v20", 0)
g("buffer_load_dwordx2", "v[22:23]", "v20", SRD_DBG, 0, mods="offen sc1")
g.wait(vm=0)
g("v_cmp_ne_u32", "vcc", 0, "v23")
g("s_cmp_lg_u64", "vcc", 0)
g("s_cbranch_scc1", "L_nonceok")
g("s_add_u32", S_IT, S_IT, 1)
g("s_cmp_lt_u32", S_IT, CFG["spin_limit"])
g("s_sleep", CFG["fspin"])
g("s_cbranch_scc1", "L_noncespin")
g.label("L_nonceok")
g.merge(st_ok)
g("v_mov_b32", "v20", 0)
g("s_mov_b64", "exec", 1)
g("ds_write_b64", "v20", "v[22:23]", mods=f"offset:{L_NONCE}")
g("s_mov_b64", "exec", -1)
g.label("L_clrok")
g.merge(st_skip)
g.wait(lgkm=0)
if not CFG["nob1"]:
    g("s_barrier")
g("v_mov_b32", "v20", 0)
g("ds_read_b64", "v[22:23]", "v20", mods=f"offset:{L_NONCE}")
g("v_readfirstlane_b32", N_LO, "v22")
g("v_readfirstlane_b32", N_HI, "v23")
g("s_cmp_lg_u32", S_WAVE, 2)
g("s_cbranch_scc1", "L_nopub")
st_skip = g.save()
g("v_mul_u32_u24", "v16", 4 * PSTR, "v0")
for half in range(2):
    for oo in range(2):
        for k in range(4):
            g("ds_read_b128", vr(32 + 16 * oo + 4 * k), "v16",
              mods=f"offset:{L_PART + (2 * half + oo) * PSTR + 16 * k}")
    for oo in range(2):
        tree_sum([f"v{32 + 16 * oo + k}" for k in range(16)])
        g("v_mov_b32", f"v{8 + 4 * half + oo}", f"v{32 + 16 * oo}")
    g("v_mov_b32", f"v{10 + 4 * half}", "v22")
    g("v_mov_b32", f"v{11 + 4 * half}", "v23")
g("s_lshl_b32", "s7", S_H, 14)
g("s_lshl_b32", "s8", S_B, 13)
g("s_add_u32", "s7", "s7", "s8")
g("s_lshl_b32", "s8", S_SPL, 11)
g("s_add_u32", "s7", "s7", "s8")
g("s_add_u32", "s7", "s7", hex(WS_QP))
g("buffer_store_dwordx4", "v[8:11]", "v1", SRD_WS, "s7", mods="offen sc1")
g("buffer_store_dwordx4", "v[12:15]", "v1", SRD_WS, "s7", mods="offen offset:1024 sc1")
g.label("L_nopub")
g.merge(st_skip)

pump(until=CFG["drypos"])
SEGS = ["A", "B", "C", "D", "E", "F", "H", "I", "J"]
if CFG["dry2"]:
    SEGS = SEGS + ["K0", "K2", "SM", "V0", "V9", "V12"]
if CFG["dry"]:
    pump(1, pace=False)
    g.flush_hazards()
    g("s_mov_b64", LIVE, 0)
    g("s_mov_b64", "exec", 0)
    for n, sg in enumerate(SEGS):
        g("s_cmp_eq_u32", S_WAVE, (n + 4) % 16 if n != 14 else 2)
        g("s_cbranch_scc1", f"L_seg{sg}")
    g.label("L_dryret")
    g("s_mov_b64", LIVE, -1)
    g("s_mov_b64", "exec", -1)
    g.wait(lgkm=0)
    g.nop(10)

GW = 3 if not CFG["nob2"] else 99


def q_loads():
    g("s_lshl_b32", "s7", S_H, 14)
    g("s_lshl_b32", "s8", S_B, 9)
    g("s_add_u32", "s7", "s7", "s8")
    g("s_add_u32", "s7", "s7", hex(WS_QP))
    for u in range(4):
        for part in range(2):
            g("buffer_load_dwordx4", vr(32 + 8 * u + 4 * part), "v12", SRD_WS, "s7",
              mods=f"offen offset:{part * 1024} sc1" if part else "offen sc1")
        if u < 3:
            g("s_add_u32", "s7", "s7", 4096)


def q_check():
    for k in range(8):
        g("v_xor_b32", f"v{16 + k}", N_LO, f"v{34 + 4 * k}")
        g("v_xor_b32", f"v{24 + k}", N_HI, f"v{35 + 4 * k}")
    for k in range(0, 16, 4):
        g("v_or3_b32", f"v{16 + k}", f"v{16 + k}", f"v{17 + k}", f"v{18 + k}")
    for k in range(0, 16, 4):
        g("v_or_b32", f"v{16 + k}", f"v{16 + k}", f"v{19 + k}")
    g("v_or3_b32", "v16", "v16", "v20", "v24")
    g("v_or_b32", "v16", "v16", "v28")
    g("v_cmp_ne_u32", "vcc", 0, "v16")
    g("s_cmp_eq_u64", "vcc", 0)


pump(until=CFG["gpos"])
g("s_cmp_lg_u32", S_WAVE, GW)
g("s_cbranch_scc1", "L_g1")
st_skip = g.save()
g("v_lshrrev_b32", "v12", 5, "v0")
g("v_and_b32", "v13", 31, "v0")
g("v_lshlrev_b32", "v13", 4, "v13")
g("v_lshl_add_u32", "v12", "v12", 11, "v13")
q_loads()
g.label("L_g1")
g.merge(st_skip)
pump(CFG["gdly"])
g("s_cmp_lg_u32", S_WAVE, GW)
g("s_cbranch_scc1", "L_nogather")
st_skip = g.save()
q_check()
g("s_cbranch_scc1", "L_qok")
st_ok = g.save()
g("s_mov_b32", S_IT, 0)
g.label("L_qspin")
q_loads()
g.wait(vm=0)
q_check()
g("s_cbranch_scc1", "L_qok")
g("s_add_u32", S_IT, S_IT, 1)
g("s_cmp_lt_u32", S_IT, CFG["spin_limit"])
g("s_sleep", CFG["fspin"])
g("s_cbranch_scc1", "L_qspin")
g.label("L_qok")
g.merge(st_ok)
CI = [0, 1, 4, 5]
for r in range(4):
    g("v_add_f32", f"v{16 + r}", f"v{32 + CI[r]}", f"v{40 + CI[r]}")
    g("v_add_f32", f"v{20 + r}", f"v{48 + CI[r]}", f"v{56 + CI[r]}")
for r in range(4):
    g("v_add_f32", f"v{16 + r}", f"v{16 + r}", f"v{20 + r}")
for r in range(4):
    g("v_mov_b32", f"v{20 + r}", f"v{16 + r}")
for r in range(4):
    g("v_permlane32_swap_b32", f"v{16 + r}", f"v{20 + r}")
for r in range(4):
    g("v_add_f32", f"v{16 + r}", f"v{16 + r}", f"v{20 + r}")
g("v_cvt_pk_bf16_f32", "v14", "v16", "v17")
g("v_cvt_pk_bf16_f32", "v15", "v18", "v19")
g("v_lshrrev_b32", "v13", 1, "v13")
g("ds_write_b64", "v13", "v[14:15]", mods=f"offset:{L_QB}")
g.label("L_nogather")
g.merge(st_skip)
freed.add("QDONE")
pump(until=CFG["qbar"])
pump(CFG["qx"], pace=False)
g.wait(lgkm=0)
if not CFG["nob2"]:
    g("s_barrier")
g("v_and_b32", "v12", 15, "v0")
g("v_lshlrev_b32", "v12", 4, "v12")
g("ds_read_b128", "v[8:11]", "v12", mods=f"offset:{L_QB}")
stamp(1)

g.dry_guard = bool(CFG["dry2"])
for G in range(4):
    if CFG["dry2"] and G in (0, 2):
        if G:
            seg_end()
        g.label(f"L_segK{G}")
    tgt = 4 * G + 3 + D
    nm = f"K{tgt}" if tgt < 16 else f"V{tgt - 16}"
    pump(until=nm)
    for step in range(4 if not CFG["nokc"] else 1):
        for u in range(4):
            i = 4 * G + u
            g("v_dot2_f32_bf16", f"v{16 + i}", f"v{64 + 4 * i + step}", f"v{8 + step}",
              "0" if step == 0 else f"v{16 + i}")
    for u in range(4):
        freed.add(f"K{4 * G + u}")
    pump(1)
    for sh in ((8, 4, 2, 1) if not CFG["nokc"] else ()):
        for u in range(4):
            i = 4 * G + u
            g("v_add_f32_dpp", f"v{16 + i}", f"v{16 + i}", f"v{16 + i}", mods=f"row_ror:{sh} {DPPF}")
    for u in (0, 2):
        i = 4 * G + u
        bf16r2(f"v{16 + i}", f"v{17 + i}", f"v{12 + u}")
    for u in range(4):
        i = 4 * G + u
        g("v_mul_f32", f"v{16 + i}", S_SCALE, f"v{16 + i}")
    for u in (0, 2):
        i = 4 * G + u
        bf16r2(f"v{16 + i}", f"v{17 + i}", f"v{12 + u}")

if CFG["dry2"]:
    seg_end()
    g.label("L_segSM")
pump(1)
g("v_max3_f32", "v12", "v16", "v17", "v18")
g("v_max3_f32", "v13", "v19", "v20", "v21")
g("v_max3_f32", "v14", "v22", "v23", "v24")
g("v_max3_f32", "v15", "v25", "v26", "v27")
g("v_max3_f32", "v12", "v12", "v28", "v29")
g("v_max3_f32", "v13", "v13", "v30", "v31")
g("v_max3_f32", "v12", "v12", "v13", "v14")
g("v_max_f32", "v12", "v12", "v15")
for k in range(4):
    g("v_readlane_b32", f"s{8 + k}", "v12", 16 * k)
g("v_mov_b32", "v12", "s8")
g("v_max_f32", "v12", "s9", "v12")
g("v_max_f32", "v12", "s10", "v12")
g("v_max_f32", "v12", "s11", "v12")
g("v_mul_f32", "v12", S_LOG2E, "v12")
for i in range(16):
    g("v_fma_f32", f"v{16 + i}", f"v{16 + i}", S_LOG2E, "-v12")
for i in range(16):
    g("v_exp_f32", f"v{16 + i}", f"v{16 + i}")
pump(1)
g("v_readfirstlane_b32", S_M, "v12")
g("v_add_f32", "v8", "v16", "v17")
g("v_add_f32", "v9", "v18", "v19")
g("v_add_f32", "v10", "v20", "v21")
g("v_add_f32", "v11", "v22", "v23")
g("v_add_f32", "v13", "v24", "v25")
g("v_add_f32", "v14", "v26", "v27")
g("v_add_f32", "v8", "v8", "v28")
g("v_add_f32", "v9", "v9", "v29")
g("v_add_f32", "v10", "v10", "v30")
g("v_add_f32", "v11", "v11", "v31")
tree_sum(["v8", "v9", "v10", "v11", "v13", "v14"])
for k in range(4):
    g("v_readlane_b32", f"s{8 + k}", "v8", 16 * k)
g("v_mov_b32", "v13", "s8")
g("v_add_f32", "v13", "s9", "v13")
g("v_add_f32", "v13", "s10", "v13")
g("v_add_f32", "v13", "s11", "v13")
g("s_lshl_b32", "s8", S_WAVE, 3)
g("v_mov_b32", "v8", "s8")
setexec(1)
g("ds_write_b64", "v8", "v[12:13]", mods=f"offset:{L_WST}")
setexec(-1)
for i in range(16):
    g("v_cvt_pk_bf16_f32", f"v{16 + i}", f"v{16 + i}", f"v{16 + i}")
stamp(2)


def factor():
    g("v_and_b32", "v3", 15, "v0")
    g("v_lshlrev_b32", "v3", 3, "v3")
    g("s_mov_b32", S_IT, 0)
    g.flush_hazards()
    g.label("L_stspin")
    g("ds_read_b64", "v[32:33]", "v3", mods=f"offset:{L_WST}")
    g.wait(lgkm=0)
    g("v_max_u32", "v34", "v32", "v33")
    g("v_cmp_eq_u32", "vcc", -1, "v34")
    g("s_add_u32", S_IT, S_IT, 1)
    g("s_cmp_eq_u64", "vcc", 0)
    g("s_cbranch_scc1", "L_stok")
    g("s_cmp_lt_u32", S_IT, CFG["spin_limit"])
    g("s_sleep", 1)
    g("s_cbranch_scc1", "L_stspin")
    g.label("L_stok")
    g("v_mov_b32", "v40", "v32")
    for sh in (8, 4, 2, 1):
        g("v_max_f32_dpp", "v40", "v40", "v40", mods=f"row_ror:{sh} {DPPF}")
    g("v_sub_f32", "v41", "v32", "v40")
    g("v_exp_f32", "v41", "v41")
    g("v_sub_f32", "v35", S_M, "v40")
    g("v_mul_f32", "v41", "v41", "v33")
    g("v_exp_f32", "v35", "v35")
    for sh in (8, 4, 2, 1):
        g("v_add_f32_dpp", "v41", "v41", "v41", mods=f"row_ror:{sh} {DPPF}")
    g("s_cmp_lg_u32", S_WAVE, 0)
    g("s_cbranch_scc1", "L_nostat")
    st_skip = g.save()
    g("v_mov_b32", "v42", N_LO)
    g("v_mov_b32", "v43", N_HI)
    g("s_lshl_b32", "s7", S_B, 7)
    g("s_lshl_b32", "s8", S_H, 2)
    g("s_add_u32", "s7", "s7", "s8")
    g("s_add_u32", "s7", "s7", S_SPL)
    g("s_lshl_b32", "s7", "s7", 4)
    g("v_mov_b32", "v34", 0)
    setexec(1)
    g("buffer_store_dwordx4", "v[40:43]", "v34", SRD_WS, "s7", mods="offen sc1")
    setexec(-1)
    g.label("L_nostat")
    g.merge(st_skip)
    g("v_lshrrev_b32", "v39", 4, "v0")
    g("v_bfe_u32", "v37", "v0", 2, 1)
    g("v_lshlrev_b32", "v36", 6, "v39")
    g("v_lshl_add_u32", "v36", "v37", 4, "v36")
    g("v_and_b32", "v37", 3, "v0")
    g("v_lshl_add_u32", "v36", "v37", 1, "v36")
    g("s_mul_i32", "s7", S_WAVE, APITCH)
    g("v_add_u32", "v36", "s7", "v36")
    g("v_and_b32", "v37", 15, "v0")
    g("v_mul_u32_u24", "v37", APITCH, "v37")
    g("v_lshl_add_u32", "v37", "v39", 4, "v37")
    g("v_and_b32", "v38", 7, "v0")
    g("v_lshlrev_b32", "v38", 4, "v38")
    g("v_bfe_u32", "v34", "v0", 4, 1)
    g("v_lshl_add_u32", "v38", "v34", 3, "v38")
    g("v_bfe_u32", "v34", "v0", 3, 1)
    g("v_lshl_add_u32", "v38", "v34", 2, "v38")
    g("s_lshl_b32", S_Y, S_B, 7)
    g("s_lshl_b32", "s8", S_H, 2)
    g("s_add_u32", S_Y, S_Y, "s8")
    g("s_add_u32", S_Y, S_Y, S_SPL)
    g("s_lshl_b32", S_Y, S_Y, 11)
    g("s_lshl_b32", "s8", S_WAVE, 7)
    g("s_add_u32", S_Y, S_Y, "s8")
    g("s_add_u32", S_Y, S_Y, hex(WS_Y))
    assert all(f"XO{k}" in issued for k in range(8))
    g("s_mov_b32", "s12", "0xffff0000")
    g("s_mov_b32", "s13", 0)
    g("s_mov_b32", "s14", "0x00ff00ff")
    g("s_mov_b32", "s15", "0x00ff00ff")


names = [e[0] for e in stream]
for i in range(16):
    if CFG["dry2"] and i in (0, 9, 12):
        seg_end()
        g.label(f"L_segV{i}")
    tgt = i + D
    while tgt < 16 and tgt + 1 < 16 + 8:
        nxt = tgt + 1
        if nxt < 16 and stream[names.index(f"V{nxt}")][3] >= nxt - i and stream[names.index(f"V{nxt}")][3] > D + CFG["DW"]:
            tgt = nxt
        else:
            break
    if tgt < 16:
        pump(until=f"V{tgt}")
    else:
        pump(100)
    bmask_mfma("v[12:15]", vr(vreg(i)), f"v{16 + i}", i == 0)
    freed.add(f"PV{i}")
    if i == CFG["word"]:
        assert all(f"XO{k}" in issued for k in range(8))
        assert not any(len(v[1]) == 0 and k in dma_uids for k, v in g.vm.items()), "wo DMA not known complete"
        g("v_lshrrev_b32", "v3", 2, "v0")
        g("v_mul_u32_u24", "v3", WPITCH, "v3")
        g("v_and_b32", "v8", 3, "v0")
        g("v_lshl_add_u32", "v3", "v8", 3, "v3")
        g("s_lshl_b32", "s7", S_WAVE, 6)
        g("v_add_u32", "v3", "s7", "v3")
        pump(CFG["qx"], pace=False)
        if not CFG["nob2"]:
            barrier()
        if CFG["dry2"]:
            g("s_cbranch_execz", "L_notr")
        for t in range(4):
            if t:
                g("v_add_u32", "v3", 32 * WPITCH, "v3")
            for nt in range(2):
                for hh in range(2):
                    g("ds_read_b64_tr_b16", vr(96 + 16 * nt + 4 * t + 2 * hh, 2), "v3",
                      mods=f"offset:{L_WO + hh * 16 * WPITCH + nt * 32}")
        if CFG["dry2"]:
            g.label("L_notr")
    if i == CFG["stuse"]:
        factor()
    if i == CFG["rchk"]:
        g("s_cmp_lt_u32", "s2", 224)
        g("s_cbranch_scc1", "L_norchk")
        st_skip = g.save()
        g("v_lshrrev_b32", "v52", 3, "v0")
        g("s_lshl_b32", "s7", S_WAVE, 3)
        g("v_add_u32", "v52", "s7", "v52")
        g("v_and_b32", "v53", 7, "v52")
        g("v_bfe_u32", "v54", "v52", 3, 2)
        g("v_lshl_add_u32", "v53", "v53", 2, "v54")
        g("v_lshrrev_b32", "v54", 5, "v52")
        g("v_lshl_add_u32", "v53", "v53", 2, "v54")
        g("v_lshlrev_b32", "v53", 4, "v53")
        g("v_lshlrev_b32", "v54", 4, "v52")
        g("s_lshr_b32", "s7", S_PI, 4)
        g("s_lshl_b32", "s7", "s7", 11)
        g("v_add_u32", "v54", "s7", "v54")
        g("buffer_load_dwordx4", "v[56:59]", "v53", SRD_WS, 0, mods="offen sc1")
        g("buffer_load_dwordx4", "v[60:63]", "v54", SRD_WS, 0, mods="offen sc1")
        g.label("L_norchk")
        g.merge(st_skip)
pump(100)
assert spos[0] == len(stream)
stamp(3)
if CFG["dry2"]:
    seg_end()

g.dry_guard = True
g.label("L_segA")
for r in range(4):
    g("v_mul_f32", f"v{12 + r}", f"v{12 + r}", "v35")
g("v_cvt_pk_bf16_f32", "v12", "v12", "v13")
g("v_cvt_pk_bf16_f32", "v14", "v14", "v15")
setexec("s[14:15]")
g("ds_write_b16", "v36", "v12", mods=f"offset:{L_PART + 0}")
g("ds_write_b16_d16_hi", "v36", "v12", mods=f"offset:{L_PART + 32}")
g("ds_write_b16", "v36", "v14", mods=f"offset:{L_PART + 8}")
g("ds_write_b16_d16_hi", "v36", "v14", mods=f"offset:{L_PART + 40}")
setexec(-1)
g.wait(lgkm=0)
barrier()
stamp(4)
for t in range(4):
    g("ds_read_b128", vr(64 + 4 * t), "v37", mods=f"offset:{L_PART + 64 * t}")
seg_end()
g.label("L_segB")
for t in range(4):
    for nt in range(2):
        Dn = "v[12:15]" if nt == 0 else "v[8:11]"
        g("v_mfma_f32_16x16x32_bf16", Dn, vr(64 + 4 * t), vr(96 + 16 * nt + 4 * t), "0" if t == 0 else Dn)
g("v_add_f32", "v12", "v12", "v13")
g("v_add_f32", "v14", "v14", "v15")
g("v_add_f32", "v8", "v8", "v9")
g("v_add_f32", "v10", "v10", "v11")
g("v_add_f32", "v12", "v12", "v14")
g("v_add_f32", "v8", "v8", "v10")
for op in ("v_permlane16_swap_b32", "v_permlane32_swap_b32"):
    g("v_mov_b32", "v13", "v12")
    g("v_mov_b32", "v9", "v8")
    g(op, "v12", "v13")
    g(op, "v8", "v9")
    g("v_add_f32", "v12", "v12", "v13")
    g("v_add_f32", "v8", "v8", "v9")
g("v_cndmask_b32", "v12", "v12", "v8", "s[12:13]")
g("s_mov_b32", "exec_hi", 0)
g("s_mov_b32", "exec_lo", f"s{LIVE[2:LIVE.index(':')]}")
g("buffer_store_dword", "v12", "v38", SRD_WS, S_Y, mods="offen sc1")
setexec(-1)
stamp(5)
seg_end()
st_y = g.save()
g("s_cmp_ge_u32", "s2", 224)
g("s_cbranch_scc1", "L_segH")
g("s_cmp_ge_u32", "s2", NFFN)
g("s_cbranch_scc1", "L_fin")
g("s_cmp_lt_u32", S_WAVE, 4)
g("s_cbranch_scc1", "L_fin")
g("s_cmp_gt_u32", S_WAVE, 8)
g("s_cbranch_scc1", "L_fin")
g("s_cmp_eq_u32", S_WAVE, 8)
g("s_cbranch_scc1", "L_segF")
st_stat = g.save()

g.label("L_segC")
TQ = T[12]
g("s_and_b32", TQ, S_WAVE, 3)
g("v_lshrrev_b32", "v18", 4, "v0")
g("v_and_b32", "v20", 1, "v0")
g("v_lshlrev_b32", "v20", 10, "v20")
g("v_lshl_add_u32", "v20", "v18", 4, "v20")
g("s_lshl_b32", T[8], TQ, 8)
g("v_add_u32", "v20", T[8], "v20")
g("v_and_b32", "v21", 3, "v0")
g("v_lshlrev_b32", "v21", 4, "v21")
g("v_bfe_u32", "v22", "v0", 2, 2)
g("v_lshl_add_u32", "v21", "v22", 2, "v21")
g("s_lshl_b32", T[8], TQ, 6)
g("v_add_u32", "v22", T[8], "v21")
g("s_lshl_b32", T[8], TQ, 7)
g("v_add_u32", "v21", T[8], "v21")
g("v_bfe_u32", "v23", "v0", 3, 1)
g("v_lshlrev_b32", "v28", 3, "v23")
g("v_lshlrev_b32", "v23", 6, "v23")
g("v_lshl_add_u32", "v23", "v18", 4, "v23")
g("v_lshlrev_b32", "v19", 4, "v18")
g("v_bfe_u32", "v29", "v0", 3, 1)
g("v_lshlrev_b32", "v29", 11, "v29")
g("v_lshl_add_u32", "v29", "v18", 7, "v29")
g("v_and_b32", "v30", 7, "v0")
g("v_lshl_add_u32", "v29", "v30", 4, "v29")
g("s_lshl_b32", T[11], "s2", 12)
g("s_lshl_b32", T[9], TQ, 9)
g("s_add_u32", T[11], T[11], T[9])
g("s_add_u32", T[11], T[11], hex(WS_F))
g("v_bfe_u32", "v31", "v0", 2, 2)
g("v_lshlrev_b32", "v31", 8, "v31")
g("v_lshl_add_u32", "v31", "v18", 6, "v31")
g("v_and_b32", "v17", 3, "v0")
g("v_lshl_add_u32", "v31", "v17", 3, "v31")
g("s_lshl_b32", T[8], TQ, 12)
g("v_add_u32", "v31", T[8], "v31")
for r in range(4):
    g("v_mov_b32", f"v{8 + r}", "0x3f803f80")
g("v_lshrrev_b32", "v16", 1, "v0")
g("s_movk_i32", T[8], 2752)
g("v_mul_lo_u32", "v16", "v16", T[8])
g("v_and_b32", "v17", 1, "v0")
g("v_lshl_add_u32", "v16", "v17", 4, "v16")
g("s_mul_i32", T[8], TQ, 128 * 2752)
g("s_lshl_b32", T[9], "s2", 5)
g("s_add_u32", T[8], T[8], T[9])
g("s_lshl_b32", T[9], TQ, 12)
g("s_add_u32", T[9], T[9], L_W1)
if CFG["zsleep"]:
    g("s_sleep", CFG["zsleep"])
for k in range(4):
    g("s_mov_b32", "m0", T[9])
    g("buffer_load_dwordx4", "v16", SRD_W1, T[8], mods="offen lds")
    if k < 3:
        g("s_add_u32", T[8], T[8], 32 * 2752)
        g("s_add_u32", T[9], T[9], 1024)
g("v_and_b32", "v17", 15, "v0")
g("v_lshlrev_b32", "v17", 4, "v17")
g("v_lshl_add_u32", "v17", "v18", 10, "v17")
g("s_lshl_b32", T[8], "s2", 14)
g("s_lshl_b32", T[9], TQ, 8)
g("s_add_u32", T[8], T[8], T[9])
for i in range(4):
    g("buffer_load_dwordx4", vr(48 + 4 * i), "v17", SRD_W2, T[8], mods="offen")
    if i < 3:
        g("s_add_u32", T[8], T[8], 4096)
g("v_lshlrev_b32", "v17", 1, "v18")
g("s_lshl_b32", T[8], "s2", 5)
for i in range(4):
    g("buffer_load_ushort", f"v{24 + i}", "v17", SRD_B1, T[8], mods=f"offen offset:{8 * i}" if i else "offen")
g.wait(vm=0)
g("s_cbranch_execz", "L_c3")
for tt in range(4):
    for hh in range(2):
        g("ds_read_b64_tr_b16", vr(64 + 4 * tt + 2 * hh, 2), "v31",
          mods=f"offset:{L_W1 + tt * 1024 + hh * 32}")
g.label("L_c3")
for tt in range(4):
    g("v_mfma_f32_16x16x32_bf16", "v[12:15]", "v[8:11]", vr(64 + 4 * tt), "0" if tt == 0 else "v[12:15]")
for i in range(4):
    g("v_lshlrev_b32", f"v{24 + i}", 16, f"v{24 + i}")
setexec("0xffff")
g("ds_write_b32", "v22", "v12", mods=f"offset:{L_CS}")
setexec(-1)
g.wait(lgkm=0)
seg_end()
g.label("L_segD")
barrier()
for tt in range(4):
    g("ds_read_b128", vr(32 + 4 * tt), "v20", mods=f"offset:{L_HN + tt * 64}")
for q in range(4):
    g("ds_read_b128", vr(80 + 4 * q), "v19", mods=f"offset:{L_CS + 64 * q}")
for tt in range(4):
    g("v_mfma_f32_16x16x32_bf16", "v[12:15]", vr(32 + 4 * tt), vr(64 + 4 * tt), "0" if tt == 0 else "v[12:15]")
for i in range(4):
    g("v_add_f32", f"v{80 + i}", f"v{80 + i}", f"v{84 + i}")
    g("v_add_f32", f"v{88 + i}", f"v{88 + i}", f"v{92 + i}")
for i in range(4):
    g("v_add_f32", f"v{80 + i}", f"v{80 + i}", f"v{88 + i}")
setexec("0xffff")
g("ds_write_b32", "v21", "v12", mods=f"offset:{L_ZP}")
g("ds_write_b32", "v21", "v13", mods=f"offset:{L_ZP + 64}")
setexec(-1)
K1 = -2.0 * 0.7978845608028654 * 1.4426950408889634
K3 = K1 * 0.044715
g("s_mov_b32", T[8], f32hex(K3))
g("v_mov_b32", "v31", f32hex(K1))
g.wait(lgkm=0)
barrier()
seg_end()
g.label("L_segE")
for q in range(4):
    g("ds_read_b128", vr(96 + 4 * q), "v23", mods=f"offset:{L_ZP + 128 * q}")
g("ds_read_b64", "v[112:113]", "v28", mods=f"offset:{L_STAT}")
for i in range(4):
    g("v_add_f32", f"v{96 + i}", f"v{96 + i}", f"v{100 + i}")
    g("v_add_f32", f"v{104 + i}", f"v{104 + i}", f"v{108 + i}")
Z = [f"v{96 + i}" for i in range(4)]
TT_ = [f"v{100 + i}" for i in range(4)]
for i in range(4):
    g("v_add_f32", Z[i], Z[i], f"v{104 + i}")
for i in range(4):
    g("v_fma_f32", Z[i], "-v112", f"v{80 + i}", Z[i])
for i in range(4):
    g("v_mul_f32", Z[i], Z[i], "v113")
bf16r2(Z[0], Z[1], TT_[0])
bf16r2(Z[2], Z[3], TT_[1])
for i in range(4):
    g("v_add_f32", Z[i], Z[i], f"v{24 + i}")
bf16r2(Z[0], Z[1], TT_[0])
bf16r2(Z[2], Z[3], TT_[1])
for i in range(4):
    g("v_mul_f32", TT_[i], Z[i], Z[i])
for i in range(4):
    g("v_fma_f32", TT_[i], TT_[i], T[8], "v31")
for i in range(4):
    g("v_mul_f32", TT_[i], TT_[i], Z[i])
for i in range(4):
    g("v_exp_f32", TT_[i], TT_[i])
for i in range(4):
    g("v_add_f32", TT_[i], 1.0, TT_[i])
for i in range(4):
    g("v_rcp_f32", TT_[i], TT_[i])
for i in range(4):
    g("v_mul_f32", Z[i], Z[i], TT_[i])
for i in range(4):
    g("v_cvt_pk_bf16_f32", Z[i], Z[i], Z[i])
for i in range(4):
    bmask_mfma("v[12:15]", vr(48 + 4 * i), Z[i], i == 0)
g("buffer_store_dwordx4", "v[12:15]", "v29", SRD_WS, T[11], mods="offen sc1")
stamp(8)
seg_end()
g("s_branch", "L_fin")

g.label("L_segF")
g.restore(st_stat)
g("s_mov_b32", T[8], hex(WS_H))
g("v_mov_b32", "v28", 0)
g("v_lshlrev_b32", "v29", 3, "v0")
g("v_and_b32", "v30", 31, "v0")
g("v_lshlrev_b32", "v30", 6, "v30")
g("s_movk_i32", T[9], (128 + 3) * 16)
poll_tag(32, "v30", T[9], full)
if CFG["rep"]:
    poll_one("v1", T[8], 1 << 21, imm=2048)
poll_gather([32, 36, 40, 44], ["v1"] * 4, T[8], [full] * 4, imm=[0, 1024, 2048, 3072], slp=CFG["hsleep"])
stamp(7)
for k in range(8):
    g("v_cvt_pk_bf16_f32", f"v{16 + k}", f"v{32 + 2 * k}", f"v{33 + 2 * k}")
for b in range(2):
    g("ds_write_b64", "v29", vr(16 + 4 * b, 2), mods=f"offset:{L_HN + b * 1024}")
    g("ds_write_b64", "v29", vr(18 + 4 * b, 2), mods=f"offset:{L_HN + b * 1024 + 512}")
for b in range(2):
    g("v_readlane_b32", T[b], f"v{32 + 8 * b}", 0)
g.wait(lgkm=0)
barrier()
for b in range(2):
    for k in range(8):
        g("v_subrev_f32", f"v{32 + 8 * b + k}", T[b], f"v{32 + 8 * b + k}")
for b in range(2):
    base = 32 + 8 * b
    s1, s2 = f"v{8 + 2 * b}", f"v{9 + 2 * b}"
    g("v_add_f32", s1, f"v{base}", f"v{base + 1}")
    g("v_mul_f32", s2, f"v{base}", f"v{base}")
    g("v_fmac_f32", s2, f"v{base + 1}", f"v{base + 1}")
for k in range(2, 8):
    for b in range(2):
        base = 32 + 8 * b
        s1, s2 = f"v{8 + 2 * b}", f"v{9 + 2 * b}"
        g("v_add_f32", s1, s1, f"v{base + k}")
        g("v_fmac_f32", s2, f"v{base + k}", f"v{base + k}")
wave_reduce("v_add_f32", ["v8", "v9", "v10", "v11"])
g("v_mov_b32", "v12", "0x3b000000")
MU = ["v8", "v10"]
VA = ["v9", "v11"]
for b in range(2):
    g("v_mul_f32", MU[b], MU[b], "v12")
    g("v_mul_f32", VA[b], VA[b], "v12")
for b in range(2):
    g("v_fma_f32", VA[b], f"-{MU[b]}", MU[b], VA[b])
    g("v_add_f32", MU[b], T[b], MU[b])
for b in range(2):
    g("v_max_f32", VA[b], 0, VA[b])
for b in range(2):
    bf16r2(MU[b], VA[b], f"v{13 + b}")
for b in range(2):
    g("v_add_f32", VA[b], "0x3727c5ac", VA[b])
for b in range(2):
    bf16r(VA[b], VA[b])
for b in range(2):
    g("v_sqrt_f32", VA[b], VA[b])
for b in range(2):
    bf16r(VA[b], VA[b])
for b in range(2):
    g("v_rcp_f32", VA[b], VA[b])
g("s_mov_b32", T[0], 0)
g("s_brev_b32", T[1], 1)
g("s_and_b64", "exec", LIVE, f"s[{T[0][1:]}:{T[1][1:]}]")
g("ds_write_b128", "v28", "v[8:11]", mods=f"offset:{L_STAT}")
setexec(-1)
g.wait(lgkm=0)
barrier()
seg_end()
g("s_branch", "L_fin")


def xlane_sum(base, tmp):
    for r in range(4):
        g("v_add_f32_dpp", f"v{base + r}", f"v{base + r}", f"v{base + r}", mods=f"row_ror:8 {DPPF}")
    for op in ("v_permlane16_swap_b32", "v_permlane32_swap_b32"):
        for r in range(4):
            g("v_mov_b32", f"v{tmp + r}", f"v{base + r}")
        for r in range(4):
            g(op, f"v{base + r}", f"v{tmp + r}")
        for r in range(4):
            g("v_add_f32", f"v{base + r}", f"v{base + r}", f"v{tmp + r}")


g.label("L_segH")
g.restore(st_y)
TB, TK, TX = T[10], T[11], T[12]
g("s_lshr_b32", TB, S_PI, 4)
g("s_and_b32", TK, S_PI, 15)
g("v_lshrrev_b32", "v18", 3, "v0")
g("v_and_b32", "v19", 7, "v0")
g("v_lshlrev_b32", "v19", 4, "v19")
g("v_lshl_add_u32", "v16", "v18", 11, "v19")
g("v_lshl_add_u32", "v17", "v18", 12, "v19")
g("s_lshl_b32", T[8], S_WAVE, 7)
g("v_add_u32", "v19", T[8], "v19")
g("v_and_b32", "v23", 31, "v0")
g("v_lshlrev_b32", "v25", 2, "v23")
g("v_lshrrev_b32", "v24", 5, "v0")
g("v_lshl_add_u32", "v24", "v24", 10, "v25")
g("v_and_b32", "v20", 3, "v23")
g("v_lshlrev_b32", "v20", 4, "v20")
g("v_lshrrev_b32", "v23", 2, "v23")
g("v_lshl_add_u32", "v20", "v23", 1, "v20")
g("s_lshl_b32", TX, TK, 6)
g("buffer_load_ushort", "v22", "v20", SRD_B2, TX, mods="offen")
g("s_lshl_b32", T[8], TB, 10)
g("s_add_u32", TX, TX, T[8])
g("buffer_load_ushort", "v21", "v20", SRD_X, TX, mods="offen")
g("s_lshl_b32", T[8], TB, 18)
g("s_lshl_b32", T[9], S_WAVE, 14)
g("s_add_u32", T[8], T[8], T[9])
g("s_lshl_b32", T[9], TK, 7)
g("s_add_u32", T[8], T[8], T[9])
g("s_add_u32", T[8], T[8], hex(WS_Y))
g("v_cmp_gt_u32", "vcc", NFFN, "v52")
g("s_mov_b32", T[9], 0)
g.wait_regs("v[56:63]")
st_pre = g.save()
poll_tag(56, "v53", T[9], "vcc", pre=True)
poll_tag(60, "v54", T[9], full, pre=True)
g.merge(st_pre)
g("v_mov_b32", "v44", "v60")
g("v_mov_b32", "v45", "v61")
g("v_mov_b32", "v46", "v44")
g("v_max_f32_dpp", "v46", "v46", "v46", mods=f"row_ror:8 {DPPF}")
g("v_mov_b32", "v47", "v46")
g("v_permlane16_swap_b32", "v46", "v47")
g("v_max_f32", "v46", "v46", "v47")
g("v_sub_f32", "v44", "v44", "v46")
g("v_exp_f32", "v44", "v44")
g("v_mul_f32", "v45", "v45", "v44")
g("v_add_f32_dpp", "v45", "v45", "v45", mods=f"row_ror:8 {DPPF}")
g("v_mov_b32", "v47", "v45")
g("v_permlane16_swap_b32", "v45", "v47")
g("v_add_f32", "v45", "v45", "v47")
g("v_rcp_f32", "v45", "v45")
g("v_mul_f32", "v44", "v44", "v45")
poll_gather([32], ["v16"], T[8], [full], slp=CFG["ysleep"])
for r in range(4):
    g("v_mul_f32", f"v{32 + r}", f"v{32 + r}", "v44")
xlane_sum(32, 36)
setexec("0xff")
g("ds_write_b128", "v19", "v[32:35]", mods=f"offset:{L_RED}")
setexec(-1)
for r in range(4):
    g("v_mov_b32", f"v{40 + r}", 0)
g("s_lshl_b32", T[8], S_WAVE, 15)
g("s_lshl_b32", T[9], S_PI, 7)
g("s_add_u32", T[8], T[8], T[9])
g("s_add_u32", T[8], T[8], hex(WS_F))
g.wait(lgkm=0)
barrier()
seg_end()
g("s_cmp_gt_u32", S_WAVE, 10)
g("s_cbranch_scc1", "L_fin")
g("s_cmp_lg_u32", S_WAVE, 0)
g("s_cbranch_scc1", "L_segJ")
st_j = g.save()
g.label("L_segI")
stamp(6)
for k in range(8):
    g("ds_read_b32", f"v{32 + k}", "v24", mods=f"offset:{L_RED + 128 * k}")
g("v_lshlrev_b32", "v21", 16, "v21")
g("v_lshlrev_b32", "v22", 16, "v22")
g("s_lshl_b32", T[9], S_PI, 7)
g("s_add_u32", T[9], T[9], hex(WS_H))
tree_sum([f"v{32 + k}" for k in range(8)])
g("v_mov_b32", "v33", "v32")
g("v_permlane32_swap_b32", "v32", "v33")
g("v_add_f32", "v32", "v32", "v33")
bf16r("v32", "v32")
g("v_add_f32", "v26", "v32", "v21")
bf16r("v26", "v26")
setexec("0xffffffff")
g("buffer_store_dword", "v26", "v25", SRD_WS, T[9], mods="offen sc1")
setexec(-1)
seg_end()
g.label("L_segJ")
g.merge(st_j)
g("s_lshl_b32", T[9], S_WAVE, 3)
g("v_add_u32", "v27", T[9], "v18")
g("v_cmp_gt_u32", "vcc", NFFN, "v27")
poll_gather([40], ["v17"], T[8], ["vcc"], slp=CFG["fsleep"])
xlane_sum(40, 36)
setexec("0xff")
g("ds_write_b128", "v19", "v[40:43]", mods=f"offset:{L_RED + 2048}")
setexec(-1)
g.wait(lgkm=0)
barrier()
g("s_cbranch_execz", "L_j2")
g("s_cmp_lg_u32", S_WAVE, 0)
g("s_cbranch_scc1", "L_fin")
g.label("L_j2")
g("v_lshrrev_b32", "v27", 5, "v0")
g("v_mul_u32_u24", "v27", 768, "v27")
g("v_add_u32", "v27", "v27", "v25")
for k in range(6):
    g("ds_read_b32", f"v{32 + k}", "v27", mods=f"offset:{L_RED + 2048 + 128 * k}")
g("s_mov_b32", T[0], -1)
g("s_mov_b32", T[1], 0)
g("v_cndmask_b32", "v37", 0, "v37", f"s[{T[0][1:]}:{T[1][1:]}]")
tree_sum([f"v{32 + k}" for k in range(6)])
g("v_mov_b32", "v33", "v32")
g("v_permlane32_swap_b32", "v32", "v33")
g("v_add_f32", "v32", "v32", "v33")
bf16r("v32", "v32")
g("v_add_f32", "v32", "v32", "v22")
bf16r("v32", "v32")
g("v_add_f32", "v32", "v32", "v26")
g("v_cvt_pk_bf16_f32", "v32", "v32", "v32")
setexec("0xffffffff")
g("buffer_store_short", "v32", "v20", SRD_OUT, TX, mods="offen")
setexec(-1)
stamp(9)
seg_end()
g.dry_guard = False

g.label("L_fin")
if CFG["diag"]:
    g.nop(8)
    g.wait(vm=0, lgkm=0)
    diag_store()
g.label("L_end")
g("s_endpgm")
if not CFG["dry"]:
    g.label("L_dryret")
    g("s_endpgm")

hdr = open("cdna_kernels/" + NAME + ".s.ref").read().split("\n")
head = []
for line in hdr:
    if line.startswith("; @launch"):
        head.append(f"; @launch grid=(256,1,1) block=(1024,1,1) lds={LDS_BYTES}")
    elif line.startswith(";"):
        head.append(line)
    else:
        break
src = "\n".join(head) + "\n"
src += f""".amdgcn_target "amdgcn-amd-amdhsa--gfx950"
.text
.globl {NAME}_kernel
.p2align 8
.type {NAME}_kernel,@function
{NAME}_kernel:
"""
src += g.text()
src += f""".section .rodata,"a"
.p2align 6
.amdhsa_kernel {NAME}_kernel
  .amdhsa_next_free_vgpr 128
  .amdhsa_next_free_sgpr 102
  .amdhsa_accum_offset 128
  .amdhsa_group_segment_fixed_size 0
  .amdhsa_kernarg_size 104
  .amdhsa_user_sgpr_count 2
  .amdhsa_user_sgpr_kernarg_segment_ptr 1
  .amdhsa_system_sgpr_workgroup_id_x 1
.end_amdhsa_kernel
"""
open(sys.argv[1], "w").write(src)
print("instructions:", g.ninstr)
```

```python
import sys
import struct
from asmgen import Gen

NAME = "sequential_preLN__mha_block_cached__dense_activation_gelu__decode"

CFG = dict(
    kv_mods="nt", w_mods="nt", diag=0, spin_limit=200000,
    D=2,
    DW=0,
    wo0=5,
    stpos=9,
    stuse=10,
    rchk=14,
    b1pos="K4",
    drypos="K8",
    gpos="K12",
    qbar="K15",
    qx=1,
    dry=1,
    hsh=7,
    prio=0,
    sleep=0,
    sleep1=0,
    athr=6,
    asleep=1,
    rep=1,
    dry2=1,
    wopos="3,6,9,12,15,18,21,24",
    word=13,
    fspin=2,
    pdly=2,
    gdly=3,
    nob1=0,
    nob2=0,
    noclr=0,
    nost=0,
    nowo=0,
    nokc=0,
    nend=0,
    dend=4,
    zsleep=0,
    hsleep=1,
    ysleep=1,
    fsleep=1,
)
for a in sys.argv[2:]:
    k, v = a.split("=", 1)
    if isinstance(CFG[k], int):
        v = int(v)
    CFG[k] = v

NFFN = 86
WS_ST = 0x0
WS_H = 0x8000
WS_Y = 0x10000
WS_F = 0x100000
WS_QP = 0x180000
WS_HR = 0x1d0000
WS_DIAG = 0x200000
WS_SIZE = 0x400000
NONCE = "s[40:41]"
N_LO, N_HI = "s40", "s41"
PSTR = 80
APITCH = 272
L_RED = 8192
L_PART = 0
L_QB = 20480
L_YP = 20736
L_ZP = 20736
L_CS = 21248
L_STAT = 21504
L_HN = 23552 + 16384
L_WST = 21536
L_NONCE = 21520
WPITCH = 1056
L_WO = 22528
L_W1 = 23552
LDS_BYTES = 22528 + 128 * 1056

S_WAVE, S_H, S_B, S_SPL = "s3", "s4", "s5", "s6"
SRD_K, SRD_V, SRD_WQ, SRD_WO = "s[44:47]", "s[48:51]", "s[52:55]", "s[56:59]"
SRD_X, SRD_WS, SRD_DBG, SRD_W1 = "s[60:63]", "s[64:67]", "s[68:71]", "s[72:75]"
SRD_W2, SRD_B1, SRD_B2, SRD_OUT = "s[76:79]", "s[80:83]", "s[84:87]", "s[88:91]"
S_KV, S_T, S_WO, S_M, S_BH, S_PI = "s92", "s93", "s94", "s95", "s96", "s97"
LIVE = "s[98:99]"
S_LOG2E, S_SCALE = "s42", "s43"
T = [f"s{16 + i}" for i in range(14)]
S_IT = "s29"
S_Y = "s27"
STAMP0 = 30
DPPF = "row_mask:0xf bank_mask:0xf"
full = (1 << 64) - 1


def vr(a, n=4):
    return f"v[{a}:{a + n - 1}]"


def f32hex(x):
    return "0x%08x" % struct.unpack("<I", struct.pack("<f", x))[0]


g = Gen()


def stamp(slot):
    if not CFG["diag"]:
        return
    lab = None
    if g.dry_guard:
        lab = g.newlabel("Lst")
        g("s_cbranch_execz", lab)
    g("s_memrealtime", "s[100:101]")
    g.wait(lgkm=0)
    g("s_mov_b32", f"s{STAMP0 + slot}", "s100")
    if lab:
        g.label(lab)


def srd(dst_base, ptr_lo, nbytes):
    g("s_mov_b32", f"s{dst_base}", f"s{ptr_lo}")
    g("s_and_b32", f"s{dst_base + 1}", f"s{ptr_lo + 1}", "0xffff")
    g("s_mov_b32", f"s{dst_base + 2}", hex(nbytes))
    g("s_mov_b32", f"s{dst_base + 3}", "0x00020000")


def setexec(m):
    if g.dry_guard:
        if m == -1:
            g("s_mov_b64", "exec", LIVE)
        else:
            g("s_and_b64", "exec", LIVE, m)
    else:
        g("s_mov_b64", "exec", m)


def barrier():
    if g.dry_guard:
        lab = g.newlabel("Lb")
        g("s_cbranch_execz", lab)
        g("s_barrier")
        g.label(lab)
    else:
        g("s_barrier")


def seg_end():
    g("s_cbranch_execz", "L_dryret")


def wave_reduce(op, regs):
    for sh in (8, 4, 2, 1):
        for r in regs:
            g(op + "_dpp", r, r, r, mods=f"row_ror:{sh} {DPPF}")
    for r in regs:
        g(op + "_dpp", r, r, r, mods="row_bcast:15 row_mask:0xa bank_mask:0xf")
    for r in regs:
        g(op + "_dpp", r, r, r, mods="row_bcast:31 row_mask:0xc bank_mask:0xf")


def bf16r(dst, src, tmp=None):
    t = tmp or dst
    g("v_cvt_pk_bf16_f32", t, src, src)
    g("v_and_b32", dst, "0xffff0000", t)


def bf16r2(a, b, tmp):
    g("v_cvt_pk_bf16_f32", tmp, a, b)
    g("v_lshlrev_b32", a, 16, tmp)
    g("v_and_b32", b, "0xffff0000", tmp)


def unpack(dlo, dhi, src):
    g("v_lshlrev_b32", dlo, 16, src)
    g("v_and_b32", dhi, "0xffff0000", src)


def tree_sum(regs, op="v_add_f32"):
    regs = list(regs)
    while len(regs) > 1:
        nxt = []
        for i in range(0, len(regs) - 1, 2):
            g(op, regs[i], regs[i], regs[i + 1])
            nxt.append(regs[i])
        if len(regs) % 2:
            nxt.append(regs[-1])
        regs = nxt
    return regs[0]


def bmask_mfma(D, A, val, first, bcast=None):
    for r in range(4):
        if bcast is None:
            g("v_and_b32", f"v{8 + r}", val, f"v{4 + r}")
        else:
            g("v_and_b32_dpp", f"v{8 + r}", val, f"v{4 + r}", mods=f"row_newbcast:{bcast} {DPPF}")
    g("v_mfma_f32_16x16x32_bf16", D, A, "v[8:11]", "0" if first else D)


def poll_one(voff, soff, lane_mask, imm=0):
    g("s_and_b64", "exec", LIVE, hex(lane_mask))
    g("s_mov_b32", S_IT, 0)
    g.flush_hazards()
    L = g.newlabel("Lp1")
    Ld = g.newlabel("Lp1done")
    g("s_cbranch_execz", Ld)
    g.label(L)
    g("buffer_load_dword", "v31", voff, SRD_WS, soff, mods=(f"offen offset:{imm + 12} sc1"))
    sv = g.dry_guard
    g.dry_guard = False
    g.wait(vm=0)
    g.dry_guard = sv
    g("v_cmp_eq_u32", "vcc", -1, "v31")
    g("s_add_u32", S_IT, S_IT, 1)
    g("s_cmp_eq_u64", "vcc", 0)
    g("s_cbranch_scc1", Ld)
    g("s_cmp_lt_u32", S_IT, CFG["spin_limit"])
    if CFG["sleep1"]:
        g("s_sleep", CFG["sleep1"])
    g("s_cbranch_scc1", L)
    g.label(Ld)
    g("s_mov_b64", "exec", LIVE)


def poll_gather(dsts, voffs, soff, masks, imm=None, adaptive=False, slp=None):
    pend = [f"s[{16 + 2 * k}:{17 + 2 * k}]" for k in range(len(dsts))]
    for k, m in enumerate(masks):
        if m == full:
            g("s_mov_b64", pend[k], LIVE)
        elif isinstance(m, str):
            g("s_and_b64", pend[k], LIVE, m)
        else:
            assert m < (1 << 31)
            g("s_and_b64", pend[k], LIVE, hex(m))
    g("s_mov_b32", S_IT, 0)
    g.flush_hazards()
    L = g.newlabel("Lpoll")
    Ld = g.newlabel("Lpolldone")
    g.label(L)
    for k, d in enumerate(dsts):
        g("s_mov_b64", "exec", pend[k])
        mods = "offen sc1"
        if imm and imm[k]:
            mods = f"offen offset:{imm[k]} sc1"
        g("buffer_load_dwordx4", vr(d), voffs[k], SRD_WS, soff, mods=mods)
    g("s_mov_b64", "exec", LIVE)
    g.wait(vm=0)
    for k, d in enumerate(dsts):
        g("s_mov_b64", "exec", pend[k])
        g("v_max3_u32", "v31", f"v{d}", f"v{d + 1}", f"v{d + 2}")
        g("v_max_u32", "v31", "v31", f"v{d + 3}")
        g("v_cmp_eq_u32", pend[k], -1, "v31")
    if len(dsts) == 1:
        g("s_or_b64", "s[100:101]", pend[0], pend[0])
    else:
        g("s_or_b64", "s[100:101]", pend[0], pend[1])
        for k in range(2, len(dsts)):
            g("s_or_b64", "s[100:101]", "s[100:101]", pend[k])
    g("s_cbranch_scc0", Ld)
    g("s_add_u32", S_IT, S_IT, 1)
    g("s_cmp_lt_u32", S_IT, CFG["spin_limit"])
    g("s_cbranch_scc0", Ld)
    if adaptive:
        g("s_bcnt1_i32_b64", "s100", "s[100:101]")
        g("s_cmp_le_u32", "s100", CFG["athr"])
        g.flush_hazards()
        g("s_cbranch_scc1", L)
        g("s_sleep", CFG["asleep"])
    elif slp:
        g("s_sleep", slp)
    g.flush_hazards()
    g("s_branch", L)
    g.label(Ld)
    g("s_mov_b64", "exec", LIVE)
    g.flush_hazards()


def poll_tag(dst, voff, soff, mask, pre=False):
    pend = "s[16:17]"
    if mask == full:
        g("s_mov_b64", pend, LIVE)
    else:
        g("s_and_b64", pend, LIVE, mask)
    g("s_mov_b32", S_IT, 0)
    g.flush_hazards()
    L = g.newlabel("Lpt")
    Ld = g.newlabel("Lptdone")
    Lc = g.newlabel("Lptchk")
    if pre:
        g("s_branch", Lc)
    g.label(L)
    g("s_mov_b64", "exec", pend)
    g("buffer_load_dwordx4", vr(dst), voff, SRD_WS, soff, mods="offen sc1")
    g("s_mov_b64", "exec", LIVE)
    g.wait(vm=0)
    g.label(Lc)
    g("s_mov_b64", "exec", pend)
    g("v_cmp_ne_u64", pend, NONCE, vr(dst + 2, 2))
    g("s_or_b64", "s[100:101]", pend, pend)
    g("s_cbranch_scc0", Ld)
    g("s_add_u32", S_IT, S_IT, 1)
    g("s_cmp_lt_u32", S_IT, CFG["spin_limit"])
    g("s_cbranch_scc0", Ld)
    g("s_sleep", 2)
    g.flush_hazards()
    g("s_branch", L)
    g.label(Ld)
    g("s_mov_b64", "exec", LIVE)
    g.flush_hazards()


def diag_store():
    if CFG["diag"] == 2:
        lab = g.newlabel("Ldd")
        g("s_cmp_lg_u32", S_WAVE, 0)
        g("s_cbranch_scc1", lab)
        g("s_cmp_eq_u32", "s2", 255)
        g("s_cselect_b32", "s7", 8, 0)
        g("s_cmp_eq_u32", "s2", 5)
        g("s_cselect_b32", "s7", 36, "s7")
        g("s_cmp_eq_u32", "s7", 0)
        g("s_cbranch_scc1", lab)
        g("v_mov_b32", "v30", 0)
        for n, i in enumerate((0, 1, 2, 3, 5, 6, 9)):
            g("s_sub_u32", "s8", f"s{STAMP0 + i}", N_LO)
            g("v_writelane_b32", "v30", "s8", n)
        g("v_lshlrev_b32", "v29", 2, "v0")
        g("s_mov_b64", "exec", "0x7f")
        g("buffer_store_dword", "v30", "v29", SRD_DBG, "s7", mods="offen")
        g.label(lab)
        return
    g("v_mov_b32", "v30", 0)
    for i in range(10):
        g("v_writelane_b32", "v30", f"s{STAMP0 + i}", i)
    g("s_lshl_b32", "s7", "s2", 4)
    g("s_add_u32", "s7", "s7", S_WAVE)
    g("s_lshl_b32", "s7", "s7", 6)
    g("s_add_u32", "s7", "s7", hex(WS_DIAG))
    g("v_lshlrev_b32", "v29", 2, "v0")
    g("s_mov_b64", "exec", "0xffff")
    g("buffer_store_dword", "v30", "v29", SRD_WS, "s7", mods="offen")


g("s_cmp_ge_u32", "s2", 256)
g("s_cbranch_scc1", "L_end")
g("s_load_dwordx16", "s[16:31]", "s[0:1]", 0)
g("s_load_dwordx8", "s[32:39]", "s[0:1]", 64)
g("s_load_dwordx2", "s[40:41]", "s[0:1]", 96)
g("v_readfirstlane_b32", S_WAVE, "v0")
g("v_and_b32", "v0", 63, "v0")
g("s_and_b32", "s7", "s2", 7)
g("s_lshr_b32", "s8", "s2", 3)
g("s_and_b32", "s9", "s8", 3)
g("s_lshl_b32", S_H, "s7", 2)
g("s_add_u32", S_H, S_H, "s9")
g("s_mov_b32", S_PI, S_H)
g("s_lshr_b32", "s13", "s8", 2)
g("s_lshr_b32", S_B, "s13", 2)
g("s_and_b32", S_SPL, "s13", 3)
g("s_lshr_b32", S_WAVE, S_WAVE, 6)
g("v_lshlrev_b32", "v1", 4, "v0")
g("v_lshrrev_b32", "v3", 4, "v0")
g("v_and_b32", "v2", 15, "v0")
g("v_lshlrev_b32", "v2", 4, "v2")
g("v_lshl_add_u32", "v2", "v3", 13, "v2")
g("v_lshlrev_b32", "v3", 1, "v3")
g("v_bfe_u32", "v8", "v0", 3, 1)
g("v_lshl_add_u32", "v3", "v8", 10, "v3")
g("s_lshl_b32", S_BH, S_B, 5)
g("s_add_u32", S_BH, S_BH, S_H)
g("s_lshl_b32", S_KV, S_BH, 20)
g("s_lshl_b32", "s7", S_SPL, 18)
g("s_add_u32", S_KV, S_KV, "s7")
g("s_lshl_b32", "s7", S_WAVE, 10)
g("s_add_u32", S_KV, S_KV, "s7")
g("s_lshl_b32", "s11", "s13", 4)
g("s_add_u32", "s11", "s11", S_WAVE)
g("s_lshl_b32", "s12", "s11", 15)
g("s_lshl_b32", "s7", S_H, 8)
g("s_add_u32", "s12", "s12", "s7")
g("s_lshl_b32", "s11", "s11", 3)
g.wait(lgkm=0)
srd(44, 18, 2 * 32 * 4096 * 128 * 2)

kvm = CFG["kv_mods"]
wm = CFG["w_mods"]


def vreg(i):
    return 32 + 4 * i if i < 8 else 64 + 4 * (i - 8)


def kv_load(dst, srd_, i):
    g("s_add_u32", S_T, S_KV, i * 16384)
    g("buffer_load_dwordx4", vr(dst), "v1", srd_, S_T, mods=f"offen {kvm}".strip())


def wo_load(i):
    if CFG["nowo"]:
        g("s_mov_b32", "m0", L_WO)
        g("buffer_load_dword", "v1", SRD_X, 0, mods="offen lds")
        return
    g("s_add_u32", S_T, S_WO, i * 1024)
    g("s_mul_i32", "s101", S_WAVE, 8 * WPITCH)
    g("s_add_u32", "m0", "s101", L_WO + i * WPITCH)
    g("buffer_load_dwordx4", "v1", SRD_WO, S_T, mods=f"offen {wm} lds")


def st_load():
    g("v_lshlrev_b32", "v3", 3, "v0")
    g("s_lshl_b32", "s7", S_BH, 9)
    g("buffer_load_dwordx2", "v[32:33]", "v3", SRD_WS, "s7", mods="offen sc1")


D = CFG["D"]
stream = []
wopos = [int(x) for x in CFG["wopos"].split(",")]
base = []
for i in range(16):
    base.append((f"K{i}", None, (lambda i=i: kv_load(64 + 4 * i, SRD_K, i)), D))
for i in range(16):
    base.append((f"V{i}", "QDONE" if i < 8 else f"K{i - 8}", (lambda i=i: kv_load(vreg(i), SRD_V, i)), D))
for n, e in enumerate(base):
    stream.append(e)
    for i, p in enumerate(wopos):
        if p == n:
            stream.append((f"XO{i}", "WOK", (lambda i=i: wo_load(i)), 99))
NE = CFG["nend"]
for idx in range(len(stream) - NE, len(stream)):
    nm, pre, fn, dd = stream[idx]
    if dd < 99:
        stream[idx] = (nm, pre, fn, CFG["dend"])
freed = set()
spos = [0]
issued = set()
heavy = set()
dma_uids = set()


def pump(n=1, pace=True, until=None):
    cnt = 0
    while spos[0] < len(stream):
        if until is not None:
            if until in issued:
                return
        elif cnt >= n:
            return
        name, pre, fn, dd = stream[spos[0]]
        if pre is not None and pre not in freed:
            if until is not None:
                raise RuntimeError(f"blocked at {name} needs {pre}")
            return
        if pace:
            hv = 0
            for uid, ent in sorted(g.vm.items(), key=lambda kv: kv[1][0]):
                if uid in heavy:
                    hv += 1
                    if hv == dd:
                        g.wait(vm=ent[0])
                        break
        fn()
        if name[0] in "KVW":
            heavy.add(g.uid)
        if name[0] == "X":
            dma_uids.add(g.uid)
        issued.add(name)
        spos[0] += 1
        cnt += 1


pump(1, pace=False)
srd(60, 16, 2048)
g("buffer_load_dwordx4", "v[24:27]", "v1", SRD_X, 0, mods="offen")
g("buffer_load_dwordx4", "v[28:31]", "v1", SRD_X, 0, mods="offen offset:1024")
g("buffer_load_ushort", "v3", "v3", SRD_X, "s11", mods="offen")
srd(52, 22, 512 * 4096 * 2)
g("buffer_load_dwordx4", "v[60:63]", "v2", SRD_WQ, "s12", mods=f"offen {wm}".strip())
pump(D - 1, pace=False)
srd(64, 40, WS_SIZE)
srd(68, 38, 256)
g("s_or_b32", "s7", "s2", S_WAVE)
g("s_cmp_lg_u32", "s7", 0)
g("s_cbranch_scc1", "L_nononce")
st_skip = g.save()
g("s_memrealtime", "s[8:9]")
g("v_mov_b32", "v10", 0)
g.wait(lgkm=0)
g("s_bitset1_b32", "s9", 31)
g("v_mov_b32", "v8", "s8")
g("v_mov_b32", "v9", "s9")
g("s_mov_b64", "exec", 1)
g("buffer_store_dwordx2", "v[8:9]", "v10", SRD_DBG, 0, mods="offen sc1")
g("s_mov_b64", "exec", -1)
g.label("L_nononce")
g.merge(st_skip)

if CFG["diag"]:
    g("s_memrealtime", "s[100:101]")
    g.wait(lgkm=0)
    g("s_mov_b32", "s15", "s100")

g("s_cmp_lg_u32", S_WAVE, 1)
g("s_cbranch_scc1", "L_noclear")
st_skip = g.save()
for r in range(4):
    g("v_mov_b32", f"v{8 + r}", -1)
g("s_lshl_b32", "s7", S_B, 7)
g("s_lshl_b32", "s8", S_H, 2)
g("s_add_u32", "s7", "s7", "s8")
g("s_add_u32", "s7", "s7", S_SPL)
g("s_lshl_b32", "s7", "s7", 11)
g("s_add_u32", "s7", "s7", hex(WS_Y))
g("buffer_store_dwordx4", "v[8:11]", "v1", SRD_WS, "s7", mods="offen sc1")
g("buffer_store_dwordx4", "v[8:11]", "v1", SRD_WS, "s7", mods="offen offset:1024 sc1")
g("s_mov_b64", "exec", "0xff")
g("ds_write_b128", "v1", "v[8:11]", mods=f"offset:{L_WST}")
g("s_cmp_lt_u32", "s2", 224)
g("s_cbranch_scc1", "L_noclrh")
g("s_lshl_b32", "s7", S_PI, 7)
g("s_add_u32", "s7", "s7", hex(WS_H))
g("buffer_store_dwordx4", "v[8:11]", "v1", SRD_WS, "s7", mods="offen sc1")
g.label("L_noclrh")
g("s_mov_b64", "exec", -1)
g("s_cmp_ge_u32", "s2", NFFN)
g("s_cbranch_scc1", "L_noclear")
st_skip2 = g.save()
g("s_lshl_b32", "s7", "s2", 12)
g("s_add_u32", "s7", "s7", hex(WS_F))
for k in range(4):
    g("buffer_store_dwordx4", "v[8:11]", "v1", SRD_WS, "s7",
      mods=f"offen offset:{k * 1024} sc1" if k else "offen sc1")
g.label("L_noclear")
g.merge(st_skip)
g.merge(st_skip2)
uids_before_clear_end = set(g.vm.keys())
g("v_mov_b32", "v22", 0)
g("v_mov_b32", "v23", 0)

srd(48, 20, 2 * 32 * 4096 * 128 * 2)
srd(56, 24, 4096 * 512 * 2)
srd(72, 28, 512 * 1376 * 2)
srd(76, 32, 1376 * 512 * 2)
srd(80, 30, 1376 * 2)
srd(84, 34, 512 * 2)
srd(88, 36, 2048)
if CFG["diag"]:
    g("s_mov_b32", f"s{STAMP0}", "s15")
    for i in range(1, 10):
        g("s_mov_b32", f"s{STAMP0 + i}", 0)
g("s_mov_b64", LIVE, -1)
if CFG["prio"]:
    for lvl in (1, 2, 3):
        lab = g.newlabel("Lprio")
        g("s_cmp_lt_u32", S_WAVE, 4 * lvl if CFG["prio"] == 1 else {1: 8, 2: 12, 3: 99}[lvl])
        g("s_cbranch_scc1", lab)
        g("s_setprio", lvl)
        g.label(lab)
g("s_mov_b32", S_LOG2E, "0x3fb8aa3b")
g("s_mov_b32", S_SCALE, "0x3db504f3")
g("s_lshl_b32", S_WO, S_H, 17)
g("s_lshl_b32", "s7", S_WAVE, 13)
g("s_add_u32", S_WO, S_WO, "s7")
freed.add("WOK")
for r in (16, 17, 18, 19, 20, 21, 52, 53, 54):
    g("v_mov_b32", f"v{r}", 0)
g("v_and_b32", "v12", 1, "v0")
g("v_lshlrev_b32", "v12", 4, "v12")
g("v_mov_b32", "v13", "0xffff")
g("v_lshlrev_b32", "v13", "v12", "v13")
g("v_bfe_u32", "v12", "v0", 1, 2)
for r in range(4):
    g("v_cmp_eq_u32", "vcc", r, "v12")
    g("v_cndmask_b32", f"v{4 + r}", 0, "v13", "vcc")

for b in range(2):
    for k in range(4):
        unpack(f"v{32 + 8 * b + 2 * k}", f"v{33 + 8 * b + 2 * k}", f"v{24 + 4 * b + k}")
for b in range(2):
    base = 32 + 8 * b
    g("v_add_f32", f"v{8 + b}", f"v{base}", f"v{base + 1}")
    g("v_add_f32", f"v{10 + b}", f"v{base + 2}", f"v{base + 3}")
    g("v_add_f32", f"v{12 + b}", f"v{base + 4}", f"v{base + 5}")
    g("v_add_f32", f"v{14 + b}", f"v{base + 6}", f"v{base + 7}")
for b in range(2):
    g("v_add_f32", f"v{8 + b}", f"v{8 + b}", f"v{10 + b}")
    g("v_add_f32", f"v{12 + b}", f"v{12 + b}", f"v{14 + b}")
for b in range(2):
    g("v_add_f32", f"v{8 + b}", f"v{8 + b}", f"v{12 + b}")
wave_reduce("v_add_f32", ["v8", "v9"])
g("v_readlane_b32", "s7", "v8", 63)
g("v_readlane_b32", "s8", "v9", 63)
pump(1)
g("s_cmp_lg_u32", S_WAVE, 1)
g("s_cbranch_scc1", "L_nn1")
st_skip = g.save()
g("buffer_load_dwordx2", "v[22:23]", "v20", SRD_DBG, 0, mods="offen sc1")
g.label("L_nn1")
g.merge(st_skip)
g("v_mov_b32", "v12", "0x3b000000")
g("v_mul_f32", "v16", "s7", "v12")
g("v_mul_f32", "v17", "s8", "v12")
for b in range(2):
    for k in range(8):
        g("v_sub_f32", f"v{32 + 8 * b + k}", f"v{32 + 8 * b + k}", f"v{16 + b}")
for b in range(2):
    g("v_mul_f32", f"v{8 + b}", f"v{32 + 8 * b}", f"v{32 + 8 * b}")
for k in range(1, 8):
    for b in range(2):
        g("v_fmac_f32", f"v{8 + b}", f"v{32 + 8 * b + k}", f"v{32 + 8 * b + k}")
wave_reduce("v_add_f32", ["v8", "v9"])
g("v_readlane_b32", "s7", "v8", 63)
g("v_readlane_b32", "s8", "v9", 63)
pump(1)
g("v_mul_f32", "v18", "s7", "v12")
g("v_mul_f32", "v19", "s8", "v12")
g("s_mov_b32", "s8", "0xff00ff00")
g("s_mov_b32", "s9", "0xff00ff00")
g("v_cndmask_b32", "v13", "v16", "v17", "s[8:9]")
g("v_cndmask_b32", "v14", "v18", "v19", "s[8:9]")
bf16r2("v13", "v14", "v15")
g("v_add_f32", "v14", "0x3727c5ac", "v14")
bf16r("v14", "v14")
g("v_sqrt_f32", "v14", "v14")
bf16r("v14", "v14")
g("v_rcp_f32", "v14", "v14")
g("v_lshlrev_b32", "v3", 16, "v3")
g("v_sub_f32", "v3", "v3", "v13")
bf16r("v3", "v3")
g("v_mul_f32", "v3", "v3", "v14")
g("v_cvt_pk_bf16_f32", "v16", "v3", "v3")
bmask_mfma("v[12:15]", "v[60:63]", "v16", True)
g("v_lshrrev_b32", "v16", 4, "v0")
g("v_and_b32", "v17", 7, "v0")
g("v_lshl_add_u32", "v16", "v16", 5, "v17")
g("v_bfe_u32", "v17", "v0", 3, 1)
g("v_lshl_add_u32", "v16", "v17", 7, "v16")
g("v_mul_u32_u24", "v16", PSTR, "v16")
g("s_lshl_b32", "s7", S_WAVE, 2)
g("v_add_u32", "v16", "s7", "v16")
for r in range(4):
    g("ds_write_b32", "v16", f"v{12 + r}", mods=f"offset:{L_PART + r * 8 * PSTR}")
pump(until=CFG["b1pos"])
pump(CFG["qx"], pace=False)
g("s_cmp_lg_u32", S_WAVE, 1)
g("s_cbranch_scc1", "L_clrok")
st_skip = g.save()
pend_clear = [v[0] for k, v in g.vm.items() if k in uids_before_clear_end]
if pend_clear:
    g.wait(vm=min(pend_clear))
g("v_cmp_ne_u32", "vcc", 0, "v23")
g("s_cmp_lg_u64", "vcc", 0)
g("s_cbranch_scc1", "L_nonceok")
st_ok = g.save()
g("s_mov_b32", S_IT, 0)
g.label("L_noncespin")
g("v_mov_b32", "v20", 0)
g("buffer_load_dwordx2", "v[22:23]", "v20", SRD_DBG, 0, mods="offen sc1")
g.wait(vm=0)
g("v_cmp_ne_u32", "vcc", 0, "v23")
g("s_cmp_lg_u64", "vcc", 0)
g("s_cbranch_scc1", "L_nonceok")
g("s_add_u32", S_IT, S_IT, 1)
g("s_cmp_lt_u32", S_IT, CFG["spin_limit"])
g("s_sleep", CFG["fspin"])
g("s_cbranch_scc1", "L_noncespin")
g.label("L_nonceok")
g.merge(st_ok)
g("v_mov_b32", "v20", 0)
g("s_mov_b64", "exec", 1)
g("ds_write_b64", "v20", "v[22:23]", mods=f"offset:{L_NONCE}")
g("s_mov_b64", "exec", -1)
g.label("L_clrok")
g.merge(st_skip)
g.wait(lgkm=0)
if not CFG["nob1"]:
    g("s_barrier")
g("v_mov_b32", "v20", 0)
g("ds_read_b64", "v[22:23]", "v20", mods=f"offset:{L_NONCE}")
g("v_readfirstlane_b32", N_LO, "v22")
g("v_readfirstlane_b32", N_HI, "v23")
g("s_cmp_lg_u32", S_WAVE, 2)
g("s_cbranch_scc1", "L_nopub")
st_skip = g.save()
g("v_mul_u32_u24", "v16", 4 * PSTR, "v0")
for half in range(2):
    for oo in range(2):
        for k in range(4):
            g("ds_read_b128", vr(32 + 16 * oo + 4 * k), "v16",
              mods=f"offset:{L_PART + (2 * half + oo) * PSTR + 16 * k}")
    for oo in range(2):
        tree_sum([f"v{32 + 16 * oo + k}" for k in range(16)])
        g("v_mov_b32", f"v{8 + 4 * half + oo}", f"v{32 + 16 * oo}")
    g("v_mov_b32", f"v{10 + 4 * half}", "v22")
    g("v_mov_b32", f"v{11 + 4 * half}", "v23")
g("s_lshl_b32", "s7", S_H, 14)
g("s_lshl_b32", "s8", S_B, 13)
g("s_add_u32", "s7", "s7", "s8")
g("s_lshl_b32", "s8", S_SPL, 11)
g("s_add_u32", "s7", "s7", "s8")
g("s_add_u32", "s7", "s7", hex(WS_QP))
g("buffer_store_dwordx4", "v[8:11]", "v1", SRD_WS, "s7", mods="offen sc1")
g("buffer_store_dwordx4", "v[12:15]", "v1", SRD_WS, "s7", mods="offen offset:1024 sc1")
g.label("L_nopub")
g.merge(st_skip)

pump(until=CFG["drypos"])
SEGS = ["A", "B", "C", "D", "E", "F", "H", "I", "J"]
if CFG["dry2"]:
    SEGS = SEGS + ["K0", "K2", "SM", "V0", "V9", "V12"]
if CFG["dry"]:
    pump(1, pace=False)
    g.flush_hazards()
    g("s_mov_b64", LIVE, 0)
    g("s_mov_b64", "exec", 0)
    for n, sg in enumerate(SEGS):
        g("s_cmp_eq_u32", S_WAVE, (n + 4) % 16 if n != 14 else 2)
        g("s_cbranch_scc1", f"L_seg{sg}")
    g.label("L_dryret")
    g("s_mov_b64", LIVE, -1)
    g("s_mov_b64", "exec", -1)
    g.wait(lgkm=0)
    g.nop(10)

GW = 3 if not CFG["nob2"] else 99


def q_loads():
    g("s_lshl_b32", "s7", S_H, 14)
    g("s_lshl_b32", "s8", S_B, 9)
    g("s_add_u32", "s7", "s7", "s8")
    g("s_add_u32", "s7", "s7", hex(WS_QP))
    for u in range(4):
        for part in range(2):
            g("buffer_load_dwordx4", vr(32 + 8 * u + 4 * part), "v12", SRD_WS, "s7",
              mods=f"offen offset:{part * 1024} sc1" if part else "offen sc1")
        if u < 3:
            g("s_add_u32", "s7", "s7", 4096)


def q_check():
    for k in range(8):
        g("v_xor_b32", f"v{16 + k}", N_LO, f"v{34 + 4 * k}")
        g("v_xor_b32", f"v{24 + k}", N_HI, f"v{35 + 4 * k}")
    for k in range(0, 16, 4):
        g("v_or3_b32", f"v{16 + k}", f"v{16 + k}", f"v{17 + k}", f"v{18 + k}")
    for k in range(0, 16, 4):
        g("v_or_b32", f"v{16 + k}", f"v{16 + k}", f"v{19 + k}")
    g("v_or3_b32", "v16", "v16", "v20", "v24")
    g("v_or_b32", "v16", "v16", "v28")
    g("v_cmp_ne_u32", "vcc", 0, "v16")
    g("s_cmp_eq_u64", "vcc", 0)


pump(until=CFG["gpos"])
g("s_cmp_lg_u32", S_WAVE, GW)
g("s_cbranch_scc1", "L_g1")
st_skip = g.save()
g("v_lshrrev_b32", "v12", 5, "v0")
g("v_and_b32", "v13", 31, "v0")
g("v_lshlrev_b32", "v13", 4, "v13")
g("v_lshl_add_u32", "v12", "v12", 11, "v13")
q_loads()
g.label("L_g1")
g.merge(st_skip)
pump(CFG["gdly"])
g("s_cmp_lg_u32", S_WAVE, GW)
g("s_cbranch_scc1", "L_nogather")
st_skip = g.save()
q_check()
g("s_cbranch_scc1", "L_qok")
st_ok = g.save()
g("s_mov_b32", S_IT, 0)
g.label("L_qspin")
q_loads()
g.wait(vm=0)
q_check()
g("s_cbranch_scc1", "L_qok")
g("s_add_u32", S_IT, S_IT, 1)
g("s_cmp_lt_u32", S_IT, CFG["spin_limit"])
g("s_sleep", CFG["fspin"])
g("s_cbranch_scc1", "L_qspin")
g.label("L_qok")
g.merge(st_ok)
CI = [0, 1, 4, 5]
for r in range(4):
    g("v_add_f32", f"v{16 + r}", f"v{32 + CI[r]}", f"v{40 + CI[r]}")
    g("v_add_f32", f"v{20 + r}", f"v{48 + CI[r]}", f"v{56 + CI[r]}")
for r in range(4):
    g("v_add_f32", f"v{16 + r}", f"v{16 + r}", f"v{20 + r}")
for r in range(4):
    g("v_mov_b32", f"v{20 + r}", f"v{16 + r}")
for r in range(4):
    g("v_permlane32_swap_b32", f"v{16 + r}", f"v{20 + r}")
for r in range(4):
    g("v_add_f32", f"v{16 + r}", f"v{16 + r}", f"v{20 + r}")
g("v_cvt_pk_bf16_f32", "v14", "v16", "v17")
g("v_cvt_pk_bf16_f32", "v15", "v18", "v19")
g("v_lshrrev_b32", "v13", 1, "v13")
g("ds_write_b64", "v13", "v[14:15]", mods=f"offset:{L_QB}")
g.label("L_nogather")
g.merge(st_skip)
freed.add("QDONE")
pump(until=CFG["qbar"])
pump(CFG["qx"], pace=False)
g.wait(lgkm=0)
if not CFG["nob2"]:
    g("s_barrier")
g("v_and_b32", "v12", 15, "v0")
g("v_lshlrev_b32", "v12", 4, "v12")
g("ds_read_b128", "v[8:11]", "v12", mods=f"offset:{L_QB}")
stamp(1)

g.dry_guard = bool(CFG["dry2"])
for G in range(4):
    if CFG["dry2"] and G in (0, 2):
        if G:
            seg_end()
        g.label(f"L_segK{G}")
    tgt = 4 * G + 3 + D
    nm = f"K{tgt}" if tgt < 16 else f"V{tgt - 16}"
    pump(until=nm)
    for step in range(4 if not CFG["nokc"] else 1):
        for u in range(4):
            i = 4 * G + u
            g("v_dot2_f32_bf16", f"v{16 + i}", f"v{64 + 4 * i + step}", f"v{8 + step}",
              "0" if step == 0 else f"v{16 + i}")
    for u in range(4):
        freed.add(f"K{4 * G + u}")
    pump(1)
    for sh in ((8, 4, 2, 1) if not CFG["nokc"] else ()):
        for u in range(4):
            i = 4 * G + u
            g("v_add_f32_dpp", f"v{16 + i}", f"v{16 + i}", f"v{16 + i}", mods=f"row_ror:{sh} {DPPF}")
    for u in (0, 2):
        i = 4 * G + u
        bf16r2(f"v{16 + i}", f"v{17 + i}", f"v{12 + u}")
    for u in range(4):
        i = 4 * G + u
        g("v_mul_f32", f"v{16 + i}", S_SCALE, f"v{16 + i}")
    for u in (0, 2):
        i = 4 * G + u
        bf16r2(f"v{16 + i}", f"v{17 + i}", f"v{12 + u}")

if CFG["dry2"]:
    seg_end()
    g.label("L_segSM")
pump(1)
g("v_max3_f32", "v12", "v16", "v17", "v18")
g("v_max3_f32", "v13", "v19", "v20", "v21")
g("v_max3_f32", "v14", "v22", "v23", "v24")
g("v_max3_f32", "v15", "v25", "v26", "v27")
g("v_max3_f32", "v12", "v12", "v28", "v29")
g("v_max3_f32", "v13", "v13", "v30", "v31")
g("v_max3_f32", "v12", "v12", "v13", "v14")
g("v_max_f32", "v12", "v12", "v15")
for k in range(4):
    g("v_readlane_b32", f"s{8 + k}", "v12", 16 * k)
g("v_mov_b32", "v12", "s8")
g("v_max_f32", "v12", "s9", "v12")
g("v_max_f32", "v12", "s10", "v12")
g("v_max_f32", "v12", "s11", "v12")
g("v_mul_f32", "v12", S_LOG2E, "v12")
for i in range(16):
    g("v_fma_f32", f"v{16 + i}", f"v{16 + i}", S_LOG2E, "-v12")
for i in range(16):
    g("v_exp_f32", f"v{16 + i}", f"v{16 + i}")
pump(1)
g("v_readfirstlane_b32", S_M, "v12")
g("v_add_f32", "v8", "v16", "v17")
g("v_add_f32", "v9", "v18", "v19")
g("v_add_f32", "v10", "v20", "v21")
g("v_add_f32", "v11", "v22", "v23")
g("v_add_f32", "v13", "v24", "v25")
g("v_add_f32", "v14", "v26", "v27")
g("v_add_f32", "v8", "v8", "v28")
g("v_add_f32", "v9", "v9", "v29")
g("v_add_f32", "v10", "v10", "v30")
g("v_add_f32", "v11", "v11", "v31")
tree_sum(["v8", "v9", "v10", "v11", "v13", "v14"])
for k in range(4):
    g("v_readlane_b32", f"s{8 + k}", "v8", 16 * k)
g("v_mov_b32", "v13", "s8")
g("v_add_f32", "v13", "s9", "v13")
g("v_add_f32", "v13", "s10", "v13")
g("v_add_f32", "v13", "s11", "v13")
g("s_lshl_b32", "s8", S_WAVE, 3)
g("v_mov_b32", "v8", "s8")
setexec(1)
g("ds_write_b64", "v8", "v[12:13]", mods=f"offset:{L_WST}")
setexec(-1)
for i in range(16):
    g("v_cvt_pk_bf16_f32", f"v{16 + i}", f"v{16 + i}", f"v{16 + i}")
stamp(2)


def factor():
    g("v_and_b32", "v3", 15, "v0")
    g("v_lshlrev_b32", "v3", 3, "v3")
    g("s_mov_b32", S_IT, 0)
    g.flush_hazards()
    g.label("L_stspin")
    g("ds_read_b64", "v[32:33]", "v3", mods=f"offset:{L_WST}")
    g.wait(lgkm=0)
    g("v_max_u32", "v34", "v32", "v33")
    g("v_cmp_eq_u32", "vcc", -1, "v34")
    g("s_add_u32", S_IT, S_IT, 1)
    g("s_cmp_eq_u64", "vcc", 0)
    g("s_cbranch_scc1", "L_stok")
    g("s_cmp_lt_u32", S_IT, CFG["spin_limit"])
    g("s_sleep", 1)
    g("s_cbranch_scc1", "L_stspin")
    g.label("L_stok")
    g("v_mov_b32", "v40", "v32")
    for sh in (8, 4, 2, 1):
        g("v_max_f32_dpp", "v40", "v40", "v40", mods=f"row_ror:{sh} {DPPF}")
    g("v_sub_f32", "v41", "v32", "v40")
    g("v_exp_f32", "v41", "v41")
    g("v_sub_f32", "v35", S_M, "v40")
    g("v_mul_f32", "v41", "v41", "v33")
    g("v_exp_f32", "v35", "v35")
    for sh in (8, 4, 2, 1):
        g("v_add_f32_dpp", "v41", "v41", "v41", mods=f"row_ror:{sh} {DPPF}")
    g("s_cmp_lg_u32", S_WAVE, 0)
    g("s_cbranch_scc1", "L_nostat")
    st_skip = g.save()
    g("v_mov_b32", "v42", N_LO)
    g("v_mov_b32", "v43", N_HI)
    g("s_lshl_b32", "s7", S_B, 7)
    g("s_lshl_b32", "s8", S_H, 2)
    g("s_add_u32", "s7", "s7", "s8")
    g("s_add_u32", "s7", "s7", S_SPL)
    g("s_lshl_b32", "s7", "s7", 4)
    g("v_mov_b32", "v34", 0)
    setexec(1)
    g("buffer_store_dwordx4", "v[40:43]", "v34", SRD_WS, "s7", mods="offen sc1")
    setexec(-1)
    g.label("L_nostat")
    g.merge(st_skip)
    g("v_lshrrev_b32", "v39", 4, "v0")
    g("v_bfe_u32", "v37", "v0", 2, 1)
    g("v_lshlrev_b32", "v36", 6, "v39")
    g("v_lshl_add_u32", "v36", "v37", 4, "v36")
    g("v_and_b32", "v37", 3, "v0")
    g("v_lshl_add_u32", "v36", "v37", 1, "v36")
    g("s_mul_i32", "s7", S_WAVE, APITCH)
    g("v_add_u32", "v36", "s7", "v36")
    g("v_and_b32", "v37", 15, "v0")
    g("v_mul_u32_u24", "v37", APITCH, "v37")
    g("v_lshl_add_u32", "v37", "v39", 4, "v37")
    g("v_and_b32", "v38", 7, "v0")
    g("v_lshlrev_b32", "v38", 4, "v38")
    g("v_bfe_u32", "v34", "v0", 4, 1)
    g("v_lshl_add_u32", "v38", "v34", 3, "v38")
    g("v_bfe_u32", "v34", "v0", 3, 1)
    g("v_lshl_add_u32", "v38", "v34", 2, "v38")
    g("s_lshl_b32", S_Y, S_B, 7)
    g("s_lshl_b32", "s8", S_H, 2)
    g("s_add_u32", S_Y, S_Y, "s8")
    g("s_add_u32", S_Y, S_Y, S_SPL)
    g("s_lshl_b32", S_Y, S_Y, 11)
    g("s_lshl_b32", "s8", S_WAVE, 7)
    g("s_add_u32", S_Y, S_Y, "s8")
    g("s_add_u32", S_Y, S_Y, hex(WS_Y))
    assert all(f"XO{k}" in issued for k in range(8))
    g("s_mov_b32", "s12", "0xffff0000")
    g("s_mov_b32", "s13", 0)
    g("s_mov_b32", "s14", "0x00ff00ff")
    g("s_mov_b32", "s15", "0x00ff00ff")


names = [e[0] for e in stream]
for i in range(16):
    if CFG["dry2"] and i in (0, 9, 12):
        seg_end()
        g.label(f"L_segV{i}")
    tgt = i + D
    while tgt < 16 and tgt + 1 < 16 + 8:
        nxt = tgt + 1
        if nxt < 16 and stream[names.index(f"V{nxt}")][3] >= nxt - i and stream[names.index(f"V{nxt}")][3] > D + CFG["DW"]:
            tgt = nxt
        else:
            break
    if tgt < 16:
        pump(until=f"V{tgt}")
    else:
        pump(100)
    bmask_mfma("v[12:15]", vr(vreg(i)), f"v{16 + i}", i == 0)
    freed.add(f"PV{i}")
    if i == CFG["word"]:
        assert all(f"XO{k}" in issued for k in range(8))
        assert not any(len(v[1]) == 0 and k in dma_uids for k, v in g.vm.items()), "wo DMA not known complete"
        g("v_lshrrev_b32", "v3", 2, "v0")
        g("v_mul_u32_u24", "v3", WPITCH, "v3")
        g("v_and_b32", "v8", 3, "v0")
        g("v_lshl_add_u32", "v3", "v8", 3, "v3")
        g("s_lshl_b32", "s7", S_WAVE, 6)
        g("v_add_u32", "v3", "s7", "v3")
        pump(CFG["qx"], pace=False)
        if not CFG["nob2"]:
            barrier()
        if CFG["dry2"]:
            g("s_cbranch_execz", "L_notr")
        for t in range(4):
            if t:
                g("v_add_u32", "v3", 32 * WPITCH, "v3")
            for nt in range(2):
                for hh in range(2):
                    g("ds_read_b64_tr_b16", vr(96 + 16 * nt + 4 * t + 2 * hh, 2), "v3",
                      mods=f"offset:{L_WO + hh * 16 * WPITCH + nt * 32}")
        if CFG["dry2"]:
            g.label("L_notr")
    if i == CFG["stuse"]:
        factor()
    if i == CFG["rchk"]:
        g("s_cmp_lt_u32", "s2", 224)
        g("s_cbranch_scc1", "L_norchk")
        st_skip = g.save()
        g("v_lshrrev_b32", "v52", 3, "v0")
        g("s_lshl_b32", "s7", S_WAVE, 3)
        g("v_add_u32", "v52", "s7", "v52")
        g("v_and_b32", "v53", 7, "v52")
        g("v_bfe_u32", "v54", "v52", 3, 2)
        g("v_lshl_add_u32", "v53", "v53", 2, "v54")
        g("v_lshrrev_b32", "v54", 5, "v52")
        g("v_lshl_add_u32", "v53", "v53", 2, "v54")
        g("v_lshlrev_b32", "v53", 4, "v53")
        g("v_lshlrev_b32", "v54", 4, "v52")
        g("s_lshr_b32", "s7", S_PI, 4)
        g("s_lshl_b32", "s7", "s7", 11)
        g("v_add_u32", "v54", "s7", "v54")
        g("buffer_load_dwordx4", "v[56:59]", "v53", SRD_WS, 0, mods="offen sc1")
        g("buffer_load_dwordx4", "v[60:63]", "v54", SRD_WS, 0, mods="offen sc1")
        g.label("L_norchk")
        g.merge(st_skip)
pump(100)
assert spos[0] == len(stream)
stamp(3)
if CFG["dry2"]:
    seg_end()

g.dry_guard = True
g.label("L_segA")
for r in range(4):
    g("v_mul_f32", f"v{12 + r}", f"v{12 + r}", "v35")
g("v_cvt_pk_bf16_f32", "v12", "v12", "v13")
g("v_cvt_pk_bf16_f32", "v14", "v14", "v15")
setexec("s[14:15]")
g("ds_write_b16", "v36", "v12", mods=f"offset:{L_PART + 0}")
g("ds_write_b16_d16_hi", "v36", "v12", mods=f"offset:{L_PART + 32}")
g("ds_write_b16", "v36", "v14", mods=f"offset:{L_PART + 8}")
g("ds_write_b16_d16_hi", "v36", "v14", mods=f"offset:{L_PART + 40}")
setexec(-1)
g.wait(lgkm=0)
barrier()
stamp(4)
for t in range(4):
    g("ds_read_b128", vr(64 + 4 * t), "v37", mods=f"offset:{L_PART + 64 * t}")
seg_end()
g.label("L_segB")
for t in range(4):
    for nt in range(2):
        Dn = "v[12:15]" if nt == 0 else "v[8:11]"
        g("v_mfma_f32_16x16x32_bf16", Dn, vr(64 + 4 * t), vr(96 + 16 * nt + 4 * t), "0" if t == 0 else Dn)
g("v_add_f32", "v12", "v12", "v13")
g("v_add_f32", "v14", "v14", "v15")
g("v_add_f32", "v8", "v8", "v9")
g("v_add_f32", "v10", "v10", "v11")
g("v_add_f32", "v12", "v12", "v14")
g("v_add_f32", "v8", "v8", "v10")
for op in ("v_permlane16_swap_b32", "v_permlane32_swap_b32"):
    g("v_mov_b32", "v13", "v12")
    g("v_mov_b32", "v9", "v8")
    g(op, "v12", "v13")
    g(op, "v8", "v9")
    g("v_add_f32", "v12", "v12", "v13")
    g("v_add_f32", "v8", "v8", "v9")
g("v_cndmask_b32", "v12", "v12", "v8", "s[12:13]")
g("s_mov_b32", "exec_hi", 0)
g("s_mov_b32", "exec_lo", f"s{LIVE[2:LIVE.index(':')]}")
g("buffer_store_dword", "v12", "v38", SRD_WS, S_Y, mods="offen sc1")
setexec(-1)
stamp(5)
seg_end()
st_y = g.save()
g("s_cmp_ge_u32", "s2", 224)
g("s_cbranch_scc1", "L_segH")
g("s_cmp_ge_u32", "s2", NFFN)
g("s_cbranch_scc1", "L_fin")
g("s_cmp_lt_u32", S_WAVE, 4)
g("s_cbranch_scc1", "L_fin")
g("s_cmp_gt_u32", S_WAVE, 8)
g("s_cbranch_scc1", "L_fin")
g("s_cmp_eq_u32", S_WAVE, 8)
g("s_cbranch_scc1", "L_segF")
st_stat = g.save()

g.label("L_segC")
TQ = T[12]
g("s_and_b32", TQ, S_WAVE, 3)
g("v_lshrrev_b32", "v18", 4, "v0")
g("v_and_b32", "v20", 1, "v0")
g("v_lshlrev_b32", "v20", 10, "v20")
g("v_lshl_add_u32", "v20", "v18", 4, "v20")
g("s_lshl_b32", T[8], TQ, 8)
g("v_add_u32", "v20", T[8], "v20")
g("v_and_b32", "v21", 3, "v0")
g("v_lshlrev_b32", "v21", 4, "v21")
g("v_bfe_u32", "v22", "v0", 2, 2)
g("v_lshl_add_u32", "v21", "v22", 2, "v21")
g("s_lshl_b32", T[8], TQ, 6)
g("v_add_u32", "v22", T[8], "v21")
g("s_lshl_b32", T[8], TQ, 7)
g("v_add_u32", "v21", T[8], "v21")
g("v_bfe_u32", "v23", "v0", 3, 1)
g("v_lshlrev_b32", "v28", 3, "v23")
g("v_lshlrev_b32", "v23", 6, "v23")
g("v_lshl_add_u32", "v23", "v18", 4, "v23")
g("v_lshlrev_b32", "v19", 4, "v18")
g("v_bfe_u32", "v29", "v0", 3, 1)
g("v_lshlrev_b32", "v29", 11, "v29")
g("v_lshl_add_u32", "v29", "v18", 7, "v29")
g("v_and_b32", "v30", 7, "v0")
g("v_lshl_add_u32", "v29", "v30", 4, "v29")
g("s_lshl_b32", T[11], "s2", 12)
g("s_lshl_b32", T[9], TQ, 9)
g("s_add_u32", T[11], T[11], T[9])
g("s_add_u32", T[11], T[11], hex(WS_F))
g("v_bfe_u32", "v31", "v0", 2, 2)
g("v_lshlrev_b32", "v31", 8, "v31")
g("v_lshl_add_u32", "v31", "v18", 6, "v31")
g("v_and_b32", "v17", 3, "v0")
g("v_lshl_add_u32", "v31", "v17", 3, "v31")
g("s_lshl_b32", T[8], TQ, 12)
g("v_add_u32", "v31", T[8], "v31")
for r in range(4):
    g("v_mov_b32", f"v{8 + r}", "0x3f803f80")
g("v_lshrrev_b32", "v16", 1, "v0")
g("s_movk_i32", T[8], 2752)
g("v_mul_lo_u32", "v16", "v16", T[8])
g("v_and_b32", "v17", 1, "v0")
g("v_lshl_add_u32", "v16", "v17", 4, "v16")
g("s_mul_i32", T[8], TQ, 128 * 2752)
g("s_lshl_b32", T[9], "s2", 5)
g("s_add_u32", T[8], T[8], T[9])
g("s_lshl_b32", T[9], TQ, 12)
g("s_add_u32", T[9], T[9], L_W1)
if CFG["zsleep"]:
    g("s_sleep", CFG["zsleep"])
for k in range(4):
    g("s_mov_b32", "m0", T[9])
    g("buffer_load_dwordx4", "v16", SRD_W1, T[8], mods="offen lds")
    if k < 3:
        g("s_add_u32", T[8], T[8], 32 * 2752)
        g("s_add_u32", T[9], T[9], 1024)
g("v_and_b32", "v17", 15, "v0")
g("v_lshlrev_b32", "v17", 4, "v17")
g("v_lshl_add_u32", "v17", "v18", 10, "v17")
g("s_lshl_b32", T[8], "s2", 14)
g("s_lshl_b32", T[9], TQ, 8)
g("s_add_u32", T[8], T[8], T[9])
for i in range(4):
    g("buffer_load_dwordx4", vr(48 + 4 * i), "v17", SRD_W2, T[8], mods="offen")
    if i < 3:
        g("s_add_u32", T[8], T[8], 4096)
g("v_lshlrev_b32", "v17", 1, "v18")
g("s_lshl_b32", T[8], "s2", 5)
for i in range(4):
    g("buffer_load_ushort", f"v{24 + i}", "v17", SRD_B1, T[8], mods=f"offen offset:{8 * i}" if i else "offen")
g.wait(vm=0)
g("s_cbranch_execz", "L_c3")
for tt in range(4):
    for hh in range(2):
        g("ds_read_b64_tr_b16", vr(64 + 4 * tt + 2 * hh, 2), "v31",
          mods=f"offset:{L_W1 + tt * 1024 + hh * 32}")
g.label("L_c3")
for tt in range(4):
    g("v_mfma_f32_16x16x32_bf16", "v[12:15]", "v[8:11]", vr(64 + 4 * tt), "0" if tt == 0 else "v[12:15]")
for i in range(4):
    g("v_lshlrev_b32", f"v{24 + i}", 16, f"v{24 + i}")
setexec("0xffff")
g("ds_write_b32", "v22", "v12", mods=f"offset:{L_CS}")
setexec(-1)
g.wait(lgkm=0)
seg_end()
g.label("L_segD")
barrier()
for tt in range(4):
    g("ds_read_b128", vr(32 + 4 * tt), "v20", mods=f"offset:{L_HN + tt * 64}")
for q in range(4):
    g("ds_read_b128", vr(80 + 4 * q), "v19", mods=f"offset:{L_CS + 64 * q}")
for tt in range(4):
    g("v_mfma_f32_16x16x32_bf16", "v[12:15]", vr(32 + 4 * tt), vr(64 + 4 * tt), "0" if tt == 0 else "v[12:15]")
for i in range(4):
    g("v_add_f32", f"v{80 + i}", f"v{80 + i}", f"v{84 + i}")
    g("v_add_f32", f"v{88 + i}", f"v{88 + i}", f"v{92 + i}")
for i in range(4):
    g("v_add_f32", f"v{80 + i}", f"v{80 + i}", f"v{88 + i}")
setexec("0xffff")
g("ds_write_b32", "v21", "v12", mods=f"offset:{L_ZP}")
g("ds_write_b32", "v21", "v13", mods=f"offset:{L_ZP + 64}")
setexec(-1)
K1 = -2.0 * 0.7978845608028654 * 1.4426950408889634
K3 = K1 * 0.044715
g("s_mov_b32", T[8], f32hex(K3))
g("v_mov_b32", "v31", f32hex(K1))
g.wait(lgkm=0)
barrier()
seg_end()
g.label("L_segE")
for q in range(4):
    g("ds_read_b128", vr(96 + 4 * q), "v23", mods=f"offset:{L_ZP + 128 * q}")
g("ds_read_b64", "v[112:113]", "v28", mods=f"offset:{L_STAT}")
for i in range(4):
    g("v_add_f32", f"v{96 + i}", f"v{96 + i}", f"v{100 + i}")
    g("v_add_f32", f"v{104 + i}", f"v{104 + i}", f"v{108 + i}")
Z = [f"v{96 + i}" for i in range(4)]
TT_ = [f"v{100 + i}" for i in range(4)]
for i in range(4):
    g("v_add_f32", Z[i], Z[i], f"v{104 + i}")
for i in range(4):
    g("v_fma_f32", Z[i], "-v112", f"v{80 + i}", Z[i])
for i in range(4):
    g("v_mul_f32", Z[i], Z[i], "v113")
bf16r2(Z[0], Z[1], TT_[0])
bf16r2(Z[2], Z[3], TT_[1])
for i in range(4):
    g("v_add_f32", Z[i], Z[i], f"v{24 + i}")
bf16r2(Z[0], Z[1], TT_[0])
bf16r2(Z[2], Z[3], TT_[1])
for i in range(4):
    g("v_mul_f32", TT_[i], Z[i], Z[i])
for i in range(4):
    g("v_fma_f32", TT_[i], TT_[i], T[8], "v31")
for i in range(4):
    g("v_mul_f32", TT_[i], TT_[i], Z[i])
for i in range(4):
    g("v_exp_f32", TT_[i], TT_[i])
for i in range(4):
    g("v_add_f32", TT_[i], 1.0, TT_[i])
for i in range(4):
    g("v_rcp_f32", TT_[i], TT_[i])
for i in range(4):
    g("v_mul_f32", Z[i], Z[i], TT_[i])
for i in range(4):
    g("v_cvt_pk_bf16_f32", Z[i], Z[i], Z[i])
for i in range(4):
    bmask_mfma("v[12:15]", vr(48 + 4 * i), Z[i], i == 0)
g("buffer_store_dwordx4", "v[12:15]", "v29", SRD_WS, T[11], mods="offen sc1")
stamp(8)
seg_end()
g("s_branch", "L_fin")

g.label("L_segF")
g.restore(st_stat)
g("s_mov_b32", T[8], hex(WS_H))
g("v_mov_b32", "v28", 0)
g("v_lshlrev_b32", "v29", 3, "v0")
g("v_and_b32", "v30", 31, "v0")
g("v_lshlrev_b32", "v30", 6, "v30")
g("s_movk_i32", T[9], (128 + 3) * 16)
poll_tag(32, "v30", T[9], full)
if CFG["rep"]:
    poll_one("v1", T[8], 1 << 21, imm=2048)
poll_gather([32, 36, 40, 44], ["v1"] * 4, T[8], [full] * 4, imm=[0, 1024, 2048, 3072], slp=CFG["hsleep"])
stamp(7)
for k in range(8):
    g("v_cvt_pk_bf16_f32", f"v{16 + k}", f"v{32 + 2 * k}", f"v{33 + 2 * k}")
for b in range(2):
    g("ds_write_b64", "v29", vr(16 + 4 * b, 2), mods=f"offset:{L_HN + b * 1024}")
    g("ds_write_b64", "v29", vr(18 + 4 * b, 2), mods=f"offset:{L_HN + b * 1024 + 512}")
for b in range(2):
    g("v_readlane_b32", T[b], f"v{32 + 8 * b}", 0)
g.wait(lgkm=0)
barrier()
for b in range(2):
    for k in range(8):
        g("v_subrev_f32", f"v{32 + 8 * b + k}", T[b], f"v{32 + 8 * b + k}")
for b in range(2):
    base = 32 + 8 * b
    s1, s2 = f"v{8 + 2 * b}", f"v{9 + 2 * b}"
    g("v_add_f32", s1, f"v{base}", f"v{base + 1}")
    g("v_mul_f32", s2, f"v{base}", f"v{base}")
    g("v_fmac_f32", s2, f"v{base + 1}", f"v{base + 1}")
for k in range(2, 8):
    for b in range(2):
        base = 32 + 8 * b
        s1, s2 = f"v{8 + 2 * b}", f"v{9 + 2 * b}"
        g("v_add_f32", s1, s1, f"v{base + k}")
        g("v_fmac_f32", s2, f"v{base + k}", f"v{base + k}")
wave_reduce("v_add_f32", ["v8", "v9", "v10", "v11"])
g("v_mov_b32", "v12", "0x3b000000")
MU = ["v8", "v10"]
VA = ["v9", "v11"]
for b in range(2):
    g("v_mul_f32", MU[b], MU[b], "v12")
    g("v_mul_f32", VA[b], VA[b], "v12")
for b in range(2):
    g("v_fma_f32", VA[b], f"-{MU[b]}", MU[b], VA[b])
    g("v_add_f32", MU[b], T[b], MU[b])
for b in range(2):
    g("v_max_f32", VA[b], 0, VA[b])
for b in range(2):
    bf16r2(MU[b], VA[b], f"v{13 + b}")
for b in range(2):
    g("v_add_f32", VA[b], "0x3727c5ac", VA[b])
for b in range(2):
    bf16r(VA[b], VA[b])
for b in range(2):
    g("v_sqrt_f32", VA[b], VA[b])
for b in range(2):
    bf16r(VA[b], VA[b])
for b in range(2):
    g("v_rcp_f32", VA[b], VA[b])
g("s_mov_b32", T[0], 0)
g("s_brev_b32", T[1], 1)
g("s_and_b64", "exec", LIVE, f"s[{T[0][1:]}:{T[1][1:]}]")
g("ds_write_b128", "v28", "v[8:11]", mods=f"offset:{L_STAT}")
setexec(-1)
g.wait(lgkm=0)
barrier()
seg_end()
g("s_branch", "L_fin")


def xlane_sum(base, tmp):
    for r in range(4):
        g("v_add_f32_dpp", f"v{base + r}", f"v{base + r}", f"v{base + r}", mods=f"row_ror:8 {DPPF}")
    for op in ("v_permlane16_swap_b32", "v_permlane32_swap_b32"):
        for r in range(4):
            g("v_mov_b32", f"v{tmp + r}", f"v{base + r}")
        for r in range(4):
            g(op, f"v{base + r}", f"v{tmp + r}")
        for r in range(4):
            g("v_add_f32", f"v{base + r}", f"v{base + r}", f"v{tmp + r}")


g.label("L_segH")
g.restore(st_y)
TB, TK, TX = T[10], T[11], T[12]
g("s_lshr_b32", TB, S_PI, 4)
g("s_and_b32", TK, S_PI, 15)
g("v_lshrrev_b32", "v18", 3, "v0")
g("v_and_b32", "v19", 7, "v0")
g("v_lshlrev_b32", "v19", 4, "v19")
g("v_lshl_add_u32", "v16", "v18", 11, "v19")
g("v_lshl_add_u32", "v17", "v18", 12, "v19")
g("s_lshl_b32", T[8], S_WAVE, 7)
g("v_add_u32", "v19", T[8], "v19")
g("v_and_b32", "v23", 31, "v0")
g("v_lshlrev_b32", "v25", 2, "v23")
g("v_lshrrev_b32", "v24", 5, "v0")
g("v_lshl_add_u32", "v24", "v24", 10, "v25")
g("v_and_b32", "v20", 3, "v23")
g("v_lshlrev_b32", "v20", 4, "v20")
g("v_lshrrev_b32", "v23", 2, "v23")
g("v_lshl_add_u32", "v20", "v23", 1, "v20")
g("s_lshl_b32", TX, TK, 6)
g("buffer_load_ushort", "v22", "v20", SRD_B2, TX, mods="offen")
g("s_lshl_b32", T[8], TB, 10)
g("s_add_u32", TX, TX, T[8])
g("buffer_load_ushort", "v21", "v20", SRD_X, TX, mods="offen")
g("s_lshl_b32", T[8], TB, 18)
g("s_lshl_b32", T[9], S_WAVE, 14)
g("s_add_u32", T[8], T[8], T[9])
g("s_lshl_b32", T[9], TK, 7)
g("s_add_u32", T[8], T[8], T[9])
g("s_add_u32", T[8], T[8], hex(WS_Y))
g("v_cmp_gt_u32", "vcc", NFFN, "v52")
g("s_mov_b32", T[9], 0)
g.wait_regs("v[56:63]")
st_pre = g.save()
poll_tag(56, "v53", T[9], "vcc", pre=True)
poll_tag(60, "v54", T[9], full, pre=True)
g.merge(st_pre)
g("v_mov_b32", "v44", "v60")
g("v_mov_b32", "v45", "v61")
g("v_mov_b32", "v46", "v44")
g("v_max_f32_dpp", "v46", "v46", "v46", mods=f"row_ror:8 {DPPF}")
g("v_mov_b32", "v47", "v46")
g("v_permlane16_swap_b32", "v46", "v47")
g("v_max_f32", "v46", "v46", "v47")
g("v_sub_f32", "v44", "v44", "v46")
g("v_exp_f32", "v44", "v44")
g("v_mul_f32", "v45", "v45", "v44")
g("v_add_f32_dpp", "v45", "v45", "v45", mods=f"row_ror:8 {DPPF}")
g("v_mov_b32", "v47", "v45")
g("v_permlane16_swap_b32", "v45", "v47")
g("v_add_f32", "v45", "v45", "v47")
g("v_rcp_f32", "v45", "v45")
g("v_mul_f32", "v44", "v44", "v45")
poll_gather([32], ["v16"], T[8], [full], slp=CFG["ysleep"])
for r in range(4):
    g("v_mul_f32", f"v{32 + r}", f"v{32 + r}", "v44")
xlane_sum(32, 36)
setexec("0xff")
g("ds_write_b128", "v19", "v[32:35]", mods=f"offset:{L_RED}")
setexec(-1)
for r in range(4):
    g("v_mov_b32", f"v{40 + r}", 0)
g("s_lshl_b32", T[8], S_WAVE, 15)
g("s_lshl_b32", T[9], S_PI, 7)
g("s_add_u32", T[8], T[8], T[9])
g("s_add_u32", T[8], T[8], hex(WS_F))
g.wait(lgkm=0)
barrier()
seg_end()
g("s_cmp_gt_u32", S_WAVE, 10)
g("s_cbranch_scc1", "L_fin")
g("s_cmp_lg_u32", S_WAVE, 0)
g("s_cbranch_scc1", "L_segJ")
st_j = g.save()
g.label("L_segI")
stamp(6)
for k in range(8):
    g("ds_read_b32", f"v{32 + k}", "v24", mods=f"offset:{L_RED + 128 * k}")
g("v_lshlrev_b32", "v21", 16, "v21")
g("v_lshlrev_b32", "v22", 16, "v22")
g("s_lshl_b32", T[9], S_PI, 7)
g("s_add_u32", T[9], T[9], hex(WS_H))
tree_sum([f"v{32 + k}" for k in range(8)])
g("v_mov_b32", "v33", "v32")
g("v_permlane32_swap_b32", "v32", "v33")
g("v_add_f32", "v32", "v32", "v33")
bf16r("v32", "v32")
g("v_add_f32", "v26", "v32", "v21")
bf16r("v26", "v26")
setexec("0xffffffff")
g("buffer_store_dword", "v26", "v25", SRD_WS, T[9], mods="offen sc1")
setexec(-1)
seg_end()
g.label("L_segJ")
g.merge(st_j)
g("s_lshl_b32", T[9], S_WAVE, 3)
g("v_add_u32", "v27", T[9], "v18")
g("v_cmp_gt_u32", "vcc", NFFN, "v27")
poll_gather([40], ["v17"], T[8], ["vcc"], slp=CFG["fsleep"])
xlane_sum(40, 36)
setexec("0xff")
g("ds_write_b128", "v19", "v[40:43]", mods=f"offset:{L_RED + 2048}")
setexec(-1)
g.wait(lgkm=0)
barrier()
g("s_cbranch_execz", "L_j2")
g("s_cmp_lg_u32", S_WAVE, 0)
g("s_cbranch_scc1", "L_fin")
g.label("L_j2")
g("v_lshrrev_b32", "v27", 5, "v0")
g("v_mul_u32_u24", "v27", 768, "v27")
g("v_add_u32", "v27", "v27", "v25")
for k in range(6):
    g("ds_read_b32", f"v{32 + k}", "v27", mods=f"offset:{L_RED + 2048 + 128 * k}")
g("s_mov_b32", T[0], -1)
g("s_mov_b32", T[1], 0)
g("v_cndmask_b32", "v37", 0, "v37", f"s[{T[0][1:]}:{T[1][1:]}]")
tree_sum([f"v{32 + k}" for k in range(6)])
g("v_mov_b32", "v33", "v32")
g("v_permlane32_swap_b32", "v32", "v33")
g("v_add_f32", "v32", "v32", "v33")
bf16r("v32", "v32")
g("v_add_f32", "v32", "v32", "v22")
bf16r("v32", "v32")
g("v_add_f32", "v32", "v32", "v26")
g("v_cvt_pk_bf16_f32", "v32", "v32", "v32")
setexec("0xffffffff")
g("buffer_store_short", "v32", "v20", SRD_OUT, TX, mods="offen")
setexec(-1)
stamp(9)
seg_end()
g.dry_guard = False

g.label("L_fin")
if CFG["diag"]:
    g.nop(8)
    g.wait(vm=0, lgkm=0)
    diag_store()
g.label("L_end")
g("s_endpgm")
if not CFG["dry"]:
    g.label("L_dryret")
    g("s_endpgm")

hdr = open("cdna_kernels/" + NAME + ".s.ref").read().split("\n")
head = []
for line in hdr:
    if line.startswith("; @launch"):
        head.append(f"; @launch grid=(256,1,1) block=(1024,1,1) lds={LDS_BYTES}")
    elif line.startswith(";"):
        head.append(line)
    else:
        break
src = "\n".join(head) + "\n"
src += f""".amdgcn_target "amdgcn-amd-amdhsa--gfx950"
.text
.globl {NAME}_kernel
.p2align 8
.type {NAME}_kernel,@function
{NAME}_kernel:
"""
src += g.text()
src += f""".section .rodata,"a"
.p2align 6
.amdhsa_kernel {NAME}_kernel
  .amdhsa_next_free_vgpr 128
  .amdhsa_next_free_sgpr 102
  .amdhsa_accum_offset 128
  .amdhsa_group_segment_fixed_size 0
  .amdhsa_kernarg_size 104
  .amdhsa_user_sgpr_count 2
  .amdhsa_user_sgpr_kernarg_segment_ptr 1
  .amdhsa_system_sgpr_workgroup_id_x 1
.end_amdhsa_kernel
"""
open(sys.argv[1], "w").write(src)
print("instructions:", g.ninstr)
```

```python
import sys
import struct
from asmgen import Gen

NAME = "sequential_preLN__mha_block_cached__dense_activation_gelu__decode"

CFG = dict(
    kv_mods="nt", w_mods="nt", diag=0, spin_limit=200000,
    D=2,
    DW=0,
    wo0=5,
    stpos=9,
    stuse=10,
    rchk=14,
    b1pos="K4",
    drypos="K8",
    gpos="K12",
    qbar="K15",
    qx=1,
    dry=1,
    hsh=7,
    prio=0,
    sleep=0,
    sleep1=0,
    athr=6,
    asleep=1,
    rep=1,
    d0=2,
    dq=0,
    dry2=1,
    wopos="3,6,9,12,15,18,21,24",
    word=13,
    fspin=2,
    pdly=2,
    gdly=3,
    nob1=0,
    nob2=0,
    noclr=0,
    nost=0,
    nowo=0,
    nokc=0,
    nend=0,
    dend=4,
    zsleep=0,
    hsleep=1,
    ysleep=1,
    fsleep=1,
)
for a in sys.argv[2:]:
    k, v = a.split("=", 1)
    if isinstance(CFG[k], int):
        v = int(v)
    CFG[k] = v

NFFN = 86
WS_ST = 0x0
WS_H = 0x8000
WS_Y = 0x10000
WS_F = 0x100000
WS_QP = 0x180000
WS_HR = 0x1d0000
WS_DIAG = 0x200000
WS_SIZE = 0x400000
NONCE = "s[40:41]"
N_LO, N_HI = "s40", "s41"
PSTR = 80
APITCH = 272
L_RED = 8192
L_PART = 0
L_QB = 20480
L_YP = 20736
L_ZP = 20736
L_CS = 21248
L_STAT = 21504
L_HN = 23552 + 16384
L_WST = 21536
L_NONCE = 21520
WPITCH = 1056
L_WO = 22528
L_W1 = 23552
LDS_BYTES = 22528 + 128 * 1056

S_WAVE, S_H, S_B, S_SPL = "s3", "s4", "s5", "s6"
SRD_K, SRD_V, SRD_WQ, SRD_WO = "s[44:47]", "s[48:51]", "s[52:55]", "s[56:59]"
SRD_X, SRD_WS, SRD_DBG, SRD_W1 = "s[60:63]", "s[64:67]", "s[68:71]", "s[72:75]"
SRD_W2, SRD_B1, SRD_B2, SRD_OUT = "s[76:79]", "s[80:83]", "s[84:87]", "s[88:91]"
S_KV, S_T, S_WO, S_M, S_BH, S_PI = "s92", "s93", "s94", "s95", "s96", "s97"
LIVE = "s[98:99]"
S_LOG2E, S_SCALE = "s42", "s43"
T = [f"s{16 + i}" for i in range(14)]
S_IT = "s29"
S_Y = "s27"
STAMP0 = 30
DPPF = "row_mask:0xf bank_mask:0xf"
full = (1 << 64) - 1


def vr(a, n=4):
    return f"v[{a}:{a + n - 1}]"


def f32hex(x):
    return "0x%08x" % struct.unpack("<I", struct.pack("<f", x))[0]


g = Gen()


def stamp(slot):
    if not CFG["diag"]:
        return
    lab = None
    if g.dry_guard:
        lab = g.newlabel("Lst")
        g("s_cbranch_execz", lab)
    g("s_memrealtime", "s[100:101]")
    g.wait(lgkm=0)
    g("s_mov_b32", f"s{STAMP0 + slot}", "s100")
    if lab:
        g.label(lab)


def srd(dst_base, ptr_lo, nbytes):
    g("s_mov_b32", f"s{dst_base}", f"s{ptr_lo}")
    g("s_and_b32", f"s{dst_base + 1}", f"s{ptr_lo + 1}", "0xffff")
    g("s_mov_b32", f"s{dst_base + 2}", hex(nbytes))
    g("s_mov_b32", f"s{dst_base + 3}", "0x00020000")


def setexec(m):
    if g.dry_guard:
        if m == -1:
            g("s_mov_b64", "exec", LIVE)
        else:
            g("s_and_b64", "exec", LIVE, m)
    else:
        g("s_mov_b64", "exec", m)


def barrier():
    if g.dry_guard:
        lab = g.newlabel("Lb")
        g("s_cbranch_execz", lab)
        g("s_barrier")
        g.label(lab)
    else:
        g("s_barrier")


def seg_end():
    g("s_cbranch_execz", "L_dryret")


def wave_reduce(op, regs):
    for sh in (8, 4, 2, 1):
        for r in regs:
            g(op + "_dpp", r, r, r, mods=f"row_ror:{sh} {DPPF}")
    for r in regs:
        g(op + "_dpp", r, r, r, mods="row_bcast:15 row_mask:0xa bank_mask:0xf")
    for r in regs:
        g(op + "_dpp", r, r, r, mods="row_bcast:31 row_mask:0xc bank_mask:0xf")


def bf16r(dst, src, tmp=None):
    t = tmp or dst
    g("v_cvt_pk_bf16_f32", t, src, src)
    g("v_and_b32", dst, "0xffff0000", t)


def bf16r2(a, b, tmp):
    g("v_cvt_pk_bf16_f32", tmp, a, b)
    g("v_lshlrev_b32", a, 16, tmp)
    g("v_and_b32", b, "0xffff0000", tmp)


def unpack(dlo, dhi, src):
    g("v_lshlrev_b32", dlo, 16, src)
    g("v_and_b32", dhi, "0xffff0000", src)


def tree_sum(regs, op="v_add_f32"):
    regs = list(regs)
    while len(regs) > 1:
        nxt = []
        for i in range(0, len(regs) - 1, 2):
            g(op, regs[i], regs[i], regs[i + 1])
            nxt.append(regs[i])
        if len(regs) % 2:
            nxt.append(regs[-1])
        regs = nxt
    return regs[0]


def bmask_mfma(D, A, val, first, bcast=None):
    for r in range(4):
        if bcast is None:
            g("v_and_b32", f"v{8 + r}", val, f"v{4 + r}")
        else:
            g("v_and_b32_dpp", f"v{8 + r}", val, f"v{4 + r}", mods=f"row_newbcast:{bcast} {DPPF}")
    g("v_mfma_f32_16x16x32_bf16", D, A, "v[8:11]", "0" if first else D)


def poll_one(voff, soff, lane_mask, imm=0):
    g("s_and_b64", "exec", LIVE, hex(lane_mask))
    g("s_mov_b32", S_IT, 0)
    g.flush_hazards()
    L = g.newlabel("Lp1")
    Ld = g.newlabel("Lp1done")
    g("s_cbranch_execz", Ld)
    g.label(L)
    g("buffer_load_dword", "v31", voff, SRD_WS, soff, mods=(f"offen offset:{imm + 12} sc1"))
    sv = g.dry_guard
    g.dry_guard = False
    g.wait(vm=0)
    g.dry_guard = sv
    g("v_cmp_eq_u32", "vcc", -1, "v31")
    g("s_add_u32", S_IT, S_IT, 1)
    g("s_cmp_eq_u64", "vcc", 0)
    g("s_cbranch_scc1", Ld)
    g("s_cmp_lt_u32", S_IT, CFG["spin_limit"])
    if CFG["sleep1"]:
        g("s_sleep", CFG["sleep1"])
    g("s_cbranch_scc1", L)
    g.label(Ld)
    g("s_mov_b64", "exec", LIVE)


def poll_gather(dsts, voffs, soff, masks, imm=None, adaptive=False, slp=None):
    pend = [f"s[{16 + 2 * k}:{17 + 2 * k}]" for k in range(len(dsts))]
    for k, m in enumerate(masks):
        if m == full:
            g("s_mov_b64", pend[k], LIVE)
        elif isinstance(m, str):
            g("s_and_b64", pend[k], LIVE, m)
        else:
            assert m < (1 << 31)
            g("s_and_b64", pend[k], LIVE, hex(m))
    g("s_mov_b32", S_IT, 0)
    g.flush_hazards()
    L = g.newlabel("Lpoll")
    Ld = g.newlabel("Lpolldone")
    g.label(L)
    for k, d in enumerate(dsts):
        g("s_mov_b64", "exec", pend[k])
        mods = "offen sc1"
        if imm and imm[k]:
            mods = f"offen offset:{imm[k]} sc1"
        g("buffer_load_dwordx4", vr(d), voffs[k], SRD_WS, soff, mods=mods)
    g("s_mov_b64", "exec", LIVE)
    g.wait(vm=0)
    for k, d in enumerate(dsts):
        g("s_mov_b64", "exec", pend[k])
        g("v_max3_u32", "v31", f"v{d}", f"v{d + 1}", f"v{d + 2}")
        g("v_max_u32", "v31", "v31", f"v{d + 3}")
        g("v_cmp_eq_u32", pend[k], -1, "v31")
    if len(dsts) == 1:
        g("s_or_b64", "s[100:101]", pend[0], pend[0])
    else:
        g("s_or_b64", "s[100:101]", pend[0], pend[1])
        for k in range(2, len(dsts)):
            g("s_or_b64", "s[100:101]", "s[100:101]", pend[k])
    g("s_cbranch_scc0", Ld)
    g("s_add_u32", S_IT, S_IT, 1)
    g("s_cmp_lt_u32", S_IT, CFG["spin_limit"])
    g("s_cbranch_scc0", Ld)
    if adaptive:
        g("s_bcnt1_i32_b64", "s100", "s[100:101]")
        g("s_cmp_le_u32", "s100", CFG["athr"])
        g.flush_hazards()
        g("s_cbranch_scc1", L)
        g("s_sleep", CFG["asleep"])
    elif slp:
        g("s_sleep", slp)
    g.flush_hazards()
    g("s_branch", L)
    g.label(Ld)
    g("s_mov_b64", "exec", LIVE)
    g.flush_hazards()


def poll_tag(dst, voff, soff, mask, pre=False):
    pend = "s[16:17]"
    if mask == full:
        g("s_mov_b64", pend, LIVE)
    else:
        g("s_and_b64", pend, LIVE, mask)
    g("s_mov_b32", S_IT, 0)
    g.flush_hazards()
    L = g.newlabel("Lpt")
    Ld = g.newlabel("Lptdone")
    Lc = g.newlabel("Lptchk")
    if pre:
        g("s_branch", Lc)
    g.label(L)
    g("s_mov_b64", "exec", pend)
    g("buffer_load_dwordx4", vr(dst), voff, SRD_WS, soff, mods="offen sc1")
    g("s_mov_b64", "exec", LIVE)
    g.wait(vm=0)
    g.label(Lc)
    g("s_mov_b64", "exec", pend)
    g("v_cmp_ne_u64", pend, NONCE, vr(dst + 2, 2))
    g("s_or_b64", "s[100:101]", pend, pend)
    g("s_cbranch_scc0", Ld)
    g("s_add_u32", S_IT, S_IT, 1)
    g("s_cmp_lt_u32", S_IT, CFG["spin_limit"])
    g("s_cbranch_scc0", Ld)
    g("s_sleep", 2)
    g.flush_hazards()
    g("s_branch", L)
    g.label(Ld)
    g("s_mov_b64", "exec", LIVE)
    g.flush_hazards()


def diag_store():
    if CFG["diag"] == 2:
        lab = g.newlabel("Ldd")
        g("s_cmp_lg_u32", S_WAVE, 0)
        g("s_cbranch_scc1", lab)
        g("s_cmp_eq_u32", "s2", 255)
        g("s_cselect_b32", "s7", 8, 0)
        g("s_cmp_eq_u32", "s2", 5)
        g("s_cselect_b32", "s7", 36, "s7")
        g("s_cmp_eq_u32", "s7", 0)
        g("s_cbranch_scc1", lab)
        g("v_mov_b32", "v30", 0)
        for n, i in enumerate((0, 1, 2, 3, 5, 6, 9)):
            g("s_sub_u32", "s8", f"s{STAMP0 + i}", N_LO)
            g("v_writelane_b32", "v30", "s8", n)
        g("v_lshlrev_b32", "v29", 2, "v0")
        g("s_mov_b64", "exec", "0x7f")
        g("buffer_store_dword", "v30", "v29", SRD_DBG, "s7", mods="offen")
        g.label(lab)
        return
    g("v_mov_b32", "v30", 0)
    for i in range(10):
        g("v_writelane_b32", "v30", f"s{STAMP0 + i}", i)
    g("s_lshl_b32", "s7", "s2", 4)
    g("s_add_u32", "s7", "s7", S_WAVE)
    g("s_lshl_b32", "s7", "s7", 6)
    g("s_add_u32", "s7", "s7", hex(WS_DIAG))
    g("v_lshlrev_b32", "v29", 2, "v0")
    g("s_mov_b64", "exec", "0xffff")
    g("buffer_store_dword", "v30", "v29", SRD_WS, "s7", mods="offen")


g("s_cmp_ge_u32", "s2", 256)
g("s_cbranch_scc1", "L_end")
g("s_load_dwordx16", "s[16:31]", "s[0:1]", 0)
g("s_load_dwordx8", "s[32:39]", "s[0:1]", 64)
g("s_load_dwordx2", "s[40:41]", "s[0:1]", 96)
g("v_readfirstlane_b32", S_WAVE, "v0")
g("v_and_b32", "v0", 63, "v0")
g("s_and_b32", "s7", "s2", 7)
g("s_lshr_b32", "s8", "s2", 3)
g("s_and_b32", "s9", "s8", 3)
g("s_lshl_b32", S_H, "s7", 2)
g("s_add_u32", S_H, S_H, "s9")
g("s_mov_b32", S_PI, S_H)
g("s_lshr_b32", "s13", "s8", 2)
g("s_lshr_b32", S_B, "s13", 2)
g("s_and_b32", S_SPL, "s13", 3)
g("s_lshr_b32", S_WAVE, S_WAVE, 6)
g("v_lshlrev_b32", "v1", 4, "v0")
g("v_lshrrev_b32", "v3", 4, "v0")
g("v_and_b32", "v2", 15, "v0")
g("v_lshlrev_b32", "v2", 4, "v2")
g("v_lshl_add_u32", "v2", "v3", 13, "v2")
g("v_lshlrev_b32", "v3", 1, "v3")
g("v_bfe_u32", "v8", "v0", 3, 1)
g("v_lshl_add_u32", "v3", "v8", 10, "v3")
g("s_lshl_b32", S_BH, S_B, 5)
g("s_add_u32", S_BH, S_BH, S_H)
g("s_lshl_b32", S_KV, S_BH, 20)
g("s_lshl_b32", "s7", S_SPL, 18)
g("s_add_u32", S_KV, S_KV, "s7")
g("s_lshl_b32", "s7", S_WAVE, 10)
g("s_add_u32", S_KV, S_KV, "s7")
g("s_lshl_b32", "s11", "s13", 4)
g("s_add_u32", "s11", "s11", S_WAVE)
g("s_lshl_b32", "s12", "s11", 15)
g("s_lshl_b32", "s7", S_H, 8)
g("s_add_u32", "s12", "s12", "s7")
g("s_lshl_b32", "s11", "s11", 3)
g.wait(lgkm=0)
srd(44, 18, 2 * 32 * 4096 * 128 * 2)

kvm = CFG["kv_mods"]
wm = CFG["w_mods"]


def vreg(i):
    return 32 + 4 * i if i < 8 else 64 + 4 * (i - 8)


def kv_load(dst, srd_, i):
    g("s_add_u32", S_T, S_KV, i * 16384)
    g("buffer_load_dwordx4", vr(dst), "v1", srd_, S_T, mods=f"offen {kvm}".strip())


def wo_load(i):
    if CFG["nowo"]:
        g("s_mov_b32", "m0", L_WO)
        g("buffer_load_dword", "v1", SRD_X, 0, mods="offen lds")
        return
    g("s_add_u32", S_T, S_WO, i * 1024)
    g("s_mul_i32", "s101", S_WAVE, 8 * WPITCH)
    g("s_add_u32", "m0", "s101", L_WO + i * WPITCH)
    g("buffer_load_dwordx4", "v1", SRD_WO, S_T, mods=f"offen {wm} lds")


def st_load():
    g("v_lshlrev_b32", "v3", 3, "v0")
    g("s_lshl_b32", "s7", S_BH, 9)
    g("buffer_load_dwordx2", "v[32:33]", "v3", SRD_WS, "s7", mods="offen sc1")


D = CFG["D"]
stream = []
wopos = [int(x) for x in CFG["wopos"].split(",")]
base = []
for i in range(16):
    base.append((f"K{i}", None, (lambda i=i: kv_load(64 + 4 * i, SRD_K, i)), D))
for i in range(16):
    base.append((f"V{i}", "QDONE" if i < 8 else f"K{i - 8}", (lambda i=i: kv_load(vreg(i), SRD_V, i)), D))
for n, e in enumerate(base):
    stream.append(e)
    for i, p in enumerate(wopos):
        if p == n:
            stream.append((f"XO{i}", "WOK", (lambda i=i: wo_load(i)), 99))
for idx in range(min(CFG["dq"], len(stream))):
    nm, pre, fn, dd = stream[idx]
    if dd < 99:
        stream[idx] = (nm, pre, fn, dd + 1)
NE = CFG["nend"]
for idx in range(len(stream) - NE, len(stream)):
    nm, pre, fn, dd = stream[idx]
    if dd < 99:
        stream[idx] = (nm, pre, fn, CFG["dend"])
freed = set()
spos = [0]
issued = set()
heavy = set()
dma_uids = set()


def pump(n=1, pace=True, until=None):
    cnt = 0
    while spos[0] < len(stream):
        if until is not None:
            if until in issued:
                return
        elif cnt >= n:
            return
        name, pre, fn, dd = stream[spos[0]]
        if pre is not None and pre not in freed:
            if until is not None:
                raise RuntimeError(f"blocked at {name} needs {pre}")
            return
        if pace:
            hv = 0
            for uid, ent in sorted(g.vm.items(), key=lambda kv: kv[1][0]):
                if uid in heavy:
                    hv += 1
                    if hv == dd:
                        g.wait(vm=ent[0])
                        break
        fn()
        if name[0] in "KVW":
            heavy.add(g.uid)
        if name[0] == "X":
            dma_uids.add(g.uid)
        issued.add(name)
        spos[0] += 1
        cnt += 1


pump(1, pace=False)
srd(60, 16, 2048)
g("buffer_load_dwordx4", "v[24:27]", "v1", SRD_X, 0, mods="offen")
g("buffer_load_dwordx4", "v[28:31]", "v1", SRD_X, 0, mods="offen offset:1024")
g("buffer_load_ushort", "v3", "v3", SRD_X, "s11", mods="offen")
srd(52, 22, 512 * 4096 * 2)
g("buffer_load_dwordx4", "v[60:63]", "v2", SRD_WQ, "s12", mods=f"offen {wm}".strip())
pump(CFG["d0"] - 1, pace=False)
srd(64, 40, WS_SIZE)
srd(68, 38, 256)
g("s_or_b32", "s7", "s2", S_WAVE)
g("s_cmp_lg_u32", "s7", 0)
g("s_cbranch_scc1", "L_nononce")
st_skip = g.save()
g("s_memrealtime", "s[8:9]")
g("v_mov_b32", "v10", 0)
g.wait(lgkm=0)
g("s_bitset1_b32", "s9", 31)
g("v_mov_b32", "v8", "s8")
g("v_mov_b32", "v9", "s9")
g("s_mov_b64", "exec", 1)
g("buffer_store_dwordx2", "v[8:9]", "v10", SRD_DBG, 0, mods="offen sc1")
g("s_mov_b64", "exec", -1)
g.label("L_nononce")
g.merge(st_skip)

if CFG["diag"]:
    g("s_memrealtime", "s[100:101]")
    g.wait(lgkm=0)
    g("s_mov_b32", "s15", "s100")

g("s_cmp_lg_u32", S_WAVE, 1)
g("s_cbranch_scc1", "L_noclear")
st_skip = g.save()
for r in range(4):
    g("v_mov_b32", f"v{8 + r}", -1)
g("s_lshl_b32", "s7", S_B, 7)
g("s_lshl_b32", "s8", S_H, 2)
g("s_add_u32", "s7", "s7", "s8")
g("s_add_u32", "s7", "s7", S_SPL)
g("s_lshl_b32", "s7", "s7", 11)
g("s_add_u32", "s7", "s7", hex(WS_Y))
g("buffer_store_dwordx4", "v[8:11]", "v1", SRD_WS, "s7", mods="offen sc1")
g("buffer_store_dwordx4", "v[8:11]", "v1", SRD_WS, "s7", mods="offen offset:1024 sc1")
g("s_mov_b64", "exec", "0xff")
g("ds_write_b128", "v1", "v[8:11]", mods=f"offset:{L_WST}")
g("s_cmp_lt_u32", "s2", 224)
g("s_cbranch_scc1", "L_noclrh")
g("s_lshl_b32", "s7", S_PI, 7)
g("s_add_u32", "s7", "s7", hex(WS_H))
g("buffer_store_dwordx4", "v[8:11]", "v1", SRD_WS, "s7", mods="offen sc1")
g.label("L_noclrh")
g("s_mov_b64", "exec", -1)
g("s_cmp_ge_u32", "s2", NFFN)
g("s_cbranch_scc1", "L_noclear")
st_skip2 = g.save()
g("s_lshl_b32", "s7", "s2", 12)
g("s_add_u32", "s7", "s7", hex(WS_F))
for k in range(4):
    g("buffer_store_dwordx4", "v[8:11]", "v1", SRD_WS, "s7",
      mods=f"offen offset:{k * 1024} sc1" if k else "offen sc1")
g.label("L_noclear")
g.merge(st_skip)
g.merge(st_skip2)
uids_before_clear_end = set(g.vm.keys())
g("v_mov_b32", "v22", 0)
g("v_mov_b32", "v23", 0)

srd(48, 20, 2 * 32 * 4096 * 128 * 2)
srd(56, 24, 4096 * 512 * 2)
srd(72, 28, 512 * 1376 * 2)
srd(76, 32, 1376 * 512 * 2)
srd(80, 30, 1376 * 2)
srd(84, 34, 512 * 2)
srd(88, 36, 2048)
if CFG["diag"]:
    g("s_mov_b32", f"s{STAMP0}", "s15")
    for i in range(1, 10):
        g("s_mov_b32", f"s{STAMP0 + i}", 0)
g("s_mov_b64", LIVE, -1)
if CFG["prio"]:
    for lvl in (1, 2, 3):
        lab = g.newlabel("Lprio")
        g("s_cmp_lt_u32", S_WAVE, 4 * lvl if CFG["prio"] == 1 else {1: 8, 2: 12, 3: 99}[lvl])
        g("s_cbranch_scc1", lab)
        g("s_setprio", lvl)
        g.label(lab)
g("s_mov_b32", S_LOG2E, "0x3fb8aa3b")
g("s_mov_b32", S_SCALE, "0x3db504f3")
g("s_lshl_b32", S_WO, S_H, 17)
g("s_lshl_b32", "s7", S_WAVE, 13)
g("s_add_u32", S_WO, S_WO, "s7")
freed.add("WOK")
for r in (16, 17, 18, 19, 20, 21, 52, 53, 54):
    g("v_mov_b32", f"v{r}", 0)
g("v_and_b32", "v12", 1, "v0")
g("v_lshlrev_b32", "v12", 4, "v12")
g("v_mov_b32", "v13", "0xffff")
g("v_lshlrev_b32", "v13", "v12", "v13")
g("v_bfe_u32", "v12", "v0", 1, 2)
for r in range(4):
    g("v_cmp_eq_u32", "vcc", r, "v12")
    g("v_cndmask_b32", f"v{4 + r}", 0, "v13", "vcc")

for b in range(2):
    for k in range(4):
        unpack(f"v{32 + 8 * b + 2 * k}", f"v{33 + 8 * b + 2 * k}", f"v{24 + 4 * b + k}")
for b in range(2):
    base = 32 + 8 * b
    g("v_add_f32", f"v{8 + b}", f"v{base}", f"v{base + 1}")
    g("v_add_f32", f"v{10 + b}", f"v{base + 2}", f"v{base + 3}")
    g("v_add_f32", f"v{12 + b}", f"v{base + 4}", f"v{base + 5}")
    g("v_add_f32", f"v{14 + b}", f"v{base + 6}", f"v{base + 7}")
for b in range(2):
    g("v_add_f32", f"v{8 + b}", f"v{8 + b}", f"v{10 + b}")
    g("v_add_f32", f"v{12 + b}", f"v{12 + b}", f"v{14 + b}")
for b in range(2):
    g("v_add_f32", f"v{8 + b}", f"v{8 + b}", f"v{12 + b}")
wave_reduce("v_add_f32", ["v8", "v9"])
g("v_readlane_b32", "s7", "v8", 63)
g("v_readlane_b32", "s8", "v9", 63)
pump(1)
g("s_cmp_lg_u32", S_WAVE, 1)
g("s_cbranch_scc1", "L_nn1")
st_skip = g.save()
g("buffer_load_dwordx2", "v[22:23]", "v20", SRD_DBG, 0, mods="offen sc1")
g.label("L_nn1")
g.merge(st_skip)
g("v_mov_b32", "v12", "0x3b000000")
g("v_mul_f32", "v16", "s7", "v12")
g("v_mul_f32", "v17", "s8", "v12")
for b in range(2):
    for k in range(8):
        g("v_sub_f32", f"v{32 + 8 * b + k}", f"v{32 + 8 * b + k}", f"v{16 + b}")
for b in range(2):
    g("v_mul_f32", f"v{8 + b}", f"v{32 + 8 * b}", f"v{32 + 8 * b}")
for k in range(1, 8):
    for b in range(2):
        g("v_fmac_f32", f"v{8 + b}", f"v{32 + 8 * b + k}", f"v{32 + 8 * b + k}")
wave_reduce("v_add_f32", ["v8", "v9"])
g("v_readlane_b32", "s7", "v8", 63)
g("v_readlane_b32", "s8", "v9", 63)
pump(1)
g("v_mul_f32", "v18", "s7", "v12")
g("v_mul_f32", "v19", "s8", "v12")
g("s_mov_b32", "s8", "0xff00ff00")
g("s_mov_b32", "s9", "0xff00ff00")
g("v_cndmask_b32", "v13", "v16", "v17", "s[8:9]")
g("v_cndmask_b32", "v14", "v18", "v19", "s[8:9]")
bf16r2("v13", "v14", "v15")
g("v_add_f32", "v14", "0x3727c5ac", "v14")
bf16r("v14", "v14")
g("v_sqrt_f32", "v14", "v14")
bf16r("v14", "v14")
g("v_rcp_f32", "v14", "v14")
g("v_lshlrev_b32", "v3", 16, "v3")
g("v_sub_f32", "v3", "v3", "v13")
bf16r("v3", "v3")
g("v_mul_f32", "v3", "v3", "v14")
g("v_cvt_pk_bf16_f32", "v16", "v3", "v3")
bmask_mfma("v[12:15]", "v[60:63]", "v16", True)
g("v_lshrrev_b32", "v16", 4, "v0")
g("v_and_b32", "v17", 7, "v0")
g("v_lshl_add_u32", "v16", "v16", 5, "v17")
g("v_bfe_u32", "v17", "v0", 3, 1)
g("v_lshl_add_u32", "v16", "v17", 7, "v16")
g("v_mul_u32_u24", "v16", PSTR, "v16")
g("s_lshl_b32", "s7", S_WAVE, 2)
g("v_add_u32", "v16", "s7", "v16")
for r in range(4):
    g("ds_write_b32", "v16", f"v{12 + r}", mods=f"offset:{L_PART + r * 8 * PSTR}")
pump(until=CFG["b1pos"])
pump(CFG["qx"], pace=False)
g("s_cmp_lg_u32", S_WAVE, 1)
g("s_cbranch_scc1", "L_clrok")
st_skip = g.save()
pend_clear = [v[0] for k, v in g.vm.items() if k in uids_before_clear_end]
if pend_clear:
    g.wait(vm=min(pend_clear))
g("v_cmp_ne_u32", "vcc", 0, "v23")
g("s_cmp_lg_u64", "vcc", 0)
g("s_cbranch_scc1", "L_nonceok")
st_ok = g.save()
g("s_mov_b32", S_IT, 0)
g.label("L_noncespin")
g("v_mov_b32", "v20", 0)
g("buffer_load_dwordx2", "v[22:23]", "v20", SRD_DBG, 0, mods="offen sc1")
g.wait(vm=0)
g("v_cmp_ne_u32", "vcc", 0, "v23")
g("s_cmp_lg_u64", "vcc", 0)
g("s_cbranch_scc1", "L_nonceok")
g("s_add_u32", S_IT, S_IT, 1)
g("s_cmp_lt_u32", S_IT, CFG["spin_limit"])
g("s_sleep", CFG["fspin"])
g("s_cbranch_scc1", "L_noncespin")
g.label("L_nonceok")
g.merge(st_ok)
g("v_mov_b32", "v20", 0)
g("s_mov_b64", "exec", 1)
g("ds_write_b64", "v20", "v[22:23]", mods=f"offset:{L_NONCE}")
g("s_mov_b64", "exec", -1)
g.label("L_clrok")
g.merge(st_skip)
g.wait(lgkm=0)
if not CFG["nob1"]:
    g("s_barrier")
g("v_mov_b32", "v20", 0)
g("ds_read_b64", "v[22:23]", "v20", mods=f"offset:{L_NONCE}")
g("v_readfirstlane_b32", N_LO, "v22")
g("v_readfirstlane_b32", N_HI, "v23")
g("s_cmp_lg_u32", S_WAVE, 2)
g("s_cbranch_scc1", "L_nopub")
st_skip = g.save()
g("v_mul_u32_u24", "v16", 4 * PSTR, "v0")
for half in range(2):
    for oo in range(2):
        for k in range(4):
            g("ds_read_b128", vr(32 + 16 * oo + 4 * k), "v16",
              mods=f"offset:{L_PART + (2 * half + oo) * PSTR + 16 * k}")
    for oo in range(2):
        tree_sum([f"v{32 + 16 * oo + k}" for k in range(16)])
        g("v_mov_b32", f"v{8 + 4 * half + oo}", f"v{32 + 16 * oo}")
    g("v_mov_b32", f"v{10 + 4 * half}", "v22")
    g("v_mov_b32", f"v{11 + 4 * half}", "v23")
g("s_lshl_b32", "s7", S_H, 14)
g("s_lshl_b32", "s8", S_B, 13)
g("s_add_u32", "s7", "s7", "s8")
g("s_lshl_b32", "s8", S_SPL, 11)
g("s_add_u32", "s7", "s7", "s8")
g("s_add_u32", "s7", "s7", hex(WS_QP))
g("buffer_store_dwordx4", "v[8:11]", "v1", SRD_WS, "s7", mods="offen sc1")
g("buffer_store_dwordx4", "v[12:15]", "v1", SRD_WS, "s7", mods="offen offset:1024 sc1")
g.label("L_nopub")
g.merge(st_skip)

pump(until=CFG["drypos"])
SEGS = ["A", "B", "C", "D", "E", "F", "H", "I", "J"]
if CFG["dry2"]:
    SEGS = SEGS + ["K0", "K2", "SM", "V0", "V9", "V12"]
if CFG["dry"]:
    pump(1, pace=False)
    g.flush_hazards()
    g("s_mov_b64", LIVE, 0)
    g("s_mov_b64", "exec", 0)
    for n, sg in enumerate(SEGS):
        g("s_cmp_eq_u32", S_WAVE, (n + 4) % 16 if n != 14 else 2)
        g("s_cbranch_scc1", f"L_seg{sg}")
    g.label("L_dryret")
    g("s_mov_b64", LIVE, -1)
    g("s_mov_b64", "exec", -1)
    g.wait(lgkm=0)
    g.nop(10)

GW = 3 if not CFG["nob2"] else 99


def q_loads():
    g("s_lshl_b32", "s7", S_H, 14)
    g("s_lshl_b32", "s8", S_B, 9)
    g("s_add_u32", "s7", "s7", "s8")
    g("s_add_u32", "s7", "s7", hex(WS_QP))
    for u in range(4):
        for part in range(2):
            g("buffer_load_dwordx4", vr(32 + 8 * u + 4 * part), "v12", SRD_WS, "s7",
              mods=f"offen offset:{part * 1024} sc1" if part else "offen sc1")
        if u < 3:
            g("s_add_u32", "s7", "s7", 4096)


def q_check():
    for k in range(8):
        g("v_xor_b32", f"v{16 + k}", N_LO, f"v{34 + 4 * k}")
        g("v_xor_b32", f"v{24 + k}", N_HI, f"v{35 + 4 * k}")
    for k in range(0, 16, 4):
        g("v_or3_b32", f"v{16 + k}", f"v{16 + k}", f"v{17 + k}", f"v{18 + k}")
    for k in range(0, 16, 4):
        g("v_or_b32", f"v{16 + k}", f"v{16 + k}", f"v{19 + k}")
    g("v_or3_b32", "v16", "v16", "v20", "v24")
    g("v_or_b32", "v16", "v16", "v28")
    g("v_cmp_ne_u32", "vcc", 0, "v16")
    g("s_cmp_eq_u64", "vcc", 0)


pump(until=CFG["gpos"])
g("s_cmp_lg_u32", S_WAVE, GW)
g("s_cbranch_scc1", "L_g1")
st_skip = g.save()
g("v_lshrrev_b32", "v12", 5, "v0")
g("v_and_b32", "v13", 31, "v0")
g("v_lshlrev_b32", "v13", 4, "v13")
g("v_lshl_add_u32", "v12", "v12", 11, "v13")
q_loads()
g.label("L_g1")
g.merge(st_skip)
pump(CFG["gdly"])
g("s_cmp_lg_u32", S_WAVE, GW)
g("s_cbranch_scc1", "L_nogather")
st_skip = g.save()
q_check()
g("s_cbranch_scc1", "L_qok")
st_ok = g.save()
g("s_mov_b32", S_IT, 0)
g.label("L_qspin")
q_loads()
g.wait(vm=0)
q_check()
g("s_cbranch_scc1", "L_qok")
g("s_add_u32", S_IT, S_IT, 1)
g("s_cmp_lt_u32", S_IT, CFG["spin_limit"])
g("s_sleep", CFG["fspin"])
g("s_cbranch_scc1", "L_qspin")
g.label("L_qok")
g.merge(st_ok)
CI = [0, 1, 4, 5]
for r in range(4):
    g("v_add_f32", f"v{16 + r}", f"v{32 + CI[r]}", f"v{40 + CI[r]}")
    g("v_add_f32", f"v{20 + r}", f"v{48 + CI[r]}", f"v{56 + CI[r]}")
for r in range(4):
    g("v_add_f32", f"v{16 + r}", f"v{16 + r}", f"v{20 + r}")
for r in range(4):
    g("v_mov_b32", f"v{20 + r}", f"v{16 + r}")
for r in range(4):
    g("v_permlane32_swap_b32", f"v{16 + r}", f"v{20 + r}")
for r in range(4):
    g("v_add_f32", f"v{16 + r}", f"v{16 + r}", f"v{20 + r}")
g("v_cvt_pk_bf16_f32", "v14", "v16", "v17")
g("v_cvt_pk_bf16_f32", "v15", "v18", "v19")
g("v_lshrrev_b32", "v13", 1, "v13")
g("ds_write_b64", "v13", "v[14:15]", mods=f"offset:{L_QB}")
g.label("L_nogather")
g.merge(st_skip)
freed.add("QDONE")
pump(until=CFG["qbar"])
pump(CFG["qx"], pace=False)
g.wait(lgkm=0)
if not CFG["nob2"]:
    g("s_barrier")
g("v_and_b32", "v12", 15, "v0")
g("v_lshlrev_b32", "v12", 4, "v12")
g("ds_read_b128", "v[8:11]", "v12", mods=f"offset:{L_QB}")
stamp(1)

g.dry_guard = bool(CFG["dry2"])
for G in range(4):
    if CFG["dry2"] and G in (0, 2):
        if G:
            seg_end()
        g.label(f"L_segK{G}")
    tgt = 4 * G + 3 + D
    nm = f"K{tgt}" if tgt < 16 else f"V{tgt - 16}"
    pump(until=nm)
    for step in range(4 if not CFG["nokc"] else 1):
        for u in range(4):
            i = 4 * G + u
            g("v_dot2_f32_bf16", f"v{16 + i}", f"v{64 + 4 * i + step}", f"v{8 + step}",
              "0" if step == 0 else f"v{16 + i}")
    for u in range(4):
        freed.add(f"K{4 * G + u}")
    pump(1)
    for sh in ((8, 4, 2, 1) if not CFG["nokc"] else ()):
        for u in range(4):
            i = 4 * G + u
            g("v_add_f32_dpp", f"v{16 + i}", f"v{16 + i}", f"v{16 + i}", mods=f"row_ror:{sh} {DPPF}")
    for u in (0, 2):
        i = 4 * G + u
        bf16r2(f"v{16 + i}", f"v{17 + i}", f"v{12 + u}")
    for u in range(4):
        i = 4 * G + u
        g("v_mul_f32", f"v{16 + i}", S_SCALE, f"v{16 + i}")
    for u in (0, 2):
        i = 4 * G + u
        bf16r2(f"v{16 + i}", f"v{17 + i}", f"v{12 + u}")

if CFG["dry2"]:
    seg_end()
    g.label("L_segSM")
pump(1)
g("v_max3_f32", "v12", "v16", "v17", "v18")
g("v_max3_f32", "v13", "v19", "v20", "v21")
g("v_max3_f32", "v14", "v22", "v23", "v24")
g("v_max3_f32", "v15", "v25", "v26", "v27")
g("v_max3_f32", "v12", "v12", "v28", "v29")
g("v_max3_f32", "v13", "v13", "v30", "v31")
g("v_max3_f32", "v12", "v12", "v13", "v14")
g("v_max_f32", "v12", "v12", "v15")
for k in range(4):
    g("v_readlane_b32", f"s{8 + k}", "v12", 16 * k)
g("v_mov_b32", "v12", "s8")
g("v_max_f32", "v12", "s9", "v12")
g("v_max_f32", "v12", "s10", "v12")
g("v_max_f32", "v12", "s11", "v12")
g("v_mul_f32", "v12", S_LOG2E, "v12")
for i in range(16):
    g("v_fma_f32", f"v{16 + i}", f"v{16 + i}", S_LOG2E, "-v12")
for i in range(16):
    g("v_exp_f32", f"v{16 + i}", f"v{16 + i}")
pump(1)
g("v_readfirstlane_b32", S_M, "v12")
g("v_add_f32", "v8", "v16", "v17")
g("v_add_f32", "v9", "v18", "v19")
g("v_add_f32", "v10", "v20", "v21")
g("v_add_f32", "v11", "v22", "v23")
g("v_add_f32", "v13", "v24", "v25")
g("v_add_f32", "v14", "v26", "v27")
g("v_add_f32", "v8", "v8", "v28")
g("v_add_f32", "v9", "v9", "v29")
g("v_add_f32", "v10", "v10", "v30")
g("v_add_f32", "v11", "v11", "v31")
tree_sum(["v8", "v9", "v10", "v11", "v13", "v14"])
for k in range(4):
    g("v_readlane_b32", f"s{8 + k}", "v8", 16 * k)
g("v_mov_b32", "v13", "s8")
g("v_add_f32", "v13", "s9", "v13")
g("v_add_f32", "v13", "s10", "v13")
g("v_add_f32", "v13", "s11", "v13")
g("s_lshl_b32", "s8", S_WAVE, 3)
g("v_mov_b32", "v8", "s8")
setexec(1)
g("ds_write_b64", "v8", "v[12:13]", mods=f"offset:{L_WST}")
setexec(-1)
for i in range(16):
    g("v_cvt_pk_bf16_f32", f"v{16 + i}", f"v{16 + i}", f"v{16 + i}")
stamp(2)


def factor():
    g("v_and_b32", "v3", 15, "v0")
    g("v_lshlrev_b32", "v3", 3, "v3")
    g("s_mov_b32", S_IT, 0)
    g.flush_hazards()
    g.label("L_stspin")
    g("ds_read_b64", "v[32:33]", "v3", mods=f"offset:{L_WST}")
    g.wait(lgkm=0)
    g("v_max_u32", "v34", "v32", "v33")
    g("v_cmp_eq_u32", "vcc", -1, "v34")
    g("s_add_u32", S_IT, S_IT, 1)
    g("s_cmp_eq_u64", "vcc", 0)
    g("s_cbranch_scc1", "L_stok")
    g("s_cmp_lt_u32", S_IT, CFG["spin_limit"])
    g("s_sleep", 1)
    g("s_cbranch_scc1", "L_stspin")
    g.label("L_stok")
    g("v_mov_b32", "v40", "v32")
    for sh in (8, 4, 2, 1):
        g("v_max_f32_dpp", "v40", "v40", "v40", mods=f"row_ror:{sh} {DPPF}")
    g("v_sub_f32", "v41", "v32", "v40")
    g("v_exp_f32", "v41", "v41")
    g("v_sub_f32", "v35", S_M, "v40")
    g("v_mul_f32", "v41", "v41", "v33")
    g("v_exp_f32", "v35", "v35")
    for sh in (8, 4, 2, 1):
        g("v_add_f32_dpp", "v41", "v41", "v41", mods=f"row_ror:{sh} {DPPF}")
    g("s_cmp_lg_u32", S_WAVE, 0)
    g("s_cbranch_scc1", "L_nostat")
    st_skip = g.save()
    g("v_mov_b32", "v42", N_LO)
    g("v_mov_b32", "v43", N_HI)
    g("s_lshl_b32", "s7", S_B, 7)
    g("s_lshl_b32", "s8", S_H, 2)
    g("s_add_u32", "s7", "s7", "s8")
    g("s_add_u32", "s7", "s7", S_SPL)
    g("s_lshl_b32", "s7", "s7", 4)
    g("v_mov_b32", "v34", 0)
    setexec(1)
    g("buffer_store_dwordx4", "v[40:43]", "v34", SRD_WS, "s7", mods="offen sc1")
    setexec(-1)
    g.label("L_nostat")
    g.merge(st_skip)
    g("v_lshrrev_b32", "v39", 4, "v0")
    g("v_bfe_u32", "v37", "v0", 2, 1)
    g("v_lshlrev_b32", "v36", 6, "v39")
    g("v_lshl_add_u32", "v36", "v37", 4, "v36")
    g("v_and_b32", "v37", 3, "v0")
    g("v_lshl_add_u32", "v36", "v37", 1, "v36")
    g("s_mul_i32", "s7", S_WAVE, APITCH)
    g("v_add_u32", "v36", "s7", "v36")
    g("v_and_b32", "v37", 15, "v0")
    g("v_mul_u32_u24", "v37", APITCH, "v37")
    g("v_lshl_add_u32", "v37", "v39", 4, "v37")
    g("v_and_b32", "v38", 7, "v0")
    g("v_lshlrev_b32", "v38", 4, "v38")
    g("v_bfe_u32", "v34", "v0", 4, 1)
    g("v_lshl_add_u32", "v38", "v34", 3, "v38")
    g("v_bfe_u32", "v34", "v0", 3, 1)
    g("v_lshl_add_u32", "v38", "v34", 2, "v38")
    g("s_lshl_b32", S_Y, S_B, 7)
    g("s_lshl_b32", "s8", S_H, 2)
    g("s_add_u32", S_Y, S_Y, "s8")
    g("s_add_u32", S_Y, S_Y, S_SPL)
    g("s_lshl_b32", S_Y, S_Y, 11)
    g("s_lshl_b32", "s8", S_WAVE, 7)
    g("s_add_u32", S_Y, S_Y, "s8")
    g("s_add_u32", S_Y, S_Y, hex(WS_Y))
    assert all(f"XO{k}" in issued for k in range(8))
    g("s_mov_b32", "s12", "0xffff0000")
    g("s_mov_b32", "s13", 0)
    g("s_mov_b32", "s14", "0x00ff00ff")
    g("s_mov_b32", "s15", "0x00ff00ff")


names = [e[0] for e in stream]
for i in range(16):
    if CFG["dry2"] and i in (0, 9, 12):
        seg_end()
        g.label(f"L_segV{i}")
    tgt = i + D
    while tgt < 16 and tgt + 1 < 16 + 8:
        nxt = tgt + 1
        if nxt < 16 and stream[names.index(f"V{nxt}")][3] >= nxt - i and stream[names.index(f"V{nxt}")][3] > D + CFG["DW"]:
            tgt = nxt
        else:
            break
    if tgt < 16:
        pump(until=f"V{tgt}")
    else:
        pump(100)
    bmask_mfma("v[12:15]", vr(vreg(i)), f"v{16 + i}", i == 0)
    freed.add(f"PV{i}")
    if i == CFG["word"]:
        assert all(f"XO{k}" in issued for k in range(8))
        assert not any(len(v[1]) == 0 and k in dma_uids for k, v in g.vm.items()), "wo DMA not known complete"
        g("v_lshrrev_b32", "v3", 2, "v0")
        g("v_mul_u32_u24", "v3", WPITCH, "v3")
        g("v_and_b32", "v8", 3, "v0")
        g("v_lshl_add_u32", "v3", "v8", 3, "v3")
        g("s_lshl_b32", "s7", S_WAVE, 6)
        g("v_add_u32", "v3", "s7", "v3")
        pump(CFG["qx"], pace=False)
        if not CFG["nob2"]:
            barrier()
        if CFG["dry2"]:
            g("s_cbranch_execz", "L_notr")
        for t in range(4):
            if t:
                g("v_add_u32", "v3", 32 * WPITCH, "v3")
            for nt in range(2):
                for hh in range(2):
                    g("ds_read_b64_tr_b16", vr(96 + 16 * nt + 4 * t + 2 * hh, 2), "v3",
                      mods=f"offset:{L_WO + hh * 16 * WPITCH + nt * 32}")
        if CFG["dry2"]:
            g.label("L_notr")
    if i == CFG["stuse"]:
        factor()
    if i == CFG["rchk"]:
        g("s_cmp_lt_u32", "s2", 224)
        g("s_cbranch_scc1", "L_norchk")
        st_skip = g.save()
        g("v_lshrrev_b32", "v52", 3, "v0")
        g("s_lshl_b32", "s7", S_WAVE, 3)
        g("v_add_u32", "v52", "s7", "v52")
        g("v_and_b32", "v53", 7, "v52")
        g("v_bfe_u32", "v54", "v52", 3, 2)
        g("v_lshl_add_u32", "v53", "v53", 2, "v54")
        g("v_lshrrev_b32", "v54", 5, "v52")
        g("v_lshl_add_u32", "v53", "v53", 2, "v54")
        g("v_lshlrev_b32", "v53", 4, "v53")
        g("v_lshlrev_b32", "v54", 4, "v52")
        g("s_lshr_b32", "s7", S_PI, 4)
        g("s_lshl_b32", "s7", "s7", 11)
        g("v_add_u32", "v54", "s7", "v54")
        g("buffer_load_dwordx4", "v[56:59]", "v53", SRD_WS, 0, mods="offen sc1")
        g("buffer_load_dwordx4", "v[60:63]", "v54", SRD_WS, 0, mods="offen sc1")
        g.label("L_norchk")
        g.merge(st_skip)
pump(100)
assert spos[0] == len(stream)
stamp(3)
if CFG["dry2"]:
    seg_end()

g.dry_guard = True
g.label("L_segA")
for r in range(4):
    g("v_mul_f32", f"v{12 + r}", f"v{12 + r}", "v35")
g("v_cvt_pk_bf16_f32", "v12", "v12", "v13")
g("v_cvt_pk_bf16_f32", "v14", "v14", "v15")
setexec("s[14:15]")
g("ds_write_b16", "v36", "v12", mods=f"offset:{L_PART + 0}")
g("ds_write_b16_d16_hi", "v36", "v12", mods=f"offset:{L_PART + 32}")
g("ds_write_b16", "v36", "v14", mods=f"offset:{L_PART + 8}")
g("ds_write_b16_d16_hi", "v36", "v14", mods=f"offset:{L_PART + 40}")
setexec(-1)
g.wait(lgkm=0)
barrier()
stamp(4)
for t in range(4):
    g("ds_read_b128", vr(64 + 4 * t), "v37", mods=f"offset:{L_PART + 64 * t}")
seg_end()
g.label("L_segB")
for t in range(4):
    for nt in range(2):
        Dn = "v[12:15]" if nt == 0 else "v[8:11]"
        g("v_mfma_f32_16x16x32_bf16", Dn, vr(64 + 4 * t), vr(96 + 16 * nt + 4 * t), "0" if t == 0 else Dn)
g("v_add_f32", "v12", "v12", "v13")
g("v_add_f32", "v14", "v14", "v15")
g("v_add_f32", "v8", "v8", "v9")
g("v_add_f32", "v10", "v10", "v11")
g("v_add_f32", "v12", "v12", "v14")
g("v_add_f32", "v8", "v8", "v10")
for op in ("v_permlane16_swap_b32", "v_permlane32_swap_b32"):
    g("v_mov_b32", "v13", "v12")
    g("v_mov_b32", "v9", "v8")
    g(op, "v12", "v13")
    g(op, "v8", "v9")
    g("v_add_f32", "v12", "v12", "v13")
    g("v_add_f32", "v8", "v8", "v9")
g("v_cndmask_b32", "v12", "v12", "v8", "s[12:13]")
g("s_mov_b32", "exec_hi", 0)
g("s_mov_b32", "exec_lo", f"s{LIVE[2:LIVE.index(':')]}")
g("buffer_store_dword", "v12", "v38", SRD_WS, S_Y, mods="offen sc1")
setexec(-1)
stamp(5)
seg_end()
st_y = g.save()
g("s_cmp_ge_u32", "s2", 224)
g("s_cbranch_scc1", "L_segH")
g("s_cmp_ge_u32", "s2", NFFN)
g("s_cbranch_scc1", "L_fin")
g("s_cmp_lt_u32", S_WAVE, 4)
g("s_cbranch_scc1", "L_fin")
g("s_cmp_gt_u32", S_WAVE, 8)
g("s_cbranch_scc1", "L_fin")
g("s_cmp_eq_u32", S_WAVE, 8)
g("s_cbranch_scc1", "L_segF")
st_stat = g.save()

g.label("L_segC")
TQ = T[12]
g("s_and_b32", TQ, S_WAVE, 3)
g("v_lshrrev_b32", "v18", 4, "v0")
g("v_and_b32", "v20", 1, "v0")
g("v_lshlrev_b32", "v20", 10, "v20")
g("v_lshl_add_u32", "v20", "v18", 4, "v20")
g("s_lshl_b32", T[8], TQ, 8)
g("v_add_u32", "v20", T[8], "v20")
g("v_and_b32", "v21", 3, "v0")
g("v_lshlrev_b32", "v21", 4, "v21")
g("v_bfe_u32", "v22", "v0", 2, 2)
g("v_lshl_add_u32", "v21", "v22", 2, "v21")
g("s_lshl_b32", T[8], TQ, 6)
g("v_add_u32", "v22", T[8], "v21")
g("s_lshl_b32", T[8], TQ, 7)
g("v_add_u32", "v21", T[8], "v21")
g("v_bfe_u32", "v23", "v0", 3, 1)
g("v_lshlrev_b32", "v28", 3, "v23")
g("v_lshlrev_b32", "v23", 6, "v23")
g("v_lshl_add_u32", "v23", "v18", 4, "v23")
g("v_lshlrev_b32", "v19", 4, "v18")
g("v_bfe_u32", "v29", "v0", 3, 1)
g("v_lshlrev_b32", "v29", 11, "v29")
g("v_lshl_add_u32", "v29", "v18", 7, "v29")
g("v_and_b32", "v30", 7, "v0")
g("v_lshl_add_u32", "v29", "v30", 4, "v29")
g("s_lshl_b32", T[11], "s2", 12)
g("s_lshl_b32", T[9], TQ, 9)
g("s_add_u32", T[11], T[11], T[9])
g("s_add_u32", T[11], T[11], hex(WS_F))
g("v_bfe_u32", "v31", "v0", 2, 2)
g("v_lshlrev_b32", "v31", 8, "v31")
g("v_lshl_add_u32", "v31", "v18", 6, "v31")
g("v_and_b32", "v17", 3, "v0")
g("v_lshl_add_u32", "v31", "v17", 3, "v31")
g("s_lshl_b32", T[8], TQ, 12)
g("v_add_u32", "v31", T[8], "v31")
for r in range(4):
    g("v_mov_b32", f"v{8 + r}", "0x3f803f80")
g("v_lshrrev_b32", "v16", 1, "v0")
g("s_movk_i32", T[8], 2752)
g("v_mul_lo_u32", "v16", "v16", T[8])
g("v_and_b32", "v17", 1, "v0")
g("v_lshl_add_u32", "v16", "v17", 4, "v16")
g("s_mul_i32", T[8], TQ, 128 * 2752)
g("s_lshl_b32", T[9], "s2", 5)
g("s_add_u32", T[8], T[8], T[9])
g("s_lshl_b32", T[9], TQ, 12)
g("s_add_u32", T[9], T[9], L_W1)
if CFG["zsleep"]:
    g("s_sleep", CFG["zsleep"])
for k in range(4):
    g("s_mov_b32", "m0", T[9])
    g("buffer_load_dwordx4", "v16", SRD_W1, T[8], mods="offen lds")
    if k < 3:
        g("s_add_u32", T[8], T[8], 32 * 2752)
        g("s_add_u32", T[9], T[9], 1024)
g("v_and_b32", "v17", 15, "v0")
g("v_lshlrev_b32", "v17", 4, "v17")
g("v_lshl_add_u32", "v17", "v18", 10, "v17")
g("s_lshl_b32", T[8], "s2", 14)
g("s_lshl_b32", T[9], TQ, 8)
g("s_add_u32", T[8], T[8], T[9])
for i in range(4):
    g("buffer_load_dwordx4", vr(48 + 4 * i), "v17", SRD_W2, T[8], mods="offen")
    if i < 3:
        g("s_add_u32", T[8], T[8], 4096)
g("v_lshlrev_b32", "v17", 1, "v18")
g("s_lshl_b32", T[8], "s2", 5)
for i in range(4):
    g("buffer_load_ushort", f"v{24 + i}", "v17", SRD_B1, T[8], mods=f"offen offset:{8 * i}" if i else "offen")
g.wait(vm=0)
g("s_cbranch_execz", "L_c3")
for tt in range(4):
    for hh in range(2):
        g("ds_read_b64_tr_b16", vr(64 + 4 * tt + 2 * hh, 2), "v31",
          mods=f"offset:{L_W1 + tt * 1024 + hh * 32}")
g.label("L_c3")
for tt in range(4):
    g("v_mfma_f32_16x16x32_bf16", "v[12:15]", "v[8:11]", vr(64 + 4 * tt), "0" if tt == 0 else "v[12:15]")
for i in range(4):
    g("v_lshlrev_b32", f"v{24 + i}", 16, f"v{24 + i}")
setexec("0xffff")
g("ds_write_b32", "v22", "v12", mods=f"offset:{L_CS}")
setexec(-1)
g.wait(lgkm=0)
seg_end()
g.label("L_segD")
barrier()
for tt in range(4):
    g("ds_read_b128", vr(32 + 4 * tt), "v20", mods=f"offset:{L_HN + tt * 64}")
for q in range(4):
    g("ds_read_b128", vr(80 + 4 * q), "v19", mods=f"offset:{L_CS + 64 * q}")
for tt in range(4):
    g("v_mfma_f32_16x16x32_bf16", "v[12:15]", vr(32 + 4 * tt), vr(64 + 4 * tt), "0" if tt == 0 else "v[12:15]")
for i in range(4):
    g("v_add_f32", f"v{80 + i}", f"v{80 + i}", f"v{84 + i}")
    g("v_add_f32", f"v{88 + i}", f"v{88 + i}", f"v{92 + i}")
for i in range(4):
    g("v_add_f32", f"v{80 + i}", f"v{80 + i}", f"v{88 + i}")
setexec("0xffff")
g("ds_write_b32", "v21", "v12", mods=f"offset:{L_ZP}")
g("ds_write_b32", "v21", "v13", mods=f"offset:{L_ZP + 64}")
setexec(-1)
K1 = -2.0 * 0.7978845608028654 * 1.4426950408889634
K3 = K1 * 0.044715
g("s_mov_b32", T[8], f32hex(K3))
g("v_mov_b32", "v31", f32hex(K1))
g.wait(lgkm=0)
barrier()
seg_end()
g.label("L_segE")
for q in range(4):
    g("ds_read_b128", vr(96 + 4 * q), "v23", mods=f"offset:{L_ZP + 128 * q}")
g("ds_read_b64", "v[112:113]", "v28", mods=f"offset:{L_STAT}")
for i in range(4):
    g("v_add_f32", f"v{96 + i}", f"v{96 + i}", f"v{100 + i}")
    g("v_add_f32", f"v{104 + i}", f"v{104 + i}", f"v{108 + i}")
Z = [f"v{96 + i}" for i in range(4)]
TT_ = [f"v{100 + i}" for i in range(4)]
for i in range(4):
    g("v_add_f32", Z[i], Z[i], f"v{104 + i}")
for i in range(4):
    g("v_fma_f32", Z[i], "-v112", f"v{80 + i}", Z[i])
for i in range(4):
    g("v_mul_f32", Z[i], Z[i], "v113")
bf16r2(Z[0], Z[1], TT_[0])
bf16r2(Z[2], Z[3], TT_[1])
for i in range(4):
    g("v_add_f32", Z[i], Z[i], f"v{24 + i}")
bf16r2(Z[0], Z[1], TT_[0])
bf16r2(Z[2], Z[3], TT_[1])
for i in range(4):
    g("v_mul_f32", TT_[i], Z[i], Z[i])
for i in range(4):
    g("v_fma_f32", TT_[i], TT_[i], T[8], "v31")
for i in range(4):
    g("v_mul_f32", TT_[i], TT_[i], Z[i])
for i in range(4):
    g("v_exp_f32", TT_[i], TT_[i])
for i in range(4):
    g("v_add_f32", TT_[i], 1.0, TT_[i])
for i in range(4):
    g("v_rcp_f32", TT_[i], TT_[i])
for i in range(4):
    g("v_mul_f32", Z[i], Z[i], TT_[i])
for i in range(4):
    g("v_cvt_pk_bf16_f32", Z[i], Z[i], Z[i])
for i in range(4):
    bmask_mfma("v[12:15]", vr(48 + 4 * i), Z[i], i == 0)
g("buffer_store_dwordx4", "v[12:15]", "v29", SRD_WS, T[11], mods="offen sc1")
stamp(8)
seg_end()
g("s_branch", "L_fin")

g.label("L_segF")
g.restore(st_stat)
g("s_mov_b32", T[8], hex(WS_H))
g("v_mov_b32", "v28", 0)
g("v_lshlrev_b32", "v29", 3, "v0")
g("v_and_b32", "v30", 31, "v0")
g("v_lshlrev_b32", "v30", 6, "v30")
g("s_movk_i32", T[9], (128 + 3) * 16)
poll_tag(32, "v30", T[9], full)
if CFG["rep"]:
    poll_one("v1", T[8], 1 << 21, imm=2048)
poll_gather([32, 36, 40, 44], ["v1"] * 4, T[8], [full] * 4, imm=[0, 1024, 2048, 3072], slp=CFG["hsleep"])
stamp(7)
for k in range(8):
    g("v_cvt_pk_bf16_f32", f"v{16 + k}", f"v{32 + 2 * k}", f"v{33 + 2 * k}")
for b in range(2):
    g("ds_write_b64", "v29", vr(16 + 4 * b, 2), mods=f"offset:{L_HN + b * 1024}")
    g("ds_write_b64", "v29", vr(18 + 4 * b, 2), mods=f"offset:{L_HN + b * 1024 + 512}")
for b in range(2):
    g("v_readlane_b32", T[b], f"v{32 + 8 * b}", 0)
g.wait(lgkm=0)
barrier()
for b in range(2):
    for k in range(8):
        g("v_subrev_f32", f"v{32 + 8 * b + k}", T[b], f"v{32 + 8 * b + k}")
for b in range(2):
    base = 32 + 8 * b
    s1, s2 = f"v{8 + 2 * b}", f"v{9 + 2 * b}"
    g("v_add_f32", s1, f"v{base}", f"v{base + 1}")
    g("v_mul_f32", s2, f"v{base}", f"v{base}")
    g("v_fmac_f32", s2, f"v{base + 1}", f"v{base + 1}")
for k in range(2, 8):
    for b in range(2):
        base = 32 + 8 * b
        s1, s2 = f"v{8 + 2 * b}", f"v{9 + 2 * b}"
        g("v_add_f32", s1, s1, f"v{base + k}")
        g("v_fmac_f32", s2, f"v{base + k}", f"v{base + k}")
wave_reduce("v_add_f32", ["v8", "v9", "v10", "v11"])
g("v_mov_b32", "v12", "0x3b000000")
MU = ["v8", "v10"]
VA = ["v9", "v11"]
for b in range(2):
    g("v_mul_f32", MU[b], MU[b], "v12")
    g("v_mul_f32", VA[b], VA[b], "v12")
for b in range(2):
    g("v_fma_f32", VA[b], f"-{MU[b]}", MU[b], VA[b])
    g("v_add_f32", MU[b], T[b], MU[b])
for b in range(2):
    g("v_max_f32", VA[b], 0, VA[b])
for b in range(2):
    bf16r2(MU[b], VA[b], f"v{13 + b}")
for b in range(2):
    g("v_add_f32", VA[b], "0x3727c5ac", VA[b])
for b in range(2):
    bf16r(VA[b], VA[b])
for b in range(2):
    g("v_sqrt_f32", VA[b], VA[b])
for b in range(2):
    bf16r(VA[b], VA[b])
for b in range(2):
    g("v_rcp_f32", VA[b], VA[b])
g("s_mov_b32", T[0], 0)
g("s_brev_b32", T[1], 1)
g("s_and_b64", "exec", LIVE, f"s[{T[0][1:]}:{T[1][1:]}]")
g("ds_write_b128", "v28", "v[8:11]", mods=f"offset:{L_STAT}")
setexec(-1)
g.wait(lgkm=0)
barrier()
seg_end()
g("s_branch", "L_fin")


def xlane_sum(base, tmp):
    for r in range(4):
        g("v_add_f32_dpp", f"v{base + r}", f"v{base + r}", f"v{base + r}", mods=f"row_ror:8 {DPPF}")
    for op in ("v_permlane16_swap_b32", "v_permlane32_swap_b32"):
        for r in range(4):
            g("v_mov_b32", f"v{tmp + r}", f"v{base + r}")
        for r in range(4):
            g(op, f"v{base + r}", f"v{tmp + r}")
        for r in range(4):
            g("v_add_f32", f"v{base + r}", f"v{base + r}", f"v{tmp + r}")


g.label("L_segH")
g.restore(st_y)
TB, TK, TX = T[10], T[11], T[12]
g("s_lshr_b32", TB, S_PI, 4)
g("s_and_b32", TK, S_PI, 15)
g("v_lshrrev_b32", "v18", 3, "v0")
g("v_and_b32", "v19", 7, "v0")
g("v_lshlrev_b32", "v19", 4, "v19")
g("v_lshl_add_u32", "v16", "v18", 11, "v19")
g("v_lshl_add_u32", "v17", "v18", 12, "v19")
g("s_lshl_b32", T[8], S_WAVE, 7)
g("v_add_u32", "v19", T[8], "v19")
g("v_and_b32", "v23", 31, "v0")
g("v_lshlrev_b32", "v25", 2, "v23")
g("v_lshrrev_b32", "v24", 5, "v0")
g("v_lshl_add_u32", "v24", "v24", 10, "v25")
g("v_and_b32", "v20", 3, "v23")
g("v_lshlrev_b32", "v20", 4, "v20")
g("v_lshrrev_b32", "v23", 2, "v23")
g("v_lshl_add_u32", "v20", "v23", 1, "v20")
g("s_lshl_b32", TX, TK, 6)
g("buffer_load_ushort", "v22", "v20", SRD_B2, TX, mods="offen")
g("s_lshl_b32", T[8], TB, 10)
g("s_add_u32", TX, TX, T[8])
g("buffer_load_ushort", "v21", "v20", SRD_X, TX, mods="offen")
g("s_lshl_b32", T[8], TB, 18)
g("s_lshl_b32", T[9], S_WAVE, 14)
g("s_add_u32", T[8], T[8], T[9])
g("s_lshl_b32", T[9], TK, 7)
g("s_add_u32", T[8], T[8], T[9])
g("s_add_u32", T[8], T[8], hex(WS_Y))
g("v_cmp_gt_u32", "vcc", NFFN, "v52")
g("s_mov_b32", T[9], 0)
g.wait_regs("v[56:63]")
st_pre = g.save()
poll_tag(56, "v53", T[9], "vcc", pre=True)
poll_tag(60, "v54", T[9], full, pre=True)
g.merge(st_pre)
g("v_mov_b32", "v44", "v60")
g("v_mov_b32", "v45", "v61")
g("v_mov_b32", "v46", "v44")
g("v_max_f32_dpp", "v46", "v46", "v46", mods=f"row_ror:8 {DPPF}")
g("v_mov_b32", "v47", "v46")
g("v_permlane16_swap_b32", "v46", "v47")
g("v_max_f32", "v46", "v46", "v47")
g("v_sub_f32", "v44", "v44", "v46")
g("v_exp_f32", "v44", "v44")
g("v_mul_f32", "v45", "v45", "v44")
g("v_add_f32_dpp", "v45", "v45", "v45", mods=f"row_ror:8 {DPPF}")
g("v_mov_b32", "v47", "v45")
g("v_permlane16_swap_b32", "v45", "v47")
g("v_add_f32", "v45", "v45", "v47")
g("v_rcp_f32", "v45", "v45")
g("v_mul_f32", "v44", "v44", "v45")
poll_gather([32], ["v16"], T[8], [full], slp=CFG["ysleep"])
for r in range(4):
    g("v_mul_f32", f"v{32 + r}", f"v{32 + r}", "v44")
xlane_sum(32, 36)
setexec("0xff")
g("ds_write_b128", "v19", "v[32:35]", mods=f"offset:{L_RED}")
setexec(-1)
for r in range(4):
    g("v_mov_b32", f"v{40 + r}", 0)
g("s_lshl_b32", T[8], S_WAVE, 15)
g("s_lshl_b32", T[9], S_PI, 7)
g("s_add_u32", T[8], T[8], T[9])
g("s_add_u32", T[8], T[8], hex(WS_F))
g.wait(lgkm=0)
barrier()
seg_end()
g("s_cmp_gt_u32", S_WAVE, 10)
g("s_cbranch_scc1", "L_fin")
g("s_cmp_lg_u32", S_WAVE, 0)
g("s_cbranch_scc1", "L_segJ")
st_j = g.save()
g.label("L_segI")
stamp(6)
for k in range(8):
    g("ds_read_b32", f"v{32 + k}", "v24", mods=f"offset:{L_RED + 128 * k}")
g("v_lshlrev_b32", "v21", 16, "v21")
g("v_lshlrev_b32", "v22", 16, "v22")
g("s_lshl_b32", T[9], S_PI, 7)
g("s_add_u32", T[9], T[9], hex(WS_H))
tree_sum([f"v{32 + k}" for k in range(8)])
g("v_mov_b32", "v33", "v32")
g("v_permlane32_swap_b32", "v32", "v33")
g("v_add_f32", "v32", "v32", "v33")
bf16r("v32", "v32")
g("v_add_f32", "v26", "v32", "v21")
bf16r("v26", "v26")
setexec("0xffffffff")
g("buffer_store_dword", "v26", "v25", SRD_WS, T[9], mods="offen sc1")
setexec(-1)
seg_end()
g.label("L_segJ")
g.merge(st_j)
g("s_lshl_b32", T[9], S_WAVE, 3)
g("v_add_u32", "v27", T[9], "v18")
g("v_cmp_gt_u32", "vcc", NFFN, "v27")
poll_gather([40], ["v17"], T[8], ["vcc"], slp=CFG["fsleep"])
xlane_sum(40, 36)
setexec("0xff")
g("ds_write_b128", "v19", "v[40:43]", mods=f"offset:{L_RED + 2048}")
setexec(-1)
g.wait(lgkm=0)
barrier()
g("s_cbranch_execz", "L_j2")
g("s_cmp_lg_u32", S_WAVE, 0)
g("s_cbranch_scc1", "L_fin")
g.label("L_j2")
g("v_lshrrev_b32", "v27", 5, "v0")
g("v_mul_u32_u24", "v27", 768, "v27")
g("v_add_u32", "v27", "v27", "v25")
for k in range(6):
    g("ds_read_b32", f"v{32 + k}", "v27", mods=f"offset:{L_RED + 2048 + 128 * k}")
g("s_mov_b32", T[0], -1)
g("s_mov_b32", T[1], 0)
g("v_cndmask_b32", "v37", 0, "v37", f"s[{T[0][1:]}:{T[1][1:]}]")
tree_sum([f"v{32 + k}" for k in range(6)])
g("v_mov_b32", "v33", "v32")
g("v_permlane32_swap_b32", "v32", "v33")
g("v_add_f32", "v32", "v32", "v33")
bf16r("v32", "v32")
g("v_add_f32", "v32", "v32", "v22")
bf16r("v32", "v32")
g("v_add_f32", "v32", "v32", "v26")
g("v_cvt_pk_bf16_f32", "v32", "v32", "v32")
setexec("0xffffffff")
g("buffer_store_short", "v32", "v20", SRD_OUT, TX, mods="offen")
setexec(-1)
stamp(9)
seg_end()
g.dry_guard = False

g.label("L_fin")
if CFG["diag"]:
    g.nop(8)
    g.wait(vm=0, lgkm=0)
    diag_store()
g.label("L_end")
g("s_endpgm")
if not CFG["dry"]:
    g.label("L_dryret")
    g("s_endpgm")

hdr = open("cdna_kernels/" + NAME + ".s.ref").read().split("\n")
head = []
for line in hdr:
    if line.startswith("; @launch"):
        head.append(f"; @launch grid=(256,1,1) block=(1024,1,1) lds={LDS_BYTES}")
    elif line.startswith(";"):
        head.append(line)
    else:
        break
src = "\n".join(head) + "\n"
src += f""".amdgcn_target "amdgcn-amd-amdhsa--gfx950"
.text
.globl {NAME}_kernel
.p2align 8
.type {NAME}_kernel,@function
{NAME}_kernel:
"""
src += g.text()
src += f""".section .rodata,"a"
.p2align 6
.amdhsa_kernel {NAME}_kernel
  .amdhsa_next_free_vgpr 128
  .amdhsa_next_free_sgpr 102
  .amdhsa_accum_offset 128
  .amdhsa_group_segment_fixed_size 0
  .amdhsa_kernarg_size 104
  .amdhsa_user_sgpr_count 2
  .amdhsa_user_sgpr_kernarg_segment_ptr 1
  .amdhsa_system_sgpr_workgroup_id_x 1
.end_amdhsa_kernel
"""
open(sys.argv[1], "w").write(src)
print("instructions:", g.ninstr)
```

```python
import sys
import struct
from asmgen import Gen

NAME = "sequential_preLN__mha_block_cached__dense_activation_gelu__decode"

CFG = dict(
    kv_mods="nt", w_mods="nt", diag=0, spin_limit=200000,
    D=2,
    DW=0,
    wo0=5,
    stpos=9,
    stuse=10,
    rchk=14,
    b1pos="K5",
    drypos="K6",
    gpos="K12",
    qbar="K15",
    qx=1,
    dry=1,
    hsh=7,
    prio=0,
    sleep=0,
    sleep1=0,
    athr=6,
    asleep=1,
    rep=1,
    d0=2,
    dq=0,
    dry2=1,
    wopos="3,6,9,12,15,18,21,24",
    word=13,
    fspin=2,
    pdly=2,
    gdly=3,
    nob1=0,
    nob2=0,
    noclr=0,
    nost=0,
    nowo=0,
    nokc=0,
    nend=0,
    dend=4,
    zsleep=0,
    hsleep=1,
    ysleep=1,
    fsleep=1,
)
for a in sys.argv[2:]:
    k, v = a.split("=", 1)
    if isinstance(CFG[k], int):
        v = int(v)
    CFG[k] = v

NFFN = 86
WS_ST = 0x0
WS_H = 0x8000
WS_Y = 0x10000
WS_F = 0x100000
WS_QP = 0x180000
WS_HR = 0x1d0000
WS_DIAG = 0x200000
WS_SIZE = 0x400000
NONCE = "s[40:41]"
N_LO, N_HI = "s40", "s41"
PSTR = 80
APITCH = 272
L_RED = 8192
L_PART = 0
L_QB = 20480
L_YP = 20736
L_ZP = 20736
L_CS = 21248
L_STAT = 21504
L_HN = 23552 + 16384
L_WST = 21536
L_NONCE = 21520
WPITCH = 1056
L_WO = 22528
L_W1 = 23552
LDS_BYTES = 22528 + 128 * 1056

S_WAVE, S_H, S_B, S_SPL = "s3", "s4", "s5", "s6"
SRD_K, SRD_V, SRD_WQ, SRD_WO = "s[44:47]", "s[48:51]", "s[52:55]", "s[56:59]"
SRD_X, SRD_WS, SRD_DBG, SRD_W1 = "s[60:63]", "s[64:67]", "s[68:71]", "s[72:75]"
SRD_W2, SRD_B1, SRD_B2, SRD_OUT = "s[76:79]", "s[80:83]", "s[84:87]", "s[88:91]"
S_KV, S_T, S_WO, S_M, S_BH, S_PI = "s92", "s93", "s94", "s95", "s96", "s97"
LIVE = "s[98:99]"
S_LOG2E, S_SCALE = "s42", "s43"
T = [f"s{16 + i}" for i in range(14)]
S_IT = "s29"
S_Y = "s27"
STAMP0 = 30
DPPF = "row_mask:0xf bank_mask:0xf"
full = (1 << 64) - 1


def vr(a, n=4):
    return f"v[{a}:{a + n - 1}]"


def f32hex(x):
    return "0x%08x" % struct.unpack("<I", struct.pack("<f", x))[0]


g = Gen()


def stamp(slot):
    if not CFG["diag"]:
        return
    lab = None
    if g.dry_guard:
        lab = g.newlabel("Lst")
        g("s_cbranch_execz", lab)
    g("s_memrealtime", "s[100:101]")
    g.wait(lgkm=0)
    g("s_mov_b32", f"s{STAMP0 + slot}", "s100")
    if lab:
        g.label(lab)


def srd(dst_base, ptr_lo, nbytes):
    g("s_mov_b32", f"s{dst_base}", f"s{ptr_lo}")
    g("s_and_b32", f"s{dst_base + 1}", f"s{ptr_lo + 1}", "0xffff")
    g("s_mov_b32", f"s{dst_base + 2}", hex(nbytes))
    g("s_mov_b32", f"s{dst_base + 3}", "0x00020000")


def setexec(m):
    if g.dry_guard:
        if m == -1:
            g("s_mov_b64", "exec", LIVE)
        else:
            g("s_and_b64", "exec", LIVE, m)
    else:
        g("s_mov_b64", "exec", m)


def barrier():
    if g.dry_guard:
        lab = g.newlabel("Lb")
        g("s_cbranch_execz", lab)
        g("s_barrier")
        g.label(lab)
    else:
        g("s_barrier")


def seg_end():
    g("s_cbranch_execz", "L_dryret")


def wave_reduce(op, regs):
    for sh in (8, 4, 2, 1):
        for r in regs:
            g(op + "_dpp", r, r, r, mods=f"row_ror:{sh} {DPPF}")
    for r in regs:
        g(op + "_dpp", r, r, r, mods="row_bcast:15 row_mask:0xa bank_mask:0xf")
    for r in regs:
        g(op + "_dpp", r, r, r, mods="row_bcast:31 row_mask:0xc bank_mask:0xf")


def bf16r(dst, src, tmp=None):
    t = tmp or dst
    g("v_cvt_pk_bf16_f32", t, src, src)
    g("v_and_b32", dst, "0xffff0000", t)


def bf16r2(a, b, tmp):
    g("v_cvt_pk_bf16_f32", tmp, a, b)
    g("v_lshlrev_b32", a, 16, tmp)
    g("v_and_b32", b, "0xffff0000", tmp)


def unpack(dlo, dhi, src):
    g("v_lshlrev_b32", dlo, 16, src)
    g("v_and_b32", dhi, "0xffff0000", src)


def tree_sum(regs, op="v_add_f32"):
    regs = list(regs)
    while len(regs) > 1:
        nxt = []
        for i in range(0, len(regs) - 1, 2):
            g(op, regs[i], regs[i], regs[i + 1])
            nxt.append(regs[i])
        if len(regs) % 2:
            nxt.append(regs[-1])
        regs = nxt
    return regs[0]


def bmask_mfma(D, A, val, first, bcast=None):
    for r in range(4):
        if bcast is None:
            g("v_and_b32", f"v{8 + r}", val, f"v{4 + r}")
        else:
            g("v_and_b32_dpp", f"v{8 + r}", val, f"v{4 + r}", mods=f"row_newbcast:{bcast} {DPPF}")
    g("v_mfma_f32_16x16x32_bf16", D, A, "v[8:11]", "0" if first else D)


def poll_one(voff, soff, lane_mask, imm=0):
    g("s_and_b64", "exec", LIVE, hex(lane_mask))
    g("s_mov_b32", S_IT, 0)
    g.flush_hazards()
    L = g.newlabel("Lp1")
    Ld = g.newlabel("Lp1done")
    g("s_cbranch_execz", Ld)
    g.label(L)
    g("buffer_load_dword", "v31", voff, SRD_WS, soff, mods=(f"offen offset:{imm + 12} sc1"))
    sv = g.dry_guard
    g.dry_guard = False
    g.wait(vm=0)
    g.dry_guard = sv
    g("v_cmp_eq_u32", "vcc", -1, "v31")
    g("s_add_u32", S_IT, S_IT, 1)
    g("s_cmp_eq_u64", "vcc", 0)
    g("s_cbranch_scc1", Ld)
    g("s_cmp_lt_u32", S_IT, CFG["spin_limit"])
    if CFG["sleep1"]:
        g("s_sleep", CFG["sleep1"])
    g("s_cbranch_scc1", L)
    g.label(Ld)
    g("s_mov_b64", "exec", LIVE)


def poll_gather(dsts, voffs, soff, masks, imm=None, adaptive=False, slp=None):
    pend = [f"s[{16 + 2 * k}:{17 + 2 * k}]" for k in range(len(dsts))]
    for k, m in enumerate(masks):
        if m == full:
            g("s_mov_b64", pend[k], LIVE)
        elif isinstance(m, str):
            g("s_and_b64", pend[k], LIVE, m)
        else:
            assert m < (1 << 31)
            g("s_and_b64", pend[k], LIVE, hex(m))
    g("s_mov_b32", S_IT, 0)
    g.flush_hazards()
    L = g.newlabel("Lpoll")
    Ld = g.newlabel("Lpolldone")
    g.label(L)
    for k, d in enumerate(dsts):
        g("s_mov_b64", "exec", pend[k])
        mods = "offen sc1"
        if imm and imm[k]:
            mods = f"offen offset:{imm[k]} sc1"
        g("buffer_load_dwordx4", vr(d), voffs[k], SRD_WS, soff, mods=mods)
    g("s_mov_b64", "exec", LIVE)
    g.wait(vm=0)
    for k, d in enumerate(dsts):
        g("s_mov_b64", "exec", pend[k])
        g("v_max3_u32", "v31", f"v{d}", f"v{d + 1}", f"v{d + 2}")
        g("v_max_u32", "v31", "v31", f"v{d + 3}")
        g("v_cmp_eq_u32", pend[k], -1, "v31")
    if len(dsts) == 1:
        g("s_or_b64", "s[100:101]", pend[0], pend[0])
    else:
        g("s_or_b64", "s[100:101]", pend[0], pend[1])
        for k in range(2, len(dsts)):
            g("s_or_b64", "s[100:101]", "s[100:101]", pend[k])
    g("s_cbranch_scc0", Ld)
    g("s_add_u32", S_IT, S_IT, 1)
    g("s_cmp_lt_u32", S_IT, CFG["spin_limit"])
    g("s_cbranch_scc0", Ld)
    if adaptive:
        g("s_bcnt1_i32_b64", "s100", "s[100:101]")
        g("s_cmp_le_u32", "s100", CFG["athr"])
        g.flush_hazards()
        g("s_cbranch_scc1", L)
        g("s_sleep", CFG["asleep"])
    elif slp:
        g("s_sleep", slp)
    g.flush_hazards()
    g("s_branch", L)
    g.label(Ld)
    g("s_mov_b64", "exec", LIVE)
    g.flush_hazards()


def poll_tag(dst, voff, soff, mask, pre=False):
    pend = "s[16:17]"
    if mask == full:
        g("s_mov_b64", pend, LIVE)
    else:
        g("s_and_b64", pend, LIVE, mask)
    g("s_mov_b32", S_IT, 0)
    g.flush_hazards()
    L = g.newlabel("Lpt")
    Ld = g.newlabel("Lptdone")
    Lc = g.newlabel("Lptchk")
    if pre:
        g("s_branch", Lc)
    g.label(L)
    g("s_mov_b64", "exec", pend)
    g("buffer_load_dwordx4", vr(dst), voff, SRD_WS, soff, mods="offen sc1")
    g("s_mov_b64", "exec", LIVE)
    g.wait(vm=0)
    g.label(Lc)
    g("s_mov_b64", "exec", pend)
    g("v_cmp_ne_u64", pend, NONCE, vr(dst + 2, 2))
    g("s_or_b64", "s[100:101]", pend, pend)
    g("s_cbranch_scc0", Ld)
    g("s_add_u32", S_IT, S_IT, 1)
    g("s_cmp_lt_u32", S_IT, CFG["spin_limit"])
    g("s_cbranch_scc0", Ld)
    g("s_sleep", 2)
    g.flush_hazards()
    g("s_branch", L)
    g.label(Ld)
    g("s_mov_b64", "exec", LIVE)
    g.flush_hazards()


def diag_store():
    if CFG["diag"] == 2:
        lab = g.newlabel("Ldd")
        g("s_cmp_lg_u32", S_WAVE, 0)
        g("s_cbranch_scc1", lab)
        g("s_cmp_eq_u32", "s2", 255)
        g("s_cselect_b32", "s7", 8, 0)
        g("s_cmp_eq_u32", "s2", 5)
        g("s_cselect_b32", "s7", 36, "s7")
        g("s_cmp_eq_u32", "s7", 0)
        g("s_cbranch_scc1", lab)
        g("v_mov_b32", "v30", 0)
        for n, i in enumerate((0, 1, 2, 3, 5, 6, 9)):
            g("s_sub_u32", "s8", f"s{STAMP0 + i}", N_LO)
            g("v_writelane_b32", "v30", "s8", n)
        g("v_lshlrev_b32", "v29", 2, "v0")
        g("s_mov_b64", "exec", "0x7f")
        g("buffer_store_dword", "v30", "v29", SRD_DBG, "s7", mods="offen")
        g.label(lab)
        return
    g("v_mov_b32", "v30", 0)
    for i in range(10):
        g("v_writelane_b32", "v30", f"s{STAMP0 + i}", i)
    g("s_lshl_b32", "s7", "s2", 4)
    g("s_add_u32", "s7", "s7", S_WAVE)
    g("s_lshl_b32", "s7", "s7", 6)
    g("s_add_u32", "s7", "s7", hex(WS_DIAG))
    g("v_lshlrev_b32", "v29", 2, "v0")
    g("s_mov_b64", "exec", "0xffff")
    g("buffer_store_dword", "v30", "v29", SRD_WS, "s7", mods="offen")


g("s_cmp_ge_u32", "s2", 256)
g("s_cbranch_scc1", "L_end")
g("s_load_dwordx16", "s[16:31]", "s[0:1]", 0)
g("s_load_dwordx8", "s[32:39]", "s[0:1]", 64)
g("s_load_dwordx2", "s[40:41]", "s[0:1]", 96)
g("v_readfirstlane_b32", S_WAVE, "v0")
g("v_and_b32", "v0", 63, "v0")
g("s_and_b32", "s7", "s2", 7)
g("s_lshr_b32", "s8", "s2", 3)
g("s_and_b32", "s9", "s8", 3)
g("s_lshl_b32", S_H, "s7", 2)
g("s_add_u32", S_H, S_H, "s9")
g("s_mov_b32", S_PI, S_H)
g("s_lshr_b32", "s13", "s8", 2)
g("s_lshr_b32", S_B, "s13", 2)
g("s_and_b32", S_SPL, "s13", 3)
g("s_lshr_b32", S_WAVE, S_WAVE, 6)
g("v_lshlrev_b32", "v1", 4, "v0")
g("v_lshrrev_b32", "v3", 4, "v0")
g("v_and_b32", "v2", 15, "v0")
g("v_lshlrev_b32", "v2", 4, "v2")
g("v_lshl_add_u32", "v2", "v3", 13, "v2")
g("v_lshlrev_b32", "v3", 1, "v3")
g("v_bfe_u32", "v8", "v0", 3, 1)
g("v_lshl_add_u32", "v3", "v8", 10, "v3")
g("s_lshl_b32", S_BH, S_B, 5)
g("s_add_u32", S_BH, S_BH, S_H)
g("s_lshl_b32", S_KV, S_BH, 20)
g("s_lshl_b32", "s7", S_SPL, 18)
g("s_add_u32", S_KV, S_KV, "s7")
g("s_lshl_b32", "s7", S_WAVE, 10)
g("s_add_u32", S_KV, S_KV, "s7")
g("s_lshl_b32", "s11", "s13", 4)
g("s_add_u32", "s11", "s11", S_WAVE)
g("s_lshl_b32", "s12", "s11", 15)
g("s_lshl_b32", "s7", S_H, 8)
g("s_add_u32", "s12", "s12", "s7")
g("s_lshl_b32", "s11", "s11", 3)
g.wait(lgkm=0)
srd(44, 18, 2 * 32 * 4096 * 128 * 2)

kvm = CFG["kv_mods"]
wm = CFG["w_mods"]


def vreg(i):
    return 32 + 4 * i if i < 8 else 64 + 4 * (i - 8)


def kv_load(dst, srd_, i):
    g("s_add_u32", S_T, S_KV, i * 16384)
    g("buffer_load_dwordx4", vr(dst), "v1", srd_, S_T, mods=f"offen {kvm}".strip())


def wo_load(i):
    if CFG["nowo"]:
        g("s_mov_b32", "m0", L_WO)
        g("buffer_load_dword", "v1", SRD_X, 0, mods="offen lds")
        return
    g("s_add_u32", S_T, S_WO, i * 1024)
    g("s_mul_i32", "s101", S_WAVE, 8 * WPITCH)
    g("s_add_u32", "m0", "s101", L_WO + i * WPITCH)
    g("buffer_load_dwordx4", "v1", SRD_WO, S_T, mods=f"offen {wm} lds")


def st_load():
    g("v_lshlrev_b32", "v3", 3, "v0")
    g("s_lshl_b32", "s7", S_BH, 9)
    g("buffer_load_dwordx2", "v[32:33]", "v3", SRD_WS, "s7", mods="offen sc1")


D = CFG["D"]
stream = []
wopos = [int(x) for x in CFG["wopos"].split(",")]
base = []
for i in range(16):
    base.append((f"K{i}", None, (lambda i=i: kv_load(64 + 4 * i, SRD_K, i)), D))
for i in range(16):
    base.append((f"V{i}", "QDONE" if i < 8 else f"K{i - 8}", (lambda i=i: kv_load(vreg(i), SRD_V, i)), D))
for n, e in enumerate(base):
    stream.append(e)
    for i, p in enumerate(wopos):
        if p == n:
            stream.append((f"XO{i}", "WOK", (lambda i=i: wo_load(i)), 99))
for idx in range(min(CFG["dq"], len(stream))):
    nm, pre, fn, dd = stream[idx]
    if dd < 99:
        stream[idx] = (nm, pre, fn, dd + 1)
NE = CFG["nend"]
for idx in range(len(stream) - NE, len(stream)):
    nm, pre, fn, dd = stream[idx]
    if dd < 99:
        stream[idx] = (nm, pre, fn, CFG["dend"])
freed = set()
spos = [0]
issued = set()
heavy = set()
dma_uids = set()


def pump(n=1, pace=True, until=None):
    cnt = 0
    while spos[0] < len(stream):
        if until is not None:
            if until in issued:
                return
        elif cnt >= n:
            return
        name, pre, fn, dd = stream[spos[0]]
        if pre is not None and pre not in freed:
            if until is not None:
                raise RuntimeError(f"blocked at {name} needs {pre}")
            return
        if pace:
            hv = 0
            for uid, ent in sorted(g.vm.items(), key=lambda kv: kv[1][0]):
                if uid in heavy:
                    hv += 1
                    if hv == dd:
                        g.wait(vm=ent[0])
                        break
        fn()
        if name[0] in "KVW":
            heavy.add(g.uid)
        if name[0] == "X":
            dma_uids.add(g.uid)
        issued.add(name)
        spos[0] += 1
        cnt += 1


pump(1, pace=False)
srd(60, 16, 2048)
g("buffer_load_dwordx4", "v[24:27]", "v1", SRD_X, 0, mods="offen")
g("buffer_load_dwordx4", "v[28:31]", "v1", SRD_X, 0, mods="offen offset:1024")
g("buffer_load_ushort", "v3", "v3", SRD_X, "s11", mods="offen")
srd(52, 22, 512 * 4096 * 2)
g("buffer_load_dwordx4", "v[60:63]", "v2", SRD_WQ, "s12", mods=f"offen {wm}".strip())
pump(CFG["d0"] - 1, pace=False)
srd(64, 40, WS_SIZE)
srd(68, 38, 256)
g("s_lshr_b32", "s7", "s2", 3)
g("s_or_b32", "s7", "s7", S_WAVE)
g("s_cmp_lg_u32", "s7", 0)
g("s_cbranch_scc1", "L_nononce")
st_skip = g.save()
g("s_memrealtime", "s[8:9]")
g("v_mov_b32", "v12", 0)
g("v_mov_b32", "v10", 0)
g("v_mov_b32", "v11", 0)
g.wait(lgkm=0)
g("s_bitset1_b32", "s9", 31)
g("v_mov_b32", "v8", "s8")
g("v_mov_b32", "v9", "s9")
g("s_mov_b64", "exec", 1)
g("buffer_atomic_cmpswap_x2", "v[8:11]", "v12", SRD_DBG, 0, mods="offen sc1")
g("s_mov_b64", "exec", -1)
g.nop(2)
g.label("L_nononce")
g.merge(st_skip)
if CFG["diag"]:
    g("s_memrealtime", "s[100:101]")
    g.wait(lgkm=0)
    g("s_mov_b32", "s15", "s100")

g("s_cmp_lg_u32", S_WAVE, 1)
g("s_cbranch_scc1", "L_noclear")
st_skip = g.save()
for r in range(4):
    g("v_mov_b32", f"v{8 + r}", -1)
g("s_lshl_b32", "s7", S_B, 7)
g("s_lshl_b32", "s8", S_H, 2)
g("s_add_u32", "s7", "s7", "s8")
g("s_add_u32", "s7", "s7", S_SPL)
g("s_lshl_b32", "s7", "s7", 11)
g("s_add_u32", "s7", "s7", hex(WS_Y))
g("buffer_store_dwordx4", "v[8:11]", "v1", SRD_WS, "s7", mods="offen sc1")
g("buffer_store_dwordx4", "v[8:11]", "v1", SRD_WS, "s7", mods="offen offset:1024 sc1")
g("s_mov_b64", "exec", "0xff")
g("ds_write_b128", "v1", "v[8:11]", mods=f"offset:{L_WST}")
g("s_cmp_lt_u32", "s2", 224)
g("s_cbranch_scc1", "L_noclrh")
g("s_lshl_b32", "s7", S_PI, 7)
g("s_add_u32", "s7", "s7", hex(WS_H))
g("buffer_store_dwordx4", "v[8:11]", "v1", SRD_WS, "s7", mods="offen sc1")
g.label("L_noclrh")
g("s_mov_b64", "exec", -1)
g("s_cmp_ge_u32", "s2", NFFN)
g("s_cbranch_scc1", "L_noclear")
st_skip2 = g.save()
g("s_lshl_b32", "s7", "s2", 12)
g("s_add_u32", "s7", "s7", hex(WS_F))
for k in range(4):
    g("buffer_store_dwordx4", "v[8:11]", "v1", SRD_WS, "s7",
      mods=f"offen offset:{k * 1024} sc1" if k else "offen sc1")
g.label("L_noclear")
g.merge(st_skip)
g.merge(st_skip2)
uids_before_clear_end = set(g.vm.keys())
g("v_mov_b32", "v22", 0)
g("v_mov_b32", "v23", 0)

srd(48, 20, 2 * 32 * 4096 * 128 * 2)
srd(56, 24, 4096 * 512 * 2)
srd(72, 28, 512 * 1376 * 2)
srd(76, 32, 1376 * 512 * 2)
srd(80, 30, 1376 * 2)
srd(84, 34, 512 * 2)
srd(88, 36, 2048)
if CFG["diag"]:
    g("s_mov_b32", f"s{STAMP0}", "s15")
    for i in range(1, 10):
        g("s_mov_b32", f"s{STAMP0 + i}", 0)
g("s_mov_b64", LIVE, -1)
if CFG["prio"]:
    for lvl in (1, 2, 3):
        lab = g.newlabel("Lprio")
        g("s_cmp_lt_u32", S_WAVE, 4 * lvl if CFG["prio"] == 1 else {1: 8, 2: 12, 3: 99}[lvl])
        g("s_cbranch_scc1", lab)
        g("s_setprio", lvl)
        g.label(lab)
g("s_mov_b32", S_LOG2E, "0x3fb8aa3b")
g("s_mov_b32", S_SCALE, "0x3db504f3")
g("s_lshl_b32", S_WO, S_H, 17)
g("s_lshl_b32", "s7", S_WAVE, 13)
g("s_add_u32", S_WO, S_WO, "s7")
freed.add("WOK")
for r in (16, 17, 18, 19, 20, 21, 52, 53, 54):
    g("v_mov_b32", f"v{r}", 0)
g("v_and_b32", "v12", 1, "v0")
g("v_lshlrev_b32", "v12", 4, "v12")
g("v_mov_b32", "v13", "0xffff")
g("v_lshlrev_b32", "v13", "v12", "v13")
g("v_bfe_u32", "v12", "v0", 1, 2)
for r in range(4):
    g("v_cmp_eq_u32", "vcc", r, "v12")
    g("v_cndmask_b32", f"v{4 + r}", 0, "v13", "vcc")

for b in range(2):
    for k in range(4):
        unpack(f"v{32 + 8 * b + 2 * k}", f"v{33 + 8 * b + 2 * k}", f"v{24 + 4 * b + k}")
for b in range(2):
    base = 32 + 8 * b
    g("v_add_f32", f"v{8 + b}", f"v{base}", f"v{base + 1}")
    g("v_add_f32", f"v{10 + b}", f"v{base + 2}", f"v{base + 3}")
    g("v_add_f32", f"v{12 + b}", f"v{base + 4}", f"v{base + 5}")
    g("v_add_f32", f"v{14 + b}", f"v{base + 6}", f"v{base + 7}")
for b in range(2):
    g("v_add_f32", f"v{8 + b}", f"v{8 + b}", f"v{10 + b}")
    g("v_add_f32", f"v{12 + b}", f"v{12 + b}", f"v{14 + b}")
for b in range(2):
    g("v_add_f32", f"v{8 + b}", f"v{8 + b}", f"v{12 + b}")
wave_reduce("v_add_f32", ["v8", "v9"])
g("v_readlane_b32", "s7", "v8", 63)
g("v_readlane_b32", "s8", "v9", 63)
pump(1)
g("s_cmp_lg_u32", S_WAVE, 1)
g("s_cbranch_scc1", "L_nn1")
st_skip = g.save()
g("buffer_load_dwordx2", "v[22:23]", "v20", SRD_DBG, 0, mods="offen sc1")
g.label("L_nn1")
g.merge(st_skip)
g("v_mov_b32", "v12", "0x3b000000")
g("v_mul_f32", "v16", "s7", "v12")
g("v_mul_f32", "v17", "s8", "v12")
for b in range(2):
    for k in range(8):
        g("v_sub_f32", f"v{32 + 8 * b + k}", f"v{32 + 8 * b + k}", f"v{16 + b}")
for b in range(2):
    g("v_mul_f32", f"v{8 + b}", f"v{32 + 8 * b}", f"v{32 + 8 * b}")
for k in range(1, 8):
    for b in range(2):
        g("v_fmac_f32", f"v{8 + b}", f"v{32 + 8 * b + k}", f"v{32 + 8 * b + k}")
wave_reduce("v_add_f32", ["v8", "v9"])
g("v_readlane_b32", "s7", "v8", 63)
g("v_readlane_b32", "s8", "v9", 63)
pump(1)
g("v_mul_f32", "v18", "s7", "v12")
g("v_mul_f32", "v19", "s8", "v12")
g("s_mov_b32", "s8", "0xff00ff00")
g("s_mov_b32", "s9", "0xff00ff00")
g("v_cndmask_b32", "v13", "v16", "v17", "s[8:9]")
g("v_cndmask_b32", "v14", "v18", "v19", "s[8:9]")
bf16r2("v13", "v14", "v15")
g("v_add_f32", "v14", "0x3727c5ac", "v14")
bf16r("v14", "v14")
g("v_sqrt_f32", "v14", "v14")
bf16r("v14", "v14")
g("v_rcp_f32", "v14", "v14")
g("v_lshlrev_b32", "v3", 16, "v3")
g("v_sub_f32", "v3", "v3", "v13")
bf16r("v3", "v3")
g("v_mul_f32", "v3", "v3", "v14")
g("v_cvt_pk_bf16_f32", "v16", "v3", "v3")
bmask_mfma("v[12:15]", "v[60:63]", "v16", True)
g("v_lshrrev_b32", "v16", 4, "v0")
g("v_and_b32", "v17", 7, "v0")
g("v_lshl_add_u32", "v16", "v16", 5, "v17")
g("v_bfe_u32", "v17", "v0", 3, 1)
g("v_lshl_add_u32", "v16", "v17", 7, "v16")
g("v_mul_u32_u24", "v16", PSTR, "v16")
g("s_lshl_b32", "s7", S_WAVE, 2)
g("v_add_u32", "v16", "s7", "v16")
for r in range(4):
    g("ds_write_b32", "v16", f"v{12 + r}", mods=f"offset:{L_PART + r * 8 * PSTR}")
pump(until=CFG["b1pos"])
pump(CFG["qx"], pace=False)
g("s_cmp_lg_u32", S_WAVE, 1)
g("s_cbranch_scc1", "L_clrok")
st_skip = g.save()
pend_clear = [v[0] for k, v in g.vm.items() if k in uids_before_clear_end]
if pend_clear:
    g.wait(vm=min(pend_clear))
g("v_cmp_ne_u32", "vcc", 0, "v23")
g("s_cmp_lg_u64", "vcc", 0)
g("s_cbranch_scc1", "L_nonceok")
st_ok = g.save()
g("s_memrealtime", "s[8:9]")
g("v_mov_b32", "v20", 0)
g("v_mov_b32", "v10", 0)
g("v_mov_b32", "v11", 0)
g.wait(lgkm=0)
g("s_bitset1_b32", "s9", 31)
g("v_mov_b32", "v8", "s8")
g("v_mov_b32", "v9", "s9")
g("s_mov_b64", "exec", 1)
g("buffer_atomic_cmpswap_x2", "v[8:11]", "v20", SRD_DBG, 0, mods="offen sc0 sc1")
g.wait(vm=0)
g("v_cmp_eq_u32", "vcc", 0, "v9")
g("v_mov_b32", "v22", "s8")
g("v_mov_b32", "v23", "s9")
g("v_cndmask_b32", "v22", "v8", "v22", "vcc")
g("v_cndmask_b32", "v23", "v9", "v23", "vcc")
g("s_mov_b64", "exec", -1)
g.label("L_nonceok")
g.merge(st_ok)
g("v_mov_b32", "v20", 0)
g("s_mov_b64", "exec", 1)
g("ds_write_b64", "v20", "v[22:23]", mods=f"offset:{L_NONCE}")
g("s_mov_b64", "exec", -1)
g.label("L_clrok")
g.merge(st_skip)
g.wait(lgkm=0)
if not CFG["nob1"]:
    g("s_barrier")
g("v_mov_b32", "v20", 0)
g("ds_read_b64", "v[22:23]", "v20", mods=f"offset:{L_NONCE}")
g("v_readfirstlane_b32", N_LO, "v22")
g("v_readfirstlane_b32", N_HI, "v23")
g("s_cmp_lg_u32", S_WAVE, 2)
g("s_cbranch_scc1", "L_nopub")
st_skip = g.save()
g("v_mul_u32_u24", "v16", 4 * PSTR, "v0")
for half in range(2):
    for oo in range(2):
        for k in range(4):
            g("ds_read_b128", vr(32 + 16 * oo + 4 * k), "v16",
              mods=f"offset:{L_PART + (2 * half + oo) * PSTR + 16 * k}")
    for oo in range(2):
        tree_sum([f"v{32 + 16 * oo + k}" for k in range(16)])
        g("v_mov_b32", f"v{8 + 4 * half + oo}", f"v{32 + 16 * oo}")
    g("v_mov_b32", f"v{10 + 4 * half}", "v22")
    g("v_mov_b32", f"v{11 + 4 * half}", "v23")
g("s_lshl_b32", "s7", S_H, 14)
g("s_lshl_b32", "s8", S_B, 13)
g("s_add_u32", "s7", "s7", "s8")
g("s_lshl_b32", "s8", S_SPL, 11)
g("s_add_u32", "s7", "s7", "s8")
g("s_add_u32", "s7", "s7", hex(WS_QP))
g("buffer_store_dwordx4", "v[8:11]", "v1", SRD_WS, "s7", mods="offen sc1")
g("buffer_store_dwordx4", "v[12:15]", "v1", SRD_WS, "s7", mods="offen offset:1024 sc1")
g.label("L_nopub")
g.merge(st_skip)

pump(until=CFG["drypos"])
SEGS = ["A", "B", "C", "D", "E", "F", "H", "I", "J"]
if CFG["dry2"]:
    SEGS = SEGS + ["K0", "K2", "SM", "V0", "V9", "V12"]
if CFG["dry"]:
    pump(1, pace=False)
    g.flush_hazards()
    g("s_mov_b64", LIVE, 0)
    g("s_mov_b64", "exec", 0)
    for n, sg in enumerate(SEGS):
        g("s_cmp_eq_u32", S_WAVE, (n + 4) % 16 if n != 14 else 2)
        g("s_cbranch_scc1", f"L_seg{sg}")
    g.label("L_dryret")
    g("s_mov_b64", LIVE, -1)
    g("s_mov_b64", "exec", -1)
    g.wait(lgkm=0)
    g.nop(10)

GW = 3 if not CFG["nob2"] else 99


def q_loads():
    g("s_lshl_b32", "s7", S_H, 14)
    g("s_lshl_b32", "s8", S_B, 9)
    g("s_add_u32", "s7", "s7", "s8")
    g("s_add_u32", "s7", "s7", hex(WS_QP))
    for u in range(4):
        for part in range(2):
            g("buffer_load_dwordx4", vr(32 + 8 * u + 4 * part), "v12", SRD_WS, "s7",
              mods=f"offen offset:{part * 1024} sc1" if part else "offen sc1")
        if u < 3:
            g("s_add_u32", "s7", "s7", 4096)


def q_check():
    for k in range(8):
        g("v_xor_b32", f"v{16 + k}", N_LO, f"v{34 + 4 * k}")
        g("v_xor_b32", f"v{24 + k}", N_HI, f"v{35 + 4 * k}")
    for k in range(0, 16, 4):
        g("v_or3_b32", f"v{16 + k}", f"v{16 + k}", f"v{17 + k}", f"v{18 + k}")
    for k in range(0, 16, 4):
        g("v_or_b32", f"v{16 + k}", f"v{16 + k}", f"v{19 + k}")
    g("v_or3_b32", "v16", "v16", "v20", "v24")
    g("v_or_b32", "v16", "v16", "v28")
    g("v_cmp_ne_u32", "vcc", 0, "v16")
    g("s_cmp_eq_u64", "vcc", 0)


pump(until=CFG["gpos"])
g("s_cmp_lg_u32", S_WAVE, GW)
g("s_cbranch_scc1", "L_g1")
st_skip = g.save()
g("v_lshrrev_b32", "v12", 5, "v0")
g("v_and_b32", "v13", 31, "v0")
g("v_lshlrev_b32", "v13", 4, "v13")
g("v_lshl_add_u32", "v12", "v12", 11, "v13")
q_loads()
g.label("L_g1")
g.merge(st_skip)
pump(CFG["gdly"])
g("s_cmp_lg_u32", S_WAVE, GW)
g("s_cbranch_scc1", "L_nogather")
st_skip = g.save()
q_check()
g("s_cbranch_scc1", "L_qok")
st_ok = g.save()
g("s_mov_b32", S_IT, 0)
g.label("L_qspin")
q_loads()
g.wait(vm=0)
q_check()
g("s_cbranch_scc1", "L_qok")
g("s_add_u32", S_IT, S_IT, 1)
g("s_cmp_lt_u32", S_IT, CFG["spin_limit"])
g("s_sleep", CFG["fspin"])
g("s_cbranch_scc1", "L_qspin")
g.label("L_qok")
g.merge(st_ok)
CI = [0, 1, 4, 5]
for r in range(4):
    g("v_add_f32", f"v{16 + r}", f"v{32 + CI[r]}", f"v{40 + CI[r]}")
    g("v_add_f32", f"v{20 + r}", f"v{48 + CI[r]}", f"v{56 + CI[r]}")
for r in range(4):
    g("v_add_f32", f"v{16 + r}", f"v{16 + r}", f"v{20 + r}")
for r in range(4):
    g("v_mov_b32", f"v{20 + r}", f"v{16 + r}")
for r in range(4):
    g("v_permlane32_swap_b32", f"v{16 + r}", f"v{20 + r}")
for r in range(4):
    g("v_add_f32", f"v{16 + r}", f"v{16 + r}", f"v{20 + r}")
g("v_cvt_pk_bf16_f32", "v14", "v16", "v17")
g("v_cvt_pk_bf16_f32", "v15", "v18", "v19")
g("v_lshrrev_b32", "v13", 1, "v13")
g("ds_write_b64", "v13", "v[14:15]", mods=f"offset:{L_QB}")
g.label("L_nogather")
g.merge(st_skip)
freed.add("QDONE")
pump(until=CFG["qbar"])
pump(CFG["qx"], pace=False)
g.wait(lgkm=0)
if not CFG["nob2"]:
    g("s_barrier")
g("v_and_b32", "v12", 15, "v0")
g("v_lshlrev_b32", "v12", 4, "v12")
g("ds_read_b128", "v[8:11]", "v12", mods=f"offset:{L_QB}")
stamp(1)

g.dry_guard = bool(CFG["dry2"])
for G in range(4):
    if CFG["dry2"] and G in (0, 2):
        if G:
            seg_end()
        g.label(f"L_segK{G}")
    tgt = 4 * G + 3 + D
    nm = f"K{tgt}" if tgt < 16 else f"V{tgt - 16}"
    pump(until=nm)
    for step in range(4 if not CFG["nokc"] else 1):
        for u in range(4):
            i = 4 * G + u
            g("v_dot2_f32_bf16", f"v{16 + i}", f"v{64 + 4 * i + step}", f"v{8 + step}",
              "0" if step == 0 else f"v{16 + i}")
    for u in range(4):
        freed.add(f"K{4 * G + u}")
    pump(1)
    for sh in ((8, 4, 2, 1) if not CFG["nokc"] else ()):
        for u in range(4):
            i = 4 * G + u
            g("v_add_f32_dpp", f"v{16 + i}", f"v{16 + i}", f"v{16 + i}", mods=f"row_ror:{sh} {DPPF}")
    for u in (0, 2):
        i = 4 * G + u
        bf16r2(f"v{16 + i}", f"v{17 + i}", f"v{12 + u}")
    for u in range(4):
        i = 4 * G + u
        g("v_mul_f32", f"v{16 + i}", S_SCALE, f"v{16 + i}")
    for u in (0, 2):
        i = 4 * G + u
        bf16r2(f"v{16 + i}", f"v{17 + i}", f"v{12 + u}")

if CFG["dry2"]:
    seg_end()
    g.label("L_segSM")
pump(1)
g("v_max3_f32", "v12", "v16", "v17", "v18")
g("v_max3_f32", "v13", "v19", "v20", "v21")
g("v_max3_f32", "v14", "v22", "v23", "v24")
g("v_max3_f32", "v15", "v25", "v26", "v27")
g("v_max3_f32", "v12", "v12", "v28", "v29")
g("v_max3_f32", "v13", "v13", "v30", "v31")
g("v_max3_f32", "v12", "v12", "v13", "v14")
g("v_max_f32", "v12", "v12", "v15")
for k in range(4):
    g("v_readlane_b32", f"s{8 + k}", "v12", 16 * k)
g("v_mov_b32", "v12", "s8")
g("v_max_f32", "v12", "s9", "v12")
g("v_max_f32", "v12", "s10", "v12")
g("v_max_f32", "v12", "s11", "v12")
g("v_mul_f32", "v12", S_LOG2E, "v12")
for i in range(16):
    g("v_fma_f32", f"v{16 + i}", f"v{16 + i}", S_LOG2E, "-v12")
for i in range(16):
    g("v_exp_f32", f"v{16 + i}", f"v{16 + i}")
pump(1)
g("v_readfirstlane_b32", S_M, "v12")
g("v_add_f32", "v8", "v16", "v17")
g("v_add_f32", "v9", "v18", "v19")
g("v_add_f32", "v10", "v20", "v21")
g("v_add_f32", "v11", "v22", "v23")
g("v_add_f32", "v13", "v24", "v25")
g("v_add_f32", "v14", "v26", "v27")
g("v_add_f32", "v8", "v8", "v28")
g("v_add_f32", "v9", "v9", "v29")
g("v_add_f32", "v10", "v10", "v30")
g("v_add_f32", "v11", "v11", "v31")
tree_sum(["v8", "v9", "v10", "v11", "v13", "v14"])
for k in range(4):
    g("v_readlane_b32", f"s{8 + k}", "v8", 16 * k)
g("v_mov_b32", "v13", "s8")
g("v_add_f32", "v13", "s9", "v13")
g("v_add_f32", "v13", "s10", "v13")
g("v_add_f32", "v13", "s11", "v13")
g("s_lshl_b32", "s8", S_WAVE, 3)
g("v_mov_b32", "v8", "s8")
setexec(1)
g("ds_write_b64", "v8", "v[12:13]", mods=f"offset:{L_WST}")
setexec(-1)
for i in range(16):
    g("v_cvt_pk_bf16_f32", f"v{16 + i}", f"v{16 + i}", f"v{16 + i}")
stamp(2)


def factor():
    g("v_and_b32", "v3", 15, "v0")
    g("v_lshlrev_b32", "v3", 3, "v3")
    g("s_mov_b32", S_IT, 0)
    g.flush_hazards()
    g.label("L_stspin")
    g("ds_read_b64", "v[32:33]", "v3", mods=f"offset:{L_WST}")
    g.wait(lgkm=0)
    g("v_max_u32", "v34", "v32", "v33")
    g("v_cmp_eq_u32", "vcc", -1, "v34")
    g("s_add_u32", S_IT, S_IT, 1)
    g("s_cmp_eq_u64", "vcc", 0)
    g("s_cbranch_scc1", "L_stok")
    g("s_cmp_lt_u32", S_IT, CFG["spin_limit"])
    g("s_sleep", 1)
    g("s_cbranch_scc1", "L_stspin")
    g.label("L_stok")
    g("v_mov_b32", "v40", "v32")
    for sh in (8, 4, 2, 1):
        g("v_max_f32_dpp", "v40", "v40", "v40", mods=f"row_ror:{sh} {DPPF}")
    g("v_sub_f32", "v41", "v32", "v40")
    g("v_exp_f32", "v41", "v41")
    g("v_sub_f32", "v35", S_M, "v40")
    g("v_mul_f32", "v41", "v41", "v33")
    g("v_exp_f32", "v35", "v35")
    for sh in (8, 4, 2, 1):
        g("v_add_f32_dpp", "v41", "v41", "v41", mods=f"row_ror:{sh} {DPPF}")
    g("s_cmp_lg_u32", S_WAVE, 0)
    g("s_cbranch_scc1", "L_nostat")
    st_skip = g.save()
    g("v_mov_b32", "v42", N_LO)
    g("v_mov_b32", "v43", N_HI)
    g("s_lshl_b32", "s7", S_B, 7)
    g("s_lshl_b32", "s8", S_H, 2)
    g("s_add_u32", "s7", "s7", "s8")
    g("s_add_u32", "s7", "s7", S_SPL)
    g("s_lshl_b32", "s7", "s7", 4)
    g("v_mov_b32", "v34", 0)
    setexec(1)
    g("buffer_store_dwordx4", "v[40:43]", "v34", SRD_WS, "s7", mods="offen sc1")
    setexec(-1)
    g.label("L_nostat")
    g.merge(st_skip)
    g("v_lshrrev_b32", "v39", 4, "v0")
    g("v_bfe_u32", "v37", "v0", 2, 1)
    g("v_lshlrev_b32", "v36", 6, "v39")
    g("v_lshl_add_u32", "v36", "v37", 4, "v36")
    g("v_and_b32", "v37", 3, "v0")
    g("v_lshl_add_u32", "v36", "v37", 1, "v36")
    g("s_mul_i32", "s7", S_WAVE, APITCH)
    g("v_add_u32", "v36", "s7", "v36")
    g("v_and_b32", "v37", 15, "v0")
    g("v_mul_u32_u24", "v37", APITCH, "v37")
    g("v_lshl_add_u32", "v37", "v39", 4, "v37")
    g("v_and_b32", "v38", 7, "v0")
    g("v_lshlrev_b32", "v38", 4, "v38")
    g("v_bfe_u32", "v34", "v0", 4, 1)
    g("v_lshl_add_u32", "v38", "v34", 3, "v38")
    g("v_bfe_u32", "v34", "v0", 3, 1)
    g("v_lshl_add_u32", "v38", "v34", 2, "v38")
    g("s_lshl_b32", S_Y, S_B, 7)
    g("s_lshl_b32", "s8", S_H, 2)
    g("s_add_u32", S_Y, S_Y, "s8")
    g("s_add_u32", S_Y, S_Y, S_SPL)
    g("s_lshl_b32", S_Y, S_Y, 11)
    g("s_lshl_b32", "s8", S_WAVE, 7)
    g("s_add_u32", S_Y, S_Y, "s8")
    g("s_add_u32", S_Y, S_Y, hex(WS_Y))
    assert all(f"XO{k}" in issued for k in range(8))
    g("s_mov_b32", "s12", "0xffff0000")
    g("s_mov_b32", "s13", 0)
    g("s_mov_b32", "s14", "0x00ff00ff")
    g("s_mov_b32", "s15", "0x00ff00ff")


names = [e[0] for e in stream]
for i in range(16):
    if CFG["dry2"] and i in (0, 9, 12):
        seg_end()
        g.label(f"L_segV{i}")
    tgt = i + D
    while tgt < 16 and tgt + 1 < 16 + 8:
        nxt = tgt + 1
        if nxt < 16 and stream[names.index(f"V{nxt}")][3] >= nxt - i and stream[names.index(f"V{nxt}")][3] > D + CFG["DW"]:
            tgt = nxt
        else:
            break
    if tgt < 16:
        pump(until=f"V{tgt}")
    else:
        pump(100)
    bmask_mfma("v[12:15]", vr(vreg(i)), f"v{16 + i}", i == 0)
    freed.add(f"PV{i}")
    if i == CFG["word"]:
        assert all(f"XO{k}" in issued for k in range(8))
        assert not any(len(v[1]) == 0 and k in dma_uids for k, v in g.vm.items()), "wo DMA not known complete"
        g("v_lshrrev_b32", "v3", 2, "v0")
        g("v_mul_u32_u24", "v3", WPITCH, "v3")
        g("v_and_b32", "v8", 3, "v0")
        g("v_lshl_add_u32", "v3", "v8", 3, "v3")
        g("s_lshl_b32", "s7", S_WAVE, 6)
        g("v_add_u32", "v3", "s7", "v3")
        pump(CFG["qx"], pace=False)
        if not CFG["nob2"]:
            barrier()
        if CFG["dry2"]:
            g("s_cbranch_execz", "L_notr")
        for t in range(4):
            if t:
                g("v_add_u32", "v3", 32 * WPITCH, "v3")
            for nt in range(2):
                for hh in range(2):
                    g("ds_read_b64_tr_b16", vr(96 + 16 * nt + 4 * t + 2 * hh, 2), "v3",
                      mods=f"offset:{L_WO + hh * 16 * WPITCH + nt * 32}")
        if CFG["dry2"]:
            g.label("L_notr")
    if i == CFG["stuse"]:
        factor()
    if i == CFG["rchk"]:
        g("s_cmp_lt_u32", "s2", 224)
        g("s_cbranch_scc1", "L_norchk")
        st_skip = g.save()
        g("v_lshrrev_b32", "v52", 3, "v0")
        g("s_lshl_b32", "s7", S_WAVE, 3)
        g("v_add_u32", "v52", "s7", "v52")
        g("v_and_b32", "v53", 7, "v52")
        g("v_bfe_u32", "v54", "v52", 3, 2)
        g("v_lshl_add_u32", "v53", "v53", 2, "v54")
        g("v_lshrrev_b32", "v54", 5, "v52")
        g("v_lshl_add_u32", "v53", "v53", 2, "v54")
        g("v_lshlrev_b32", "v53", 4, "v53")
        g("v_lshlrev_b32", "v54", 4, "v52")
        g("s_lshr_b32", "s7", S_PI, 4)
        g("s_lshl_b32", "s7", "s7", 11)
        g("v_add_u32", "v54", "s7", "v54")
        g("buffer_load_dwordx4", "v[56:59]", "v53", SRD_WS, 0, mods="offen sc1")
        g("buffer_load_dwordx4", "v[60:63]", "v54", SRD_WS, 0, mods="offen sc1")
        g.label("L_norchk")
        g.merge(st_skip)
pump(100)
assert spos[0] == len(stream)
stamp(3)
if CFG["dry2"]:
    seg_end()

g.dry_guard = True
g.label("L_segA")
for r in range(4):
    g("v_mul_f32", f"v{12 + r}", f"v{12 + r}", "v35")
g("v_cvt_pk_bf16_f32", "v12", "v12", "v13")
g("v_cvt_pk_bf16_f32", "v14", "v14", "v15")
setexec("s[14:15]")
g("ds_write_b16", "v36", "v12", mods=f"offset:{L_PART + 0}")
g("ds_write_b16_d16_hi", "v36", "v12", mods=f"offset:{L_PART + 32}")
g("ds_write_b16", "v36", "v14", mods=f"offset:{L_PART + 8}")
g("ds_write_b16_d16_hi", "v36", "v14", mods=f"offset:{L_PART + 40}")
setexec(-1)
g.wait(lgkm=0)
barrier()
stamp(4)
for t in range(4):
    g("ds_read_b128", vr(64 + 4 * t), "v37", mods=f"offset:{L_PART + 64 * t}")
seg_end()
g.label("L_segB")
for t in range(4):
    for nt in range(2):
        Dn = "v[12:15]" if nt == 0 else "v[8:11]"
        g("v_mfma_f32_16x16x32_bf16", Dn, vr(64 + 4 * t), vr(96 + 16 * nt + 4 * t), "0" if t == 0 else Dn)
g("v_add_f32", "v12", "v12", "v13")
g("v_add_f32", "v14", "v14", "v15")
g("v_add_f32", "v8", "v8", "v9")
g("v_add_f32", "v10", "v10", "v11")
g("v_add_f32", "v12", "v12", "v14")
g("v_add_f32", "v8", "v8", "v10")
for op in ("v_permlane16_swap_b32", "v_permlane32_swap_b32"):
    g("v_mov_b32", "v13", "v12")
    g("v_mov_b32", "v9", "v8")
    g(op, "v12", "v13")
    g(op, "v8", "v9")
    g("v_add_f32", "v12", "v12", "v13")
    g("v_add_f32", "v8", "v8", "v9")
g("v_cndmask_b32", "v12", "v12", "v8", "s[12:13]")
g("s_mov_b32", "exec_hi", 0)
g("s_mov_b32", "exec_lo", f"s{LIVE[2:LIVE.index(':')]}")
g("buffer_store_dword", "v12", "v38", SRD_WS, S_Y, mods="offen sc1")
setexec(-1)
stamp(5)
seg_end()
st_y = g.save()
g("s_cmp_ge_u32", "s2", 224)
g("s_cbranch_scc1", "L_segH")
g("s_cmp_ge_u32", "s2", NFFN)
g("s_cbranch_scc1", "L_fin")
g("s_cmp_lt_u32", S_WAVE, 4)
g("s_cbranch_scc1", "L_fin")
g("s_cmp_gt_u32", S_WAVE, 8)
g("s_cbranch_scc1", "L_fin")
g("s_cmp_eq_u32", S_WAVE, 8)
g("s_cbranch_scc1", "L_segF")
st_stat = g.save()

g.label("L_segC")
TQ = T[12]
g("s_and_b32", TQ, S_WAVE, 3)
g("v_lshrrev_b32", "v18", 4, "v0")
g("v_and_b32", "v20", 1, "v0")
g("v_lshlrev_b32", "v20", 10, "v20")
g("v_lshl_add_u32", "v20", "v18", 4, "v20")
g("s_lshl_b32", T[8], TQ, 8)
g("v_add_u32", "v20", T[8], "v20")
g("v_and_b32", "v21", 3, "v0")
g("v_lshlrev_b32", "v21", 4, "v21")
g("v_bfe_u32", "v22", "v0", 2, 2)
g("v_lshl_add_u32", "v21", "v22", 2, "v21")
g("s_lshl_b32", T[8], TQ, 6)
g("v_add_u32", "v22", T[8], "v21")
g("s_lshl_b32", T[8], TQ, 7)
g("v_add_u32", "v21", T[8], "v21")
g("v_bfe_u32", "v23", "v0", 3, 1)
g("v_lshlrev_b32", "v28", 3, "v23")
g("v_lshlrev_b32", "v23", 6, "v23")
g("v_lshl_add_u32", "v23", "v18", 4, "v23")
g("v_lshlrev_b32", "v19", 4, "v18")
g("v_bfe_u32", "v29", "v0", 3, 1)
g("v_lshlrev_b32", "v29", 11, "v29")
g("v_lshl_add_u32", "v29", "v18", 7, "v29")
g("v_and_b32", "v30", 7, "v0")
g("v_lshl_add_u32", "v29", "v30", 4, "v29")
g("s_lshl_b32", T[11], "s2", 12)
g("s_lshl_b32", T[9], TQ, 9)
g("s_add_u32", T[11], T[11], T[9])
g("s_add_u32", T[11], T[11], hex(WS_F))
g("v_bfe_u32", "v31", "v0", 2, 2)
g("v_lshlrev_b32", "v31", 8, "v31")
g("v_lshl_add_u32", "v31", "v18", 6, "v31")
g("v_and_b32", "v17", 3, "v0")
g("v_lshl_add_u32", "v31", "v17", 3, "v31")
g("s_lshl_b32", T[8], TQ, 12)
g("v_add_u32", "v31", T[8], "v31")
for r in range(4):
    g("v_mov_b32", f"v{8 + r}", "0x3f803f80")
g("v_lshrrev_b32", "v16", 1, "v0")
g("s_movk_i32", T[8], 2752)
g("v_mul_lo_u32", "v16", "v16", T[8])
g("v_and_b32", "v17", 1, "v0")
g("v_lshl_add_u32", "v16", "v17", 4, "v16")
g("s_mul_i32", T[8], TQ, 128 * 2752)
g("s_lshl_b32", T[9], "s2", 5)
g("s_add_u32", T[8], T[8], T[9])
g("s_lshl_b32", T[9], TQ, 12)
g("s_add_u32", T[9], T[9], L_W1)
if CFG["zsleep"]:
    g("s_sleep", CFG["zsleep"])
for k in range(4):
    g("s_mov_b32", "m0", T[9])
    g("buffer_load_dwordx4", "v16", SRD_W1, T[8], mods="offen lds")
    if k < 3:
        g("s_add_u32", T[8], T[8], 32 * 2752)
        g("s_add_u32", T[9], T[9], 1024)
g("v_and_b32", "v17", 15, "v0")
g("v_lshlrev_b32", "v17", 4, "v17")
g("v_lshl_add_u32", "v17", "v18", 10, "v17")
g("s_lshl_b32", T[8], "s2", 14)
g("s_lshl_b32", T[9], TQ, 8)
g("s_add_u32", T[8], T[8], T[9])
for i in range(4):
    g("buffer_load_dwordx4", vr(48 + 4 * i), "v17", SRD_W2, T[8], mods="offen")
    if i < 3:
        g("s_add_u32", T[8], T[8], 4096)
g("v_lshlrev_b32", "v17", 1, "v18")
g("s_lshl_b32", T[8], "s2", 5)
for i in range(4):
    g("buffer_load_ushort", f"v{24 + i}", "v17", SRD_B1, T[8], mods=f"offen offset:{8 * i}" if i else "offen")
g.wait(vm=0)
g("s_cbranch_execz", "L_c3")
for tt in range(4):
    for hh in range(2):
        g("ds_read_b64_tr_b16", vr(64 + 4 * tt + 2 * hh, 2), "v31",
          mods=f"offset:{L_W1 + tt * 1024 + hh * 32}")
g.label("L_c3")
for tt in range(4):
    g("v_mfma_f32_16x16x32_bf16", "v[12:15]", "v[8:11]", vr(64 + 4 * tt), "0" if tt == 0 else "v[12:15]")
for i in range(4):
    g("v_lshlrev_b32", f"v{24 + i}", 16, f"v{24 + i}")
setexec("0xffff")
g("ds_write_b32", "v22", "v12", mods=f"offset:{L_CS}")
setexec(-1)
g.wait(lgkm=0)
seg_end()
g.label("L_segD")
barrier()
for tt in range(4):
    g("ds_read_b128", vr(32 + 4 * tt), "v20", mods=f"offset:{L_HN + tt * 64}")
for q in range(4):
    g("ds_read_b128", vr(80 + 4 * q), "v19", mods=f"offset:{L_CS + 64 * q}")
for tt in range(4):
    g("v_mfma_f32_16x16x32_bf16", "v[12:15]", vr(32 + 4 * tt), vr(64 + 4 * tt), "0" if tt == 0 else "v[12:15]")
for i in range(4):
    g("v_add_f32", f"v{80 + i}", f"v{80 + i}", f"v{84 + i}")
    g("v_add_f32", f"v{88 + i}", f"v{88 + i}", f"v{92 + i}")
for i in range(4):
    g("v_add_f32", f"v{80 + i}", f"v{80 + i}", f"v{88 + i}")
setexec("0xffff")
g("ds_write_b32", "v21", "v12", mods=f"offset:{L_ZP}")
g("ds_write_b32", "v21", "v13", mods=f"offset:{L_ZP + 64}")
setexec(-1)
K1 = -2.0 * 0.7978845608028654 * 1.4426950408889634
K3 = K1 * 0.044715
g("s_mov_b32", T[8], f32hex(K3))
g("v_mov_b32", "v31", f32hex(K1))
g.wait(lgkm=0)
barrier()
seg_end()
g.label("L_segE")
for q in range(4):
    g("ds_read_b128", vr(96 + 4 * q), "v23", mods=f"offset:{L_ZP + 128 * q}")
g("ds_read_b64", "v[112:113]", "v28", mods=f"offset:{L_STAT}")
for i in range(4):
    g("v_add_f32", f"v{96 + i}", f"v{96 + i}", f"v{100 + i}")
    g("v_add_f32", f"v{104 + i}", f"v{104 + i}", f"v{108 + i}")
Z = [f"v{96 + i}" for i in range(4)]
TT_ = [f"v{100 + i}" for i in range(4)]
for i in range(4):
    g("v_add_f32", Z[i], Z[i], f"v{104 + i}")
for i in range(4):
    g("v_fma_f32", Z[i], "-v112", f"v{80 + i}", Z[i])
for i in range(4):
    g("v_mul_f32", Z[i], Z[i], "v113")
bf16r2(Z[0], Z[1], TT_[0])
bf16r2(Z[2], Z[3], TT_[1])
for i in range(4):
    g("v_add_f32", Z[i], Z[i], f"v{24 + i}")
bf16r2(Z[0], Z[1], TT_[0])
bf16r2(Z[2], Z[3], TT_[1])
for i in range(4):
    g("v_mul_f32", TT_[i], Z[i], Z[i])
for i in range(4):
    g("v_fma_f32", TT_[i], TT_[i], T[8], "v31")
for i in range(4):
    g("v_mul_f32", TT_[i], TT_[i], Z[i])
for i in range(4):
    g("v_exp_f32", TT_[i], TT_[i])
for i in range(4):
    g("v_add_f32", TT_[i], 1.0, TT_[i])
for i in range(4):
    g("v_rcp_f32", TT_[i], TT_[i])
for i in range(4):
    g("v_mul_f32", Z[i], Z[i], TT_[i])
for i in range(4):
    g("v_cvt_pk_bf16_f32", Z[i], Z[i], Z[i])
for i in range(4):
    bmask_mfma("v[12:15]", vr(48 + 4 * i), Z[i], i == 0)
g("buffer_store_dwordx4", "v[12:15]", "v29", SRD_WS, T[11], mods="offen sc1")
stamp(8)
seg_end()
g("s_branch", "L_fin")

g.label("L_segF")
g.restore(st_stat)
g("s_mov_b32", T[8], hex(WS_H))
g("v_mov_b32", "v28", 0)
g("v_lshlrev_b32", "v29", 3, "v0")
g("v_and_b32", "v30", 31, "v0")
g("v_lshlrev_b32", "v30", 6, "v30")
g("s_movk_i32", T[9], (128 + 3) * 16)
poll_tag(32, "v30", T[9], full)
if CFG["rep"]:
    poll_one("v1", T[8], 1 << 21, imm=2048)
poll_gather([32, 36, 40, 44], ["v1"] * 4, T[8], [full] * 4, imm=[0, 1024, 2048, 3072], slp=CFG["hsleep"])
stamp(7)
for k in range(8):
    g("v_cvt_pk_bf16_f32", f"v{16 + k}", f"v{32 + 2 * k}", f"v{33 + 2 * k}")
for b in range(2):
    g("ds_write_b64", "v29", vr(16 + 4 * b, 2), mods=f"offset:{L_HN + b * 1024}")
    g("ds_write_b64", "v29", vr(18 + 4 * b, 2), mods=f"offset:{L_HN + b * 1024 + 512}")
for b in range(2):
    g("v_readlane_b32", T[b], f"v{32 + 8 * b}", 0)
g.wait(lgkm=0)
barrier()
for b in range(2):
    for k in range(8):
        g("v_subrev_f32", f"v{32 + 8 * b + k}", T[b], f"v{32 + 8 * b + k}")
for b in range(2):
    base = 32 + 8 * b
    s1, s2 = f"v{8 + 2 * b}", f"v{9 + 2 * b}"
    g("v_add_f32", s1, f"v{base}", f"v{base + 1}")
    g("v_mul_f32", s2, f"v{base}", f"v{base}")
    g("v_fmac_f32", s2, f"v{base + 1}", f"v{base + 1}")
for k in range(2, 8):
    for b in range(2):
        base = 32 + 8 * b
        s1, s2 = f"v{8 + 2 * b}", f"v{9 + 2 * b}"
        g("v_add_f32", s1, s1, f"v{base + k}")
        g("v_fmac_f32", s2, f"v{base + k}", f"v{base + k}")
wave_reduce("v_add_f32", ["v8", "v9", "v10", "v11"])
g("v_mov_b32", "v12", "0x3b000000")
MU = ["v8", "v10"]
VA = ["v9", "v11"]
for b in range(2):
    g("v_mul_f32", MU[b], MU[b], "v12")
    g("v_mul_f32", VA[b], VA[b], "v12")
for b in range(2):
    g("v_fma_f32", VA[b], f"-{MU[b]}", MU[b], VA[b])
    g("v_add_f32", MU[b], T[b], MU[b])
for b in range(2):
    g("v_max_f32", VA[b], 0, VA[b])
for b in range(2):
    bf16r2(MU[b], VA[b], f"v{13 + b}")
for b in range(2):
    g("v_add_f32", VA[b], "0x3727c5ac", VA[b])
for b in range(2):
    bf16r(VA[b], VA[b])
for b in range(2):
    g("v_sqrt_f32", VA[b], VA[b])
for b in range(2):
    bf16r(VA[b], VA[b])
for b in range(2):
    g("v_rcp_f32", VA[b], VA[b])
g("s_mov_b32", T[0], 0)
g("s_brev_b32", T[1], 1)
g("s_and_b64", "exec", LIVE, f"s[{T[0][1:]}:{T[1][1:]}]")
g("ds_write_b128", "v28", "v[8:11]", mods=f"offset:{L_STAT}")
setexec(-1)
g.wait(lgkm=0)
barrier()
seg_end()
g("s_branch", "L_fin")


def xlane_sum(base, tmp):
    for r in range(4):
        g("v_add_f32_dpp", f"v{base + r}", f"v{base + r}", f"v{base + r}", mods=f"row_ror:8 {DPPF}")
    for op in ("v_permlane16_swap_b32", "v_permlane32_swap_b32"):
        for r in range(4):
            g("v_mov_b32", f"v{tmp + r}", f"v{base + r}")
        for r in range(4):
            g(op, f"v{base + r}", f"v{tmp + r}")
        for r in range(4):
            g("v_add_f32", f"v{base + r}", f"v{base + r}", f"v{tmp + r}")


g.label("L_segH")
g.restore(st_y)
TB, TK, TX = T[10], T[11], T[12]
g("s_lshr_b32", TB, S_PI, 4)
g("s_and_b32", TK, S_PI, 15)
g("v_lshrrev_b32", "v18", 3, "v0")
g("v_and_b32", "v19", 7, "v0")
g("v_lshlrev_b32", "v19", 4, "v19")
g("v_lshl_add_u32", "v16", "v18", 11, "v19")
g("v_lshl_add_u32", "v17", "v18", 12, "v19")
g("s_lshl_b32", T[8], S_WAVE, 7)
g("v_add_u32", "v19", T[8], "v19")
g("v_and_b32", "v23", 31, "v0")
g("v_lshlrev_b32", "v25", 2, "v23")
g("v_lshrrev_b32", "v24", 5, "v0")
g("v_lshl_add_u32", "v24", "v24", 10, "v25")
g("v_and_b32", "v20", 3, "v23")
g("v_lshlrev_b32", "v20", 4, "v20")
g("v_lshrrev_b32", "v23", 2, "v23")
g("v_lshl_add_u32", "v20", "v23", 1, "v20")
g("s_lshl_b32", TX, TK, 6)
g("buffer_load_ushort", "v22", "v20", SRD_B2, TX, mods="offen")
g("s_lshl_b32", T[8], TB, 10)
g("s_add_u32", TX, TX, T[8])
g("buffer_load_ushort", "v21", "v20", SRD_X, TX, mods="offen")
g("s_lshl_b32", T[8], TB, 18)
g("s_lshl_b32", T[9], S_WAVE, 14)
g("s_add_u32", T[8], T[8], T[9])
g("s_lshl_b32", T[9], TK, 7)
g("s_add_u32", T[8], T[8], T[9])
g("s_add_u32", T[8], T[8], hex(WS_Y))
g("v_cmp_gt_u32", "vcc", NFFN, "v52")
g("s_mov_b32", T[9], 0)
g.wait_regs("v[56:63]")
st_pre = g.save()
poll_tag(56, "v53", T[9], "vcc", pre=True)
poll_tag(60, "v54", T[9], full, pre=True)
g.merge(st_pre)
g("v_mov_b32", "v44", "v60")
g("v_mov_b32", "v45", "v61")
g("v_mov_b32", "v46", "v44")
g("v_max_f32_dpp", "v46", "v46", "v46", mods=f"row_ror:8 {DPPF}")
g("v_mov_b32", "v47", "v46")
g("v_permlane16_swap_b32", "v46", "v47")
g("v_max_f32", "v46", "v46", "v47")
g("v_sub_f32", "v44", "v44", "v46")
g("v_exp_f32", "v44", "v44")
g("v_mul_f32", "v45", "v45", "v44")
g("v_add_f32_dpp", "v45", "v45", "v45", mods=f"row_ror:8 {DPPF}")
g("v_mov_b32", "v47", "v45")
g("v_permlane16_swap_b32", "v45", "v47")
g("v_add_f32", "v45", "v45", "v47")
g("v_rcp_f32", "v45", "v45")
g("v_mul_f32", "v44", "v44", "v45")
poll_gather([32], ["v16"], T[8], [full], slp=CFG["ysleep"])
for r in range(4):
    g("v_mul_f32", f"v{32 + r}", f"v{32 + r}", "v44")
xlane_sum(32, 36)
setexec("0xff")
g("ds_write_b128", "v19", "v[32:35]", mods=f"offset:{L_RED}")
setexec(-1)
for r in range(4):
    g("v_mov_b32", f"v{40 + r}", 0)
g("s_lshl_b32", T[8], S_WAVE, 15)
g("s_lshl_b32", T[9], S_PI, 7)
g("s_add_u32", T[8], T[8], T[9])
g("s_add_u32", T[8], T[8], hex(WS_F))
g.wait(lgkm=0)
barrier()
seg_end()
g("s_cmp_gt_u32", S_WAVE, 10)
g("s_cbranch_scc1", "L_fin")
g("s_cmp_lg_u32", S_WAVE, 0)
g("s_cbranch_scc1", "L_segJ")
st_j = g.save()
g.label("L_segI")
stamp(6)
for k in range(8):
    g("ds_read_b32", f"v{32 + k}", "v24", mods=f"offset:{L_RED + 128 * k}")
g("v_lshlrev_b32", "v21", 16, "v21")
g("v_lshlrev_b32", "v22", 16, "v22")
g("s_lshl_b32", T[9], S_PI, 7)
g("s_add_u32", T[9], T[9], hex(WS_H))
tree_sum([f"v{32 + k}" for k in range(8)])
g("v_mov_b32", "v33", "v32")
g("v_permlane32_swap_b32", "v32", "v33")
g("v_add_f32", "v32", "v32", "v33")
bf16r("v32", "v32")
g("v_add_f32", "v26", "v32", "v21")
bf16r("v26", "v26")
setexec("0xffffffff")
g("buffer_store_dword", "v26", "v25", SRD_WS, T[9], mods="offen sc1")
setexec(-1)
seg_end()
g.label("L_segJ")
g.merge(st_j)
g("s_lshl_b32", T[9], S_WAVE, 3)
g("v_add_u32", "v27", T[9], "v18")
g("v_cmp_gt_u32", "vcc", NFFN, "v27")
poll_gather([40], ["v17"], T[8], ["vcc"], slp=CFG["fsleep"])
xlane_sum(40, 36)
setexec("0xff")
g("ds_write_b128", "v19", "v[40:43]", mods=f"offset:{L_RED + 2048}")
setexec(-1)
g.wait(lgkm=0)
barrier()
g("s_cbranch_execz", "L_j2")
g("s_cmp_lg_u32", S_WAVE, 0)
g("s_cbranch_scc1", "L_fin")
g.label("L_j2")
g("v_lshrrev_b32", "v27", 5, "v0")
g("v_mul_u32_u24", "v27", 768, "v27")
g("v_add_u32", "v27", "v27", "v25")
for k in range(6):
    g("ds_read_b32", f"v{32 + k}", "v27", mods=f"offset:{L_RED + 2048 + 128 * k}")
g("s_mov_b32", T[0], -1)
g("s_mov_b32", T[1], 0)
g("v_cndmask_b32", "v37", 0, "v37", f"s[{T[0][1:]}:{T[1][1:]}]")
tree_sum([f"v{32 + k}" for k in range(6)])
g("v_mov_b32", "v33", "v32")
g("v_permlane32_swap_b32", "v32", "v33")
g("v_add_f32", "v32", "v32", "v33")
bf16r("v32", "v32")
g("v_add_f32", "v32", "v32", "v22")
bf16r("v32", "v32")
g("v_add_f32", "v32", "v32", "v26")
g("v_cvt_pk_bf16_f32", "v32", "v32", "v32")
setexec("0xffffffff")
g("buffer_store_short", "v32", "v20", SRD_OUT, TX, mods="offen")
setexec(-1)
stamp(9)
seg_end()
g.dry_guard = False

g.label("L_fin")
if CFG["diag"]:
    g.nop(8)
    g.wait(vm=0, lgkm=0)
    diag_store()
g.label("L_end")
g("s_endpgm")
if not CFG["dry"]:
    g.label("L_dryret")
    g("s_endpgm")

hdr = open("cdna_kernels/" + NAME + ".s.ref").read().split("\n")
head = []
for line in hdr:
    if line.startswith("; @launch"):
        head.append(f"; @launch grid=(256,1,1) block=(1024,1,1) lds={LDS_BYTES}")
    elif line.startswith(";"):
        head.append(line)
    else:
        break
src = "\n".join(head) + "\n"
src += """;
"""
src += f""".amdgcn_target "amdgcn-amd-amdhsa--gfx950"
.text
.globl {NAME}_kernel
.p2align 8
.type {NAME}_kernel,@function
{NAME}_kernel:
"""
src += g.text()
src += f""".section .rodata,"a"
.p2align 6
.amdhsa_kernel {NAME}_kernel
  .amdhsa_next_free_vgpr 128
  .amdhsa_next_free_sgpr 102
  .amdhsa_accum_offset 128
  .amdhsa_group_segment_fixed_size 0
  .amdhsa_kernarg_size 104
  .amdhsa_user_sgpr_count 2
  .amdhsa_user_sgpr_kernarg_segment_ptr 1
  .amdhsa_system_sgpr_workgroup_id_x 1
  .amdhsa_float_denorm_mode_32 3
.end_amdhsa_kernel
"""
open(sys.argv[1], "w").write(src)
print("instructions:", g.ninstr)
```
